```python
import torch

def _softmax(x, axis=-1):
    return torch.softmax(x, dim=axis)
def _gelu(x):
    return torch.nn.functional.gelu(x, approximate="tanh")
def _silu(x):
    return torch.nn.functional.silu(x)
def _sigmoid(x):
    return torch.sigmoid(x)
def _layernorm(x, axis=-1, eps=1e-5):
    m = x.mean(dim=axis, keepdim=True)
    v = x.var(dim=axis, keepdim=True, unbiased=False)
    return (x - m) / torch.sqrt(v + eps)
def _scatter_add(tgt, idx, src, axis=0):
    return tgt.clone().index_add_(axis, idx, src)
def _segment_sum(src, seg, n):
    out = torch.zeros((n,) + src.shape[1:], dtype=src.dtype)
    return out.index_add_(0, seg, src)
def _pad(x, pw):
    flat = tuple(v for pair in reversed(pw) for v in pair)
    return torch.nn.functional.pad(x, flat)

kernel_name = 'gated_mix__ssm_conv_s4__dense_activation_squared_relu__prompt'

def setup_inputs():

    _w = (lambda a: (lambda t: t.to(torch.bfloat16) if t.is_floating_point() else t)(torch.as_tensor(a)))
    def _A_setup():
        B, L, D, N = 1, 2048, 512, 128
        A_re = -(lambda _x: torch.exp(torch.as_tensor(_x)))((lambda *s: torch.randn(*s, dtype=torch.bfloat16) * 3.2)(D, N))
        A_im = torch.pi * (lambda *s: torch.randn(*s, dtype=torch.bfloat16) * 0.1)(D, N)
        B_re = (lambda *s: torch.randn(*s, dtype=torch.bfloat16) * 0.2)(D, N)
        B_im = (lambda *s: torch.randn(*s, dtype=torch.bfloat16) * 0.2)(D, N)
        C_re = (lambda *s: torch.randn(*s, dtype=torch.bfloat16) * 0.2)(D, N)
        C_im = (lambda *s: torch.randn(*s, dtype=torch.bfloat16) * 0.2)(D, N)
        log_dt = (lambda *s: torch.randn(*s, dtype=torch.bfloat16) * 0.1)(D) * 0.5 - 4.0
        Dskip = (lambda *s: torch.randn(*s, dtype=torch.bfloat16) * 0.1)(D)
        return {
            "u": _w((lambda *s: torch.randn(*s, dtype=torch.bfloat16) * 0.05)(B, L, D)),
            "A_re": _w(A_re),
            "A_im": _w(A_im),
            "B_re": _w(B_re),
            "B_im": _w(B_im),
            "C_re": _w(C_re),
            "C_im": _w(C_im),
            "log_dt": _w(log_dt),
            "Dskip": _w(Dskip),
        }
    _A_in = _A_setup()

    def _B_setup():
        B, S, D, F = 1, 2048, 512, 1376
        return {
            "x": _w((lambda *s: torch.randn(*s, dtype=torch.bfloat16) * 0.05)(B, S, D)),
            "w1": _w((lambda *s: torch.randn(*s, dtype=torch.bfloat16) * 0.05)(D, F)),
            "b1": _w((lambda *s: torch.randn(*s, dtype=torch.bfloat16) * 0.05)(F)),
            "w2": _w((lambda *s: torch.randn(*s, dtype=torch.bfloat16) * 0.05)(F, D)),
            "b2": _w((lambda *s: torch.randn(*s, dtype=torch.bfloat16) * 0.05)(D)),
        }
    _B_in = _B_setup()

    return {
        "A_u": _A_in["u"],
        "A_A_re": _A_in["A_re"],
        "A_A_im": _A_in["A_im"],
        "A_B_re": _A_in["B_re"],
        "A_B_im": _A_in["B_im"],
        "A_C_re": _A_in["C_re"],
        "A_C_im": _A_in["C_im"],
        "A_log_dt": _A_in["log_dt"],
        "A_Dskip": _A_in["Dskip"],
        "B_x": _B_in["x"],
        "B_w1": _B_in["w1"],
        "B_b1": _B_in["b1"],
        "B_w2": _B_in["w2"],
        "B_b2": _B_in["b2"],
        "gate_w": _w((lambda *s: torch.randn(*s, dtype=torch.bfloat16) * 0.05)(512) * 16.0),
    }

def reference(A_u, A_A_re, A_A_im, A_B_re, A_B_im, A_C_re, A_C_im, A_log_dt, A_Dskip, B_x, B_w1, B_b1, B_w2, B_b2, gate_w):
    def _A_ref(u, A_re, A_im, B_re, B_im, C_re, C_im, log_dt, Dskip):
        Bsz, L, D = u.shape
        dt = torch.exp(log_dt)[:, None]
        A = A_re + 1j * A_im
        Bc = B_re + 1j * B_im
        Cc = C_re + 1j * C_im
        logdA = dt * A
        dB = dt * Bc
        l = (lambda x, dt: x.to(dt))(torch.arange(L), A_re.dtype)
        P = torch.exp(logdA[:, :, None] * l[None, None, :])
        K = torch.einsum("dn,dnl,dn->dl", Cc, P, dB).real
        L2 = 2 * L
        Kp = _pad(K, ((0, 0), (0, L)))
        up = (lambda x, *d: x.permute(*d))(u, 0, 2, 1)
        up = _pad(up, ((0, 0), (0, 0), (0, L)))
        Kf = (lambda x, axes=(-2,-1): torch.fft.rfft2(x.float(), dim=axes))(Kp[:, None, :], axes=(-2, -1))
        Uf = (lambda x, axes=(-2,-1): torch.fft.rfft2(x.float(), dim=axes))(up[:, :, None, :], axes=(-2, -1))
        Yf = Uf * Kf[None, :, :, :]
        y = (lambda x, s, axes=(-2,-1): torch.fft.irfft2(x, s=s, dim=axes).to(torch.bfloat16))(Yf, (1, L2), axes=(-2, -1))[:, :, 0, :L]
        y = (lambda x, *d: x.permute(*d))(y, 0, 2, 1) + u * Dskip[None, None, :]
        return y

    def _B_ref(x, w1, b1, w2, b2):
        h = torch.einsum("bsd,df->bsf", x, w1) + b1
        zero = torch.zeros_like(h)
        r = torch.where(h > zero, h, zero)
        h = r * r
        out = torch.einsum("bsf,fd->bsd", h, w2) + b2
        return out

    x = A_u
    g = _sigmoid((x * gate_w).sum(-1, keepdims=True))
    a = _A_ref(x, A_A_re, A_A_im, A_B_re, A_B_im, A_C_re, A_C_im, A_log_dt, A_Dskip)
    b = _B_ref(x, B_w1, B_b1, B_w2, B_b2)
    return g * a + (1 - g) * b
```

```python
NAME = "gated_mix__ssm_conv_s4__dense_activation_squared_relu__prompt_kernel"
HDR = open("gated_mix__ssm_conv_s4__dense_activation_squared_relu__prompt.s.ref").read().split("; Override launch")[0]

class Asm:
    def __init__(self):
        self.L = []
        self.uid = 0
    def __call__(self, s, *a):
        for ln in s.strip("\n").split("\n"):
            ln = ln.strip()
            if not ln: continue
            if ln.endswith(":") or ln.startswith("."): self.L.append(ln)
            else: self.L.append("    " + ln)
    def c(self, s): self.L.append("    ; " + s)
    def lab(self, base="L"):
        self.uid += 1
        return f"{base}_{self.uid}"
    def text(self): return "\n".join(self.L) + "\n"

def v(i, n=1): return f"v{i}" if n == 1 else f"v[{i}:{i+n-1}]"
def s(i, n=1): return f"s{i}" if n == 1 else f"s[{i}:{i+n-1}]"
def ac(i, n=1): return f"a{i}" if n == 1 else f"a[{i}:{i+n-1}]"

def kd(name, vgpr, sgpr=102, accum=None, extra=""):
    if accum is None: accum = min(256, (vgpr + 3)//4*4)
    return f""".amdhsa_kernel {name}
  .amdhsa_next_free_vgpr {vgpr}
  .amdhsa_next_free_sgpr {sgpr}
  .amdhsa_accum_offset {accum}
  .amdhsa_group_segment_fixed_size 0
  .amdhsa_kernarg_size 144
  .amdhsa_user_sgpr_count 2
  .amdhsa_user_sgpr_kernarg_segment_ptr 1
  .amdhsa_system_sgpr_workgroup_id_x 1
{extra}.end_amdhsa_kernel
"""

def single(body, grid, block, lds, vgpr, sgpr=102, accum=None, extra=""):
    return (HDR + f"; @launch grid=({grid},1,1) block=({block},1,1) lds={lds}\n"
        + '.amdgcn_target "amdgcn-amd-amdhsa--gfx950"\n.text\n'
        + f".globl {NAME}\n.p2align 8\n.type {NAME},@function\n{NAME}:\n" + body
        + '.section .rodata,"a"\n.p2align 6\n' + kd(NAME, vgpr, sgpr, accum, extra))

def multi(kernels, launches):
    t = HDR
    for n, g, b, l in launches:
        t += f"; @launch kernel={n} grid=({g},1,1) block=({b},1,1) lds={l}\n"
    t += '.amdgcn_target "amdgcn-amd-amdhsa--gfx950"\n.text\n'
    for n, body, *_ in kernels:
        t += f".globl {n}\n.p2align 8\n.type {n},@function\n{n}:\n" + body
    t += '.section .rodata,"a"\n'
    for n, body, vg, sg, acc, extra in kernels:
        t += ".p2align 6\n" + kd(n, vg, sg, acc, extra)
    return t

def srd(A, d, blo, nbytes):
    A(f"s_mov_b32 s{d}, s{blo}")
    A(f"s_and_b32 s{d+1}, s{blo+1}, 0xffff")
    A(f"s_mov_b32 s{d+2}, {nbytes:#x}")
    A(f"s_mov_b32 s{d+3}, 0x20000")
```

```python
import sys, struct
from asmgen import *

WS_EPOCH = 0
WS_G     = 0x1000
WS_H     = 0x200000
WS_U2    = 0x800000
WS_A     = 0xC00000
WS_END   = 0x1000000
WS_TS    = 0x2000000
EPC = 0x9E3779B9
TM  = 0x69969669

SLOT = 28672; XB = 16384
S0   = 4*SLOT
L_R1 = S0
L_UL = S0 + 18432
L_KP = L_UL + 9216
L_OMG = L_R1 + 16384
L_RED = 3*SLOT
L_OT  = 3*SLOT + 16384
L_FLAG = 163328
F_PROG, F_SB, F_TAG, F_FREE = 0, 4, 8, 16
LDS_TOTAL = 163840
assert L_KP + 16384 <= L_FLAG
NWAVES = 10
LOG2E = 0x3fb8aa3b
INV2PI = 0x3e22f983

class Cnt:
    def __init__(self, A, name, mx): self.A = A; self.q = []; self.name = name; self.mx = mx; self.issued = set()
    def op(self, text, tag=None):
        self.A(text); self.q.append(tag); self.issued.add(tag)
        assert len(self.q) <= self.mx, "counter overflow"
    def need(self, tag):
        assert tag in self.issued, tag
        idx = [i for i, t in enumerate(self.q) if t == tag]
        if not idx: return
        n = len(self.q) - 1 - idx[-1]
        self.A(f"s_waitcnt {self.name}({min(n, self.mx)})")
        self.q = self.q[idx[-1]+1:]
    def drain(self):
        self.A(f"s_waitcnt {self.name}(0)"); self.q = []

class G:
    def __init__(self, ts=False, opts=()):
        self.A = Asm(); self.ts = ts; self.opts = set(opts)
    def dstamp(self):
        if not self.ts: return
        self.A("s_memtime s[64:65]\ns_waitcnt lgkmcnt(0)\ns_sub_u32 s64, s64, s70\ns_mov_b32 m0, s67\ns_add_u32 s67, s67, 1\nv_writelane_b32 v167, s64, m0")
    def dump_ts(self):
        A = self.A
        if not self.ts: return
        A("s_waitcnt lgkmcnt(0) vmcnt(0)")
        A("s_mov_b64 exec, -1")
        A("s_memrealtime s[64:65]")
        srd(A, 4, 50, 1 << 28)
        A("s_waitcnt lgkmcnt(0)")
        A("v_writelane_b32 v167, s68, 63")
        A("v_writelane_b32 v167, s64, 62")
        A("s_lshl_b32 s8, s2, 4\ns_add_u32 s8, s8, s3\ns_lshl_b32 s8, s8, 8")
        A(f"s_add_u32 s8, s8, {WS_TS:#x}")
        A("v_mbcnt_lo_u32_b32 v16, -1, 0\nv_mbcnt_hi_u32_b32 v16, -1, v16\nv_lshlrev_b32 v16, 2, v16")
        A("buffer_store_dword v167, v16, s[4:7], s8 offen")
        A("s_waitcnt vmcnt(0)")

    def guard(self):
        self.A("s_add_u32 s66, s66, 0x1000\ns_cbranch_scc1 L_end")

    def lds_wait_ge(self, vaddr, off, target, vt, st, name, sleep=1):
        A = self.A; L = A.lab(name); L2 = A.lab(name)
        if sleep:
            A(f"s_branch {L2}")
            A(f"{L}:")
            A(f"s_sleep {sleep}")
            A(f"{L2}:")
        else:
            A(f"{L}:")
        A(f"ds_read_b32 v{vt}, v{vaddr} offset:{off}")
        self.guard()
        A("s_waitcnt lgkmcnt(0)")
        A(f"v_readfirstlane_b32 s{st}, v{vt}")
        A(f"s_cmp_lt_u32 s{st}, {target}")
        A(f"s_cbranch_scc1 {L}")

    def get_tag(self, vaddr, vt, sdst, name):
        A = self.A; L = A.lab(name)
        A(f"{L}:")
        A(f"ds_read_b64 v[{vt}:{vt+1}], v{vaddr} offset:{F_TAG}")
        self.guard()
        A("s_waitcnt lgkmcnt(0)")
        A(f"v_readfirstlane_b32 s9, v{vt+1}")
        A(f"v_readfirstlane_b32 s{sdst}, v{vt}")
        A(f"s_cmp_eq_u32 s9, 0\ns_cbranch_scc1 {L}")

    def map_mn(self):
        A = self.A
        A("s_bfe_u32 s56, s2, 0x20001\ns_lshl_b32 s56, s56, 2\ns_bfe_u32 s54, s2, 0x20003\ns_add_u32 s56, s56, s54")
        A("s_and_b32 s57, s2, 1\ns_lshl_b32 s57, s57, 3\ns_lshr_b32 s55, s2, 5\ns_add_u32 s57, s57, s55")
    def map_tb(self):
        A = self.A
        A("s_and_b32 s59, s2, 7\ns_lshl_b32 s59, s59, 2\ns_bfe_u32 s54, s2, 0x20003\ns_add_u32 s59, s59, s54\ns_lshr_b32 s55, s2, 5")

    def prologue(self):
        A = self.A
        if self.ts:
            A("s_memtime s[70:71]\ns_memrealtime s[68:69]\ns_mov_b32 s67, 0\nv_mov_b32 v167, 0")
        A("s_load_dwordx16 s[16:31], s[0:1], 0")
        A("s_load_dwordx16 s[32:47], s[0:1], 64")
        A("s_load_dwordx4 s[48:51], s[0:1], 128")
        A("v_lshrrev_b32 v2, 6, v0")
        A("s_cmp_ge_u32 s2, 256\ns_cbranch_scc1 L_end")
        A("v_readfirstlane_b32 s3, v2")
        A("v_and_b32 v0, 63, v0")
        A("s_mov_b32 s66, 0")
        A("s_cmp_ge_u32 s3, 6\ns_cbranch_scc1 L_ssm")
        A("s_cmp_ge_u32 s3, 2\ns_cbranch_scc1 L_cons")
        A("s_cmp_eq_u32 s3, 1\ns_cbranch_scc1 L_help")

    def free_issue(self):
        self.A(f"ds_read_b128 v[20:23], v8 offset:{F_FREE}")
    def free_check(self, target, name):
        A = self.A; L = A.lab(name); L2 = A.lab(name); L3 = A.lab(name)
        A(f"{L}:")
        A("s_waitcnt lgkmcnt(0)")
        A("v_min3_u32 v20, v20, v21, v22\nv_min_u32 v20, v20, v23\ns_nop 0\nv_readfirstlane_b32 s9, v20")
        A(f"s_cmp_ge_u32 s9, {target}\ns_cbranch_scc1 {L2}")
        A("s_sleep 1")
        self.guard()
        self.free_issue()
        A(f"s_branch {L}")
        A(f"{L2}:")
    def signal(self, vm):
        A = self.A
        A("v_add_u32 v9, 1, v9")
        A(f"s_waitcnt vmcnt({vm})")
        A(f"ds_write_b32 v8, v9 offset:{F_PROG}")

    def loader(self):
        A = self.A
        A("s_getpc_b64 s[8:9]")
        A("L_pc0:")
        A("s_bfe_u32 s10, s2, 0x20003\ns_lshl_b32 s10, s10, 13")
        A("v_lshl_add_u32 v1, v0, 7, s10")
        A(f"v_min_u32 v1, L_codeend-L_pc0-4, v1")
        A("global_load_dword v14, v1, s[8:9]")
        A("s_setprio 3")
        A(f"v_mov_b32 v8, {L_FLAG}\nv_lshl_add_u32 v3, v0, 3, v8\nv_mov_b64 v[4:5], 0\nds_write_b64 v3, v[4:5]")
        self.map_mn()
        A("v_lshrrev_b32 v1, 3, v0")
        A("v_lshrrev_b32 v2, 4, v0")
        A("v_and_b32 v3, 7, v0")
        A("v_xor_b32 v2, v3, v2")
        A("v_lshlrev_b32 v1, 10, v1")
        A("v_lshl_add_u32 v4, v2, 4, v1")
        A("v_xor_b32 v5, 64, v4")
        A(f"v_add_u32 v5, {7*1024}, v5")
        A(f"v_add_u32 v6, {14*1024}, v4")
        A(f"v_add_u32 v7, {14*1024}, v5")
        for j in range(3):
            A(f"v_add_u32 v1, {64*j}, v0")
            A(f"v_mul_u32_u24 v2, 0xaaab, v1\nv_lshrrev_b32 v{24+j}, 19, v2")
            A(f"v_mul_u32_u24 v2, {2752-192}, v{24+j}")
            A(f"v_lshl_add_u32 v{10+j}, v0, 4, v2")
        A("s_lshl_b32 s10, s56, 17")
        A("s_mul_i32 s58, s57, 192")
        A("s_mov_b32 s11, 0")
        A("s_mov_b32 s12, 0")
        A("s_mov_b32 s13, 0")
        A("v_mov_b32 v9, 0")
        A("s_mov_b32 s6, 0x200000\ns_mov_b32 s7, 0x20000")
        A(f"s_mov_b32 s62, {512*2752}\ns_mov_b32 s63, 0x20000")
        A(f"s_mov_b32 s52, {64*2752}\ns_mov_b32 s53, {16*2752}")
        A("s_waitcnt lgkmcnt(0)")
        A("s_mov_b32 s4, s16\ns_and_b32 s5, s17, 0xffff")
        A("s_mov_b32 s60, s36\ns_and_b32 s61, s37, 0xffff")
        A("s_cmp_eq_u32 s57, 15\ns_cbranch_scc1 L_ld_gate")
        A("L_ld_go:")
        self.dstamp()
        A("L_ld_loop:")
        A("s_lshl_b32 s14, s11, 7\ns_add_u32 s14, s14, s10")
        A("s_cmp_ge_u32 s12, 2\ns_cselect_b32 s15, 1, 0")
        for g in range(4):
            A(f"s_add_u32 m0, s13, {g*4096}")
            if g: A(f"s_add_u32 s14, s14, 32768")
            else: A(f"s_mul_i32 s59, s11, s52")
            for j in range(4):
                A(f"buffer_load_dwordx4 v{4+j}, s[4:7], s14 offen offset:{j*1024} lds")
            if g == 2:
                A("v_add_u32 v9, s15, v9")
                A(f"s_waitcnt vmcnt(40)")
                A(f"ds_write_b32 v8, v9 offset:{F_PROG}")
        A("s_add_u32 s59, s59, s58")
        for g in range(4):
            A(f"s_add_u32 m0, s13, {XB+g*3072}")
            if g: A(f"s_add_u32 s59, s59, s53")
            else: A("s_add_u32 s11, s11, 1")
            if g == 3: self.free_issue()
            for j in range(3):
                A(f"buffer_load_dwordx4 v{10+j}, s[60:63], s59 offen offset:{j*1024} lds")
        self.dstamp()
        A("s_cmp_lg_u32 s12, 0\ns_cbranch_scc1 L_ld_nb\ns_barrier\nL_ld_nb:")
        A(f"s_add_u32 s13, s13, {SLOT}\ns_cmp_eq_u32 s13, {4*SLOT}\ns_cselect_b32 s13, 0, s13")
        A("s_add_u32 s12, s12, 1")
        A("s_cmp_lt_u32 s12, 4\ns_cbranch_scc1 L_ld_loop")
        A("s_sub_u32 s15, s12, 3")
        self.free_check("s15", "L_ld_f")
        A("s_cmp_lt_u32 s12, 8\ns_cbranch_scc1 L_ld_loop")
        A("v_lshrrev_b32 v1, 3, v0\nv_lshlrev_b32 v1, 10, v1")
        A("v_bfe_u32 v2, v0, 4, 1\nv_lshlrev_b32 v2, 2, v2\nv_and_b32 v3, 7, v0\nv_xor_b32 v2, v2, v3")
        A("v_lshl_add_u32 v16, v2, 4, v1")
        for j in range(1, 4): A(f"v_add_u32 v{16+j}, {7*1024*j}, v16")
        srd(A, 4, 40, 1376*1024)
        A("s_lshl_b32 s10, s55, 7")
        A(f"s_add_u32 s14, s10, {1344*1024}")
        A(f"s_mov_b32 m0, 24576")
        A("s_nop 0")
        for j in range(4):
            A(f"buffer_load_dwordx4 v{16+j}, s[4:7], s14 offen offset:{j*1024} lds")
        def block(sig_at=None, sig_vm=None):
            A("s_mov_b32 s14, s10")
            for g in range(6):
                A(f"s_add_u32 m0, s13, {g*4096}")
                if g == 3: A(f"s_add_u32 s14, s10, {7*96*1024}")
                elif g: A("s_add_u32 s14, s14, 32768")
                else: A("s_nop 0")
                if g == 5: self.free_issue()
                for j in range(4):
                    A(f"buffer_load_dwordx4 v{16+j}, s[4:7], s14 offen offset:{j*1024} lds")
                if g == sig_at: self.signal(sig_vm)
            A(f"s_add_u32 s10, s10, {96*1024}")
            A(f"s_add_u32 s13, s13, {SLOT}\ns_cmp_eq_u32 s13, {4*SLOT}\ns_cselect_b32 s13, 0, s13")
            A("s_add_u32 s12, s12, 1")
        A("L_ld_w2a:")
        block(2, 36)
        self.dstamp()
        A("s_cmp_eq_u32 s12, 12\ns_cbranch_scc1 L_ld_w2a_done")
        A("s_sub_u32 s15, s12, 3")
        self.free_check("s15", "L_ld_g")
        A("s_branch L_ld_w2a")
        A("L_ld_w2a_done:")
        self.signal(24); self.signal(0)
        self.dstamp()
        A("L_ld_w2b:")
        A("s_sub_u32 s15, s12, 3")
        self.free_check("s15", "L_ld_h")
        A("s_cmp_lg_u32 s12, 14\ns_cbranch_scc1 L_ld_w2c")
        self.signal(24)
        A("L_ld_w2c:")
        block()
        self.dstamp()
        A("s_cmp_lt_u32 s12, 15\ns_cbranch_scc1 L_ld_w2b")
        self.signal(24); self.signal(0)
        self.dstamp()
        A("s_waitcnt lgkmcnt(0)")
        self.dump_ts()
        A("s_endpgm")
        A("L_ld_gate:")
        A("s_sub_u32 s60, s44, 2048\ns_subb_u32 s61, s45, 0\ns_and_b32 s61, s61, 0xffff")
        A("s_mov_b32 s62, 3072\ns_mov_b32 s52, 128\ns_mov_b32 s53, 32\ns_mov_b32 s58, 0")
        A("v_mov_b32 v15, 0x80000000")
        for j in range(3):
            A(f"v_add_u32 v1, {64*j}, v0")
            A(f"v_mul_u32_u24 v2, 12, v{24+j}\nv_sub_u32 v1, v1, v2")
            A(f"v_and_b32 v2, 1, v{24+j}")
            A("v_cmp_eq_u32 vcc, v1, v2")
            A(f"v_and_b32 v2, 14, v{24+j}\nv_lshlrev_b32 v2, 1, v2\nv_add_u32 v2, {2048-1024*j}, v2")
            A(f"v_cndmask_b32 v{10+j}, v15, v2, vcc")
        A("s_branch L_ld_go")

    def helper(self):
        A = self.A
        A("L_help:")
        A("v_lshlrev_b32 v1, 7, v0")
        A("v_min_u32 v1, 5376, v1")
        A(f"v_mov_b32 v8, {L_FLAG}")
        A("s_mul_i32 s10, s2, 5504")
        A("s_waitcnt lgkmcnt(0)")
        A(f"s_load_dword s61, s[50:51], {WS_EPOCH}")
        if "notouch" not in self.opts:
            A("s_add_u32 s12, s36, s10\ns_addc_u32 s13, s37, 0")
            A("global_load_dword v6, v1, s[12:13]")
        A("s_barrier")
        A("s_waitcnt lgkmcnt(0)")
        A(f"s_add_u32 s61, s61, {EPC:#x}")
        A("v_mov_b32 v2, s61\nv_mov_b32 v3, 1")
        A(f"ds_write_b64 v8, v[2:3] offset:{F_TAG}")
        self.dstamp()
        if "notouch" not in self.opts:
            self.lds_wait_ge(8, F_PROG, 1, 4, 9, "L_h_p", sleep=4)
            A("s_add_u32 s12, s40, s10\ns_addc_u32 s13, s41, 0")
            A("global_load_dword v7, v1, s[12:13]")
        A("s_cmp_lg_u32 s2, 0\ns_cbranch_scc1 L_h_done")
        srd(A, 4, 50, WS_END)
        self.lds_wait_ge(8, F_PROG, 8, 4, 9, "L_h_q", sleep=8)
        A("v_lshrrev_b32 v4, 5, v0\nv_lshlrev_b32 v4, 19, v4\nv_and_b32 v5, 31, v0\nv_lshl_add_u32 v4, v5, 9, v4")
        A(f"v_add_u32 v4, {WS_U2+4:#x}, v4")
        A("L_h_bump:")
        for i in range(4):
            A(f"s_mov_b32 s11, {i<<20:#x}")
            A(f"buffer_load_dword v{10+i}, v4, s[4:7], s11 offen sc1")
        A("s_waitcnt vmcnt(0)")
        for i in range(4): A(f"v_xor_b32 v{10+i}, s61, v{10+i}")
        A("v_or3_b32 v10, v10, v11, v12\nv_or_b32 v10, v10, v13")
        A("v_cmp_ne_u32 vcc, 0, v10")
        A("s_cbranch_vccz L_h_ok")
        self.guard()
        A("s_sleep 16\ns_branch L_h_bump")
        A("L_h_ok:")
        A(f"v_mov_b32 v4, {WS_EPOCH}")
        A("s_mov_b64 exec, 1")
        A("buffer_store_dword v2, v4, s[4:7], 0 offen sc1")
        A("L_h_done:")
        A("s_waitcnt vmcnt(0) lgkmcnt(0)")
        self.dstamp()
        self.dump_ts()
        A("s_endpgm")

    def consumer(self):
        A = self.A
        ACC = 16
        FR = [64, 80, 96, 112]
        A("L_cons:")
        A("s_setprio 2")
        self.map_mn()
        A("s_sub_u32 s60, s3, 2")
        A(f"v_mov_b32 v9, {L_FLAG}")
        A("s_lshl_b32 s10, s60, 2")
        A("v_add_u32 v11, s10, v9")
        A("v_mov_b32 v12, 0")
        A("v_and_b32 v1, 31, v0")
        A("v_lshrrev_b32 v2, 5, v0")
        A("v_bfe_u32 v3, v0, 1, 3")
        A("v_xor_b32 v3, v3, v2")
        A("v_lshlrev_b32 v3, 4, v3")
        A("v_lshl_add_u32 v3, v1, 7, v3")
        A("s_lshl_b32 s10, s60, 12")
        A("v_add_u32 v4, s10, v3")
        for st in range(1, 4): A(f"v_xor_b32 v{4+st}, {st*32}, v4")
        A("v_bfe_u32 v3, v0, 2, 2")
        A("v_lshl_add_u32 v3, v2, 3, v3")
        A("v_mul_u32_u24 v3, 192, v3")
        A("v_bfe_u32 v8, v0, 4, 1\nv_lshl_add_u32 v3, v8, 5, v3")
        A("v_and_b32 v8, 3, v0\nv_lshl_add_u32 v3, v8, 3, v3")
        A(f"v_add_u32 v8, {XB}, v3")
        A("s_mul_i32 s10, s57, 192")
        A("v_lshlrev_b32 v13, 1, v1")
        A("v_lshl_or_b32 v13, v2, 16, v13")
        B0 = FR[3]
        for fb in range(3):
            for q in range(1, 4): A(f"v_mov_b32 v{B0+4+4*fb+q}, 0")
        A(f"v_mov_b32 v{B0}, 0x3f80")
        for q in range(1, 4): A(f"v_mov_b32 v{B0+q}, 0")
        A("s_waitcnt lgkmcnt(0)")
        srd(A, 4, 38, 1376*2)
        for fb in range(3):
            A(f"buffer_load_ushort v{B0+4+4*fb}, v13, s[4:7], s10 offen offset:{64*fb}")
        A("s_barrier")
        self.dstamp()
        self.get_tag(9, 14, 61, "L_c_tag")
        A(f"s_and_b32 s62, s61, 1\ns_sub_u32 s62, 0, s62\ns_xor_b32 s62, s62, {TM:#x}")
        A("v_lshrrev_b32 v15, v1, s62\nv_and_b32 v15, 1, v15\nv_sub_u32 v15, 0, v15\nv_and_b32 v15, 0x80008000, v15")
        srd(A, 72, 50, WS_END)
        A("s_mov_b32 s63, 0x7fff7fff")
        A("v_lshlrev_b32 v13, 4, v0")
        A("s_waitcnt vmcnt(0)")
        for fb in range(3):
            A(f"v_mfma_f32_32x32x16_bf16 {v(ACC+16*fb,16)}, {v(B0+4+4*fb,4)}, {v(B0,4)}, 0")
        def reads(st):
            buf = FR[st]
            out = [f"ds_read_b128 {v(buf,4)}, v{4+st}"]
            for fb in range(3):
                for h in range(2):
                    out.append(f"ds_read_b64_tr_b16 {v(buf+4+4*fb+2*h,2)}, v8 offset:{st*3072+h*768+fb*64}")
            return out
        def mfmas(st):
            buf = FR[st]
            return [f"v_mfma_f32_32x32x16_bf16 {v(ACC+16*fb,16)}, {v(buf+4+4*fb,4)}, {v(buf,4)}, {v(ACC+16*fb,16)}" for fb in range(3)]
        FLAGRD = f"ds_read_b32 v10, v9 offset:{F_PROG}"
        FREEWR = f"ds_write_b32 v11, v12 offset:{F_FREE}"
        A("s_mov_b32 s13, 0")
        A(f"s_mov_b32 s11, {SLOT}")
        A("s_mov_b32 s12, 1")
        A("L_c_poll:")
        self.lds_wait_ge(9, F_PROG, "s12", 10, 14, "L_c_p0", sleep=0)
        for r in reads(0): A(r)
        for r in reads(1): A(r)
        A(".p2align 3")
        A("L_c_loop:")
        ms, rs = mfmas(0), reads(2)
        A("s_waitcnt lgkmcnt(7)")
        A(ms[0]); A(FLAGRD); A(rs[0]); A(rs[1]); A("s_add_u32 s12, s12, 1")
        A(ms[1]); A(rs[2]); A(rs[3]); A(rs[4]); A("s_cmp_eq_u32 s12, 9\ns_cselect_b32 s12, -1, s12")
        A(ms[2]); A(rs[5]); A(rs[6]); A(f"s_add_u32 s13, s13, 1\ns_cmp_eq_u32 s13, 4")
        ms, rs = mfmas(1), reads(3)
        A("s_waitcnt lgkmcnt(7)")
        A(ms[0]); A(f"s_cselect_b32 s15, {-3*SLOT & 0xffffffff:#x}, s11\ns_cselect_b32 s13, 0, s13"); A(rs[0]); A(rs[1]); A(rs[2])
        A(ms[1]); A("v_readfirstlane_b32 s14, v10"); A(rs[3]); A(rs[4]); A(rs[5]); A(rs[6])
        A(ms[2])
        for q in (0, 1, 4): A(f"v_add_u32 v{4+q}, s15, v{4+q}")
        A("s_cmp_lt_u32 s14, s12\ns_cbranch_scc1 L_c_slow")
        ms, rs = mfmas(2), reads(0)
        A("s_waitcnt lgkmcnt(7)")
        A(ms[0]); A(rs[0]); A(rs[1]); A("v_add_u32 v6, s15, v6\nv_add_u32 v7, s15, v7")
        A(ms[1]); A(rs[2]); A(rs[3]); A(rs[4]); A("v_add_u32 v12, 1, v12")
        A(ms[2]); A(rs[5]); A(rs[6])
        ms, rs = mfmas(3), reads(1)
        A("s_waitcnt lgkmcnt(7)")
        A(ms[0]); A(FREEWR); A(rs[0]); A(rs[1])
        A(ms[1]); A(rs[2]); A(rs[3]); A(rs[4])
        A(ms[2]); A(rs[5]); A(rs[6])
        A("s_branch L_c_loop")
        A("L_c_slow:")
        A("s_waitcnt lgkmcnt(7)")
        ms = mfmas(2)
        A(ms[0]); A("v_add_u32 v6, s15, v6\nv_add_u32 v7, s15, v7\nv_add_u32 v12, 1, v12"); A(ms[1]); A(ms[2])
        A("s_waitcnt lgkmcnt(0)")
        A(FREEWR)
        for m in mfmas(3): A(m)
        A("s_cmp_lg_u32 s12, -1\ns_cbranch_scc1 L_c_poll")
        self.dstamp()
        A("s_lshl_b32 s10, s56, 2\ns_add_u32 s10, s10, s60")
        A("s_cmp_eq_u32 s57, 15\ns_cbranch_scc1 L_c_gate")
        A("s_mul_i32 s10, s10, 86\ns_mul_i32 s11, s57, 6\ns_add_u32 s10, s10, s11\ns_lshl_b32 s10, s10, 10")
        A(f"s_add_u32 s10, s10, {WS_H:#x}")
        A("s_add_u32 s11, s10, 4096")
        A("s_nop 4")
        for fb in range(3):
            if fb == 1: A("s_cmp_eq_u32 s57, 14\ns_cbranch_scc1 L_c_e1done")
            for hs in range(2):
                o = 64 + 8*fb + 4*hs
                for q in range(4):
                    r0 = ACC + 16*fb + 8*hs + 2*q
                    A(f"v_max_f32 v{r0}, 0, v{r0}\nv_max_f32 v{r0+1}, 0, v{r0+1}")
                    A(f"v_pk_mul_f32 {v(r0,2)}, {v(r0,2)}, {v(r0,2)}")
                for q in range(4):
                    r0 = ACC + 16*fb + 8*hs + 2*q
                    A(f"v_cvt_pk_bf16_f32 v{o+q}, v{r0}, v{r0+1}")
                for q in range(4):
                    A(f"v_and_or_b32 v{o+q}, v{o+q}, s63, v15")
                idx = 2*fb + hs
                A(f"buffer_store_dwordx4 {v(o,4)}, v13, s[72:75], s{10 if idx < 4 else 11} offen offset:{(idx&3)*1024} sc1")
        A("s_branch L_c_e1done")
        A("L_c_gate:")
        A("s_nop 7")
        A(f"v_add_f32 v64, v{ACC}, v{ACC+5}")
        A(f"v_mul_f32 v64, {LOG2E ^ 0x80000000:#x}, v64")
        A("v_exp_f32 v64, v64")
        A("v_mov_b32 v65, s61")
        A("v_add_f32 v64, 1.0, v64")
        A("v_rcp_f32 v64, v64")
        A("s_lshl_b32 s10, s10, 8")
        A(f"s_add_u32 s10, s10, {WS_G:#x}")
        A("v_lshlrev_b32 v66, 3, v0")
        A("s_mov_b32 exec_hi, 0")
        A("buffer_store_dwordx2 v[64:65], v66, s[72:75], s10 offen sc1")
        A("s_mov_b64 exec, -1")
        A("L_c_e1done:")
        self.dstamp()
        self.gemm2()

    def gemm2(self):
        A = self.A
        AC2 = 16
        HB = [48, 72, 96]; HX = 120
        WF = [124, 132, 140, 148]
        BAD, T0, T1 = 156, 157, 158
        self.map_tb()
        A("s_and_b32 s52, s60, 1\ns_lshr_b32 s53, s60, 1")
        A("v_lshrrev_b32 v2, 5, v0\nv_bfe_u32 v3, v0, 2, 2\nv_lshl_add_u32 v2, v2, 2, v3\nv_lshlrev_b32 v2, 7, v2")
        A("v_bfe_u32 v3, v0, 3, 1\nv_lshl_add_u32 v2, v3, 6, v2")
        A("v_bfe_u32 v3, v0, 4, 1\nv_lshl_add_u32 v2, v3, 5, v2")
        A("v_and_b32 v3, 3, v0\nv_lshl_add_u32 v2, v3, 3, v2")
        A("s_mul_i32 s10, s53, 12288")
        A("v_add_u32 v4, s10, v2\nv_xor_b32 v5, 64, v4")
        A(f"v_add_u32 v6, {2*SLOT}, v4\nv_add_u32 v7, {2*SLOT}, v5")
        A("s_lshl_b32 s10, s53, 11")
        A("v_add_u32 v159, s10, v2\nv_xor_b32 v160, 64, v159")
        A("s_lshl_b32 s10, s59, 1\ns_add_u32 s10, s10, s52\ns_mul_i32 s10, s10, 86")
        A("s_add_u32 s11, s10, s53\ns_add_u32 s11, s11, 84\ns_lshl_b32 s11, s11, 10")
        A(f"s_add_u32 s76, s11, {WS_H:#x}")
        A("s_mul_i32 s11, s53, 42\ns_add_u32 s10, s10, s11\ns_lshl_b32 s10, s10, 10")
        A(f"s_add_u32 s77, s10, {WS_H:#x}")
        A("s_mov_b32 s62, 0x80008000")
        for g in range(7):
            A(f"s_add_u32 s{78+2*g}, s77, {g*6144}\ns_add_u32 s{79+2*g}, s77, {g*6144+4096}")
        def hload(g, s_):
            if g == 7: return f"buffer_load_dwordx4 {v(HX,4)}, v13, s[72:75], s76 offen sc1"
            return f"buffer_load_dwordx4 {v(HB[g%3]+4*s_,4)}, v13, s[72:75], s{78+2*g+(s_>>2)} offen offset:{(s_&3)*1024} sc1"
        def hreg(g, s_): return HX if g == 7 else HB[g%3] + 4*s_
        def chk(r, first):
            o = [f"v_bitop3_b32 v{T0}, v{r}, v{r+1}, v15 bitop3:0x7e",
                 f"v_bitop3_b32 v{T1}, v{r+2}, v{r+3}, v15 bitop3:0x7e"]
            o.append(f"v_or_b32 v{BAD}, v{T0}, v{T1}" if first else f"v_or3_b32 v{BAD}, v{BAD}, v{T0}, v{T1}")
            return o
        A("s_mov_b64 exec, 0xff")
        A("L_g2_probe:")
        A(hload(0, 5))
        self.guard()
        A("s_waitcnt vmcnt(0)")
        for x in chk(hreg(0,5), True): A(x)
        A(f"v_and_b32 v{BAD}, s62, v{BAD}\nv_cmp_ne_u32 vcc, 0, v{BAD}")
        A("s_cbranch_vccz L_g2_go\ns_sleep 2\ns_branch L_g2_probe")
        A("L_g2_go:")
        A("s_mov_b64 exec, -1")
        self.dstamp()
        vm = Cnt(A, "vmcnt", 63); lg = Cnt(A, "lgkmcnt", 15)
        for g in range(3):
            for s_ in range(6): vm.op(hload(g, s_), (g, s_))
        slow = []
        def verdict(g):
            Ls, Lr = A.lab("L_g2_slow"), A.lab("L_g2_ret")
            A(f"v_and_b32 v{BAD}, s62, v{BAD}\nv_cmp_ne_u32 vcc, 0, v{BAD}")
            A(f"s_cbranch_vccnz {Ls}")
            A(f"{Lr}:")
            slow.append((Ls, Lr, g))
        def wreads(q):
            buf = WF[q & 3]; o = []
            for db in range(2):
                for h in range(2):
                    if q == 42: a, off = 159+db, 24576 + h*1024
                    else:
                        b, s_ = divmod(q, 6); sl = b & 3
                        a = 4 + db + (2 if sl >= 2 else 0); off = (sl & 1)*SLOT + s_*2048 + h*1024
                    o.append(f"ds_read_b64_tr_b16 {v(buf+4*db+2*h,2)}, v{a} offset:{off}")
            return o
        progs = []
        def progcheck(b):
            Lp, Lr = A.lab("L_g2_pp"), A.lab("L_g2_pr")
            A(f"s_cmp_lt_u32 s14, {9+b}\ns_cbranch_scc1 {Lp}")
            A(f"{Lr}:")
            progs.append((Lp, Lr, 9+b))
        self.lds_wait_ge(9, F_PROG, 9, 10, 14, "L_g2_p0", sleep=0)
        for q in range(3):
            for r in wreads(q): lg.op(r, ("w", q))
        for s_ in range(6):
            vm.need((0, s_))
            for x in chk(hreg(0, s_), s_ == 0): A(x)
        verdict(0)
        self.dstamp()
        for q in range(43):
            g, s_ = divmod(q, 6)
            buf = WF[q & 3]; hr = hreg(g, s_)
            cin = [v(AC2+16*db,16) if q else "0" for db in range(2)]
            lg.need(("w", q))
            A(f"v_mfma_f32_32x32x16_bf16 {v(AC2,16)}, {v(buf,4)}, {v(hr,4)}, {cin[0]}")
            if s_ == 5 and g < 7:
                A("v_add_u32 v12, 1, v12")
                lg.op(f"ds_write_b32 v11, v12 offset:{F_FREE}")
            if s_ == 0 and g < 6: lg.op(f"ds_read_b32 v10, v9 offset:{F_PROG}", "flag")
            if q == 36: lg.op(f"ds_read_b128 v[162:165], v9 offset:{F_FREE}", "free")
            if s_ == 2 and g < 6:
                lg.need("flag"); A("v_readfirstlane_b32 s14, v10")
            if s_ == 3 and g < 6: progcheck(g+1)
            rs = wreads(q+3) if q+3 <= 42 else []
            for r in rs[:2]: lg.op(r, ("w", q+3))
            pq = q - 1
            if pq >= 0:
                pg, ps = divmod(pq, 6)
                if pg + 3 <= 6: vm.op(hload(pg+3, ps), (pg+3, ps))
                if pq == 23: vm.op(hload(7, 0), (7, 0))
            A(f"v_mfma_f32_32x32x16_bf16 {v(AC2+16,16)}, {v(buf+4,4)}, {v(hr,4)}, {cin[1]}")
            for r in rs[2:]: lg.op(r, ("w", q+3))
            if g + 1 <= 6:
                vm.need((g+1, s_))
                for x in chk(hreg(g+1, s_), s_ == 0): A(x)
                if g+1 == 6 and s_ == 5:
                    vm.need((7, 0))
                    for x in chk(HX, False): A(x)
                if s_ == 5: verdict(g+1)
        self.dstamp()
        lg.need("free")
        A("v_min3_u32 v162, v162, v163, v164\nv_min_u32 v162, v162, v165\ns_nop 0\nv_readfirstlane_b32 s14, v162")
        A("s_cmp_ge_u32 s14, 12\ns_cbranch_scc1 L_g2_red")
        A("L_g2_fw:")
        self.guard()
        A(f"ds_read_b128 v[162:165], v9 offset:{F_FREE}\ns_waitcnt lgkmcnt(0)")
        A("v_min3_u32 v162, v162, v163, v164\nv_min_u32 v162, v162, v165\ns_nop 0\nv_readfirstlane_b32 s14, v162")
        A("s_cmp_lt_u32 s14, 12\ns_cbranch_scc1 L_g2_fw")
        A("L_g2_red:")
        A("s_lshl_b32 s10, s60, 12")
        A(f"s_add_u32 s11, s10, {L_RED}\nv_add_u32 v4, s11, v13")
        A(f"s_xor_b32 s11, s10, 8192\ns_add_u32 s11, s11, {L_RED}\nv_add_u32 v5, s11, v13")
        A(f"s_add_u32 s11, s10, {L_R1}\nv_add_u32 v6, s11, v13")
        A(f"s_lshl_b32 s11, s52, 7\ns_add_u32 s11, s11, {L_OMG}\nv_lshl_add_u32 v7, v1, 2, s11")
        A("s_cmp_eq_u32 s53, 0\ns_cbranch_scc1 L_g2_k0")
        A("s_nop 7")
        for q in range(4): A(f"ds_write_b128 v4, {v(AC2+4*q,4)} offset:{q*1024}")
        A("s_nop 1")
        for q in range(16): A(f"v_mov_b32 v{AC2+q}, v{AC2+16+q}")
        A("s_branch L_g2_kj")
        A("L_g2_k0:")
        A("s_nop 7")
        for q in range(4): A(f"ds_write_b128 v4, {v(AC2+16+4*q,4)} offset:{q*1024}")
        A("L_g2_kj:")
        A("s_waitcnt lgkmcnt(0)")
        A("s_barrier")
        self.dstamp()
        A("ds_read_b32 v8, v7")
        for q in range(4): A(f"ds_read_b128 {v(48+4*q,4)}, v5 offset:{q*1024}")
        for q in range(4): A(f"ds_read_b128 {v(64+4*q,4)}, v6 offset:{q*1024}")
        A("s_mul_i32 s10, s60, 2560")
        A(f"s_add_u32 s10, s10, {L_OT}")
        A("v_mul_u32_u24 v2, 80, v1\nv_lshrrev_b32 v3, 5, v0\nv_lshl_add_u32 v2, v3, 3, v2\nv_add_u32 v2, s10, v2")
        A("v_lshrrev_b32 v3, 2, v0\nv_mul_u32_u24 v4, 80, v3\nv_and_b32 v5, 3, v0\nv_lshl_add_u32 v4, v5, 4, v4\nv_add_u32 v4, s10, v4")
        A("v_lshlrev_b32 v3, 10, v3\nv_lshl_add_u32 v3, v5, 4, v3")
        srd(A, 4, 46, 2048*1024)
        A("s_lshl_b32 s10, s59, 1\ns_add_u32 s10, s10, s52\ns_lshl_b32 s10, s10, 15")
        A("s_lshl_b32 s11, s55, 7\ns_add_u32 s10, s10, s11\ns_lshl_b32 s11, s53, 6\ns_add_u32 s10, s10, s11")
        A("s_add_u32 s11, s10, 16384")
        A("v_and_b32 v15, 0x80000000, v15")
        A("s_waitcnt lgkmcnt(8)")
        A("v_xor_b32 v8, v8, v15")
        for q in range(4):
            A(f"s_waitcnt lgkmcnt({7-q})")
            for r in range(0, 4, 2):
                A(f"v_pk_add_f32 {v(AC2+4*q+r,2)}, {v(AC2+4*q+r,2)}, {v(48+4*q+r,2)}")
        for q in range(4):
            A(f"s_waitcnt lgkmcnt(3)")
            for r in range(4):
                A(f"v_fma_f32 v{64+4*q+r}, v{AC2+4*q+r}, v8, v{64+4*q+r}")
            A(f"v_cvt_pk_bf16_f32 v{80+2*q}, v{64+4*q}, v{64+4*q+1}")
            A(f"v_cvt_pk_bf16_f32 v{81+2*q}, v{64+4*q+2}, v{64+4*q+3}")
            A(f"ds_write_b64 v2, {v(80+2*q,2)} offset:{16*q}")
        A("ds_read_b128 v[88:91], v4\nds_read_b128 v[92:95], v4 offset:1280")
        A("s_waitcnt lgkmcnt(1)")
        A("buffer_store_dwordx4 v[88:91], v3, s[4:7], s10 offen sc1")
        A("s_waitcnt lgkmcnt(0)")
        A("buffer_store_dwordx4 v[92:95], v3, s[4:7], s11 offen sc1")
        self.dstamp()
        if self.ts:
            A("s_waitcnt vmcnt(0)")
            self.dstamp()
        self.dump_ts()
        A("s_endpgm")
        for Ls, Lr, g in slow:
            A(f"{Ls}:")
            A("s_sleep 2")
            self.guard()
            fr = [(g, s_) for s_ in range(6)] + ([(7, 0)] if g == 6 else [])
            for x in fr: A(hload(*x))
            A("s_waitcnt vmcnt(0)")
            for i, x in enumerate(fr):
                for y in chk(hreg(*x), i == 0): A(y)
            A(f"v_and_b32 v{BAD}, s62, v{BAD}\nv_cmp_ne_u32 vcc, 0, v{BAD}")
            A(f"s_cbranch_vccnz {Ls}\ns_branch {Lr}")
        for Lp, Lr, n in progs:
            A(f"{Lp}:")
            self.guard()
            A(f"ds_read_b32 v10, v9 offset:{F_PROG}\ns_waitcnt lgkmcnt(0)\nv_readfirstlane_b32 s14, v10")
            A(f"s_cmp_lt_u32 s14, {n}\ns_cbranch_scc1 {Lp}\ns_branch {Lr}")

    def sbar(self, k):
        A = self.A
        A("s_waitcnt lgkmcnt(0)")
        A("s_mov_b64 exec, 1")
        A(f"ds_add_u32 v9, v8 offset:{F_SB}")
        A("s_mov_b64 exec, -1")
        self.lds_wait_ge(9, F_SB, 4*k, 10, 9, "L_sb", sleep=0)

    def ssm(self):
        A = self.A
        A("L_ssm:")
        A("s_sub_u32 s60, s3, 6")
        A("s_and_b32 s52, s60, 1\ns_lshr_b32 s53, s60, 1")
        self.map_tb()
        A("s_lshl_b32 s10, s59, 16\ns_lshl_b32 s11, s60, 14\ns_add_u32 s10, s10, s11\ns_lshl_b32 s11, s55, 7\ns_add_u32 s10, s10, s11")
        A("v_lshrrev_b32 v1, 3, v0\nv_lshrrev_b32 v2, 4, v0\nv_and_b32 v3, 7, v0\nv_xor_b32 v2, v3, v2\nv_lshlrev_b32 v1, 10, v1\nv_lshl_add_u32 v4, v2, 4, v1")
        A(f"v_xor_b32 v5, 64, v4\nv_add_u32 v5, {7*1024}, v5")
        A(f"s_lshl_b32 s11, s60, 11\ns_add_u32 s58, s11, {L_UL}\ns_mov_b32 m0, s58")
        A("s_lshl_b32 s12, s2, 9\ns_lshl_b32 s13, s52, 8\ns_add_u32 s12, s12, s13\ns_lshl_b32 s13, s53, 7\ns_add_u32 s12, s12, s13")
        A("v_lshl_add_u32 v6, v0, 1, s12")
        A("s_lshl_b32 s13, s2, 2")
        A("s_waitcnt lgkmcnt(0)")
        srd(A, 4, 16, 2048*1024)
        A("buffer_load_dwordx4 v4, s[4:7], s10 offen lds")
        A("buffer_load_dwordx4 v5, s[4:7], s10 offen offset:1024 lds")
        for i in range(6):
            A(f"global_load_ushort v{16+i}, v6, s[{18+2*i}:{19+2*i}]")
        A("s_load_dword s14, s[30:31], s13")
        A("s_load_dword s15, s[32:33], s13")
        A("s_barrier")
        self.dstamp()
        A(f"v_mov_b32 v9, {L_FLAG}\nv_mov_b32 v8, 1")
        srd(A, 72, 50, WS_END)
        GA = 100
        A("s_lshl_b32 s11, s53, 10\ns_sub_u32 s11, 2047, s11")
        A("v_lshlrev_b32 v1, 4, v0\nv_sub_u32 v1, s11, v1")
        A(f"s_mul_i32 s11, s52, 5632\ns_add_u32 s11, s11, {L_KP}")
        for i in range(17):
            A(f"v_subrev_u32 v2, {i}, v1")
            A("v_cvt_f32_i32 v3, v2")
            A("v_cvt_pk_bf16_f32 v3, v3, v3")
            A("v_min_i32 v7, 128, v2")
            A("v_and_b32 v3, 0xffff, v3")
            A("v_subrev_u32 v3, 0x4280, v3")
            A("v_max_i32 v3, v3, v7")
            if i == 16: A("v_min_u32 v3, 700, v3")
            A(f"v_lshl_add_u32 v{GA+i}, v3, 2, s11")
        A("v_and_b32 v1, 7, v0\nv_lshrrev_b32 v2, 5, v0\nv_xor_b32 v2, v2, v1\nv_lshlrev_b32 v2, 4, v2\nv_lshl_add_u32 v2, v1, 8, v2")
        A("v_bfe_u32 v3, v0, 3, 2\nv_lshl_add_u32 v2, v3, 2, v2\nv_add_u32 v24, s58, v2")
        for it_ in range(1, 4): A(f"v_xor_b32 v{24+it_}, {32*it_}, v24")
        A("v_lshrrev_b32 v2, 3, v0\nv_lshlrev_b32 v2, 14, v2\nv_lshl_add_u32 v28, v1, 4, v2")
        A("s_lshl_b32 s10, s55, 19\ns_lshl_b32 s11, s59, 9\ns_add_u32 s10, s10, s11\ns_lshl_b32 s11, s60, 7\ns_add_u32 s10, s10, s11")
        A(f"s_add_u32 s10, s10, {WS_U2:#x}")
        self.get_tag(9, 10, 61, "L_s_tag")
        for i in range(8): A(f"v_mov_b32 v{33+2*i}, s61")
        A("s_waitcnt vmcnt(6)")
        self.dstamp()
        for it_ in range(4):
            A(f"ds_read_b32 v{32+4*it_}, v{24+it_}\nds_read_b32 v{34+4*it_}, v{24+it_} offset:128")
        for it_ in range(4):
            A(f"s_waitcnt lgkmcnt({6-2*it_})")
            A(f"buffer_store_dwordx4 {v(32+4*it_,4)}, v28, s[72:75], s10 offen sc1")
            if it_ < 3: A("s_add_u32 s10, s10, 0x20000")
        A("s_lshl_b32 s11, s52, 4\ns_lshr_b32 s14, s14, s11\ns_lshl_b32 s14, s14, 16\ns_lshr_b32 s15, s15, s11\ns_lshl_b32 s15, s15, 16")
        A(f"v_mov_b32 v1, {LOG2E:#x}\nv_mul_f32 v2, s14, v1\nv_exp_f32 v2, v2")
        A("s_waitcnt vmcnt(4)")
        self.dstamp()
        A("v_cvt_pk_bf16_f32 v2, v2, v2\nv_lshlrev_b32 v2, 16, v2")
        for i in range(6): A(f"v_lshlrev_b32 v{16+i}, 16, v{16+i}")
        A("v_mul_f32 v16, v2, v16\nv_mul_f32 v17, v2, v17\nv_mul_f32 v18, v2, v18\nv_mul_f32 v19, v2, v19")
        A("v_mul_f32 v16, v1, v16")
        A(f"v_mul_f32 v17, {INV2PI:#x}, v17")
        def cmul(d, a, b):
            A(f"v_pk_mul_f32 {v(d,2)}, {v(a,2)}, {v(b,2)} op_sel:[0,0] op_sel_hi:[1,0]")
            A(f"v_pk_fma_f32 {v(d,2)}, {v(a,2)}, {v(b,2)}, {v(d,2)} op_sel:[1,1,0] op_sel_hi:[0,1,1] neg_lo:[1,0,0]")
        def f2h(x): return struct.unpack("<I", struct.pack("<f", x))[0]
        def direct(d, L):
            if L != 1:
                A(f"v_mul_f32 v3, {f2h(float(L)):#x}, v16\nv_mul_f32 v7, {f2h(float(L)):#x}, v17")
                A("v_exp_f32 v3, v3\nv_fract_f32 v7, v7")
            else:
                A("v_exp_f32 v3, v16\nv_fract_f32 v7, v17")
            A(f"v_cos_f32 v{d}, v7\nv_sin_f32 v{d+1}, v7")
            A(f"v_mul_f32 v{d}, v3, v{d}\nv_mul_f32 v{d+1}, v3, v{d+1}")
        A(f"s_mul_i32 s11, s60, 4608\ns_add_u32 s11, s11, {L_R1}")
        A("v_lshl_add_u32 v4, v0, 2, s11")
        A("v_and_b32 v5, 15, v0\nv_mul_u32_u24 v5, 288, v5\nv_lshrrev_b32 v6, 4, v0\nv_lshl_add_u32 v5, v6, 4, v5\nv_add_u32 v5, s11, v5")
        E1, E16, E256 = 22, 24, 26
        PA, PB = 28, 30
        EP = 32
        BF, AF = 60, 76
        KA = 120
        tmpi = [0]
        def put(row, src, neg=False):
            t = 92 + (tmpi[0] & 3); tmpi[0] += 1
            A(f"v_cvt_pk_bf16_f32 v{t}, v{src}, {'-' if neg else ''}v{src+1}")
            A(f"ds_write_b32 v4, v{t} offset:{row*288}")
        def frags(dst):
            for q in range(4): A(f"ds_read_b128 {v(dst+4*q,4)}, v5 offset:{64*q}")
        def kmf(k):
            A("s_waitcnt lgkmcnt(0)")
            for q in range(4):
                A(f"v_mfma_f32_16x16x32_bf16 {v(KA+4*k,4)}, {v(AF+4*q,4)}, {v(BF+4*q,4)}, {v(KA+4*k,4) if q else '0'}")
        direct(E16, 16)
        cmul(PA, 20, 18)
        cur, nxt = PA, PB
        for b in range(16):
            put(b, cur, neg=True)
            if b < 15:
                cmul(nxt, cur, E16); cur, nxt = nxt, cur
        frags(BF)
        direct(E1, 1)
        A("v_mov_b32 v92, 0x3f80\nds_write_b32 v4, v92"); tmpi[0] = 1
        put(1, E1)
        def ep(k): return E1 if k == 1 else EP + 2*(k-2)
        for k in range(2, 16):
            cmul(ep(k), ep(k-1), E1); put(k, ep(k))
        frags(AF)
        direct(E256, 256)
        kmf(0)
        put(0, E256)
        for r in range(1, 8):
            cmul(PA if r & 1 else PB, E256, ep(2*r)); put(r, PA if r & 1 else PB)
        BS = [96, 98]
        cmul(BS[0], E256, E256)
        for a_ in range(2):
            base = BS[a_]
            put(8+4*a_, base)
            for r in range(1, 4):
                cmul(PA if r & 1 else PB, base, ep(4*r)); put(8+4*a_+r, PA if r & 1 else PB)
            cmul(BS[1-a_], base, E256)
        frags(AF)
        kmf(1)
        cur = 0
        for a_ in range(4):
            put(2*a_, BS[cur])
            cmul(PA, BS[cur], ep(8)); put(2*a_+1, PA)
            cmul(BS[1-cur], BS[cur], E256); cur = 1-cur
        put(8, BS[cur])
        frags(AF)
        A(f"s_mul_i32 s11, s52, 5632\ns_mul_i32 s12, s53, 2816\ns_add_u32 s11, s11, s12\ns_add_u32 s11, s11, {L_KP}")
        A("v_and_b32 v1, 15, v0\nv_lshrrev_b32 v2, 4, v0")
        A("v_lshlrev_b32 v3, 4, v2\nv_lshl_add_u32 v3, v1, 6, v3\nv_add_u32 v28, s11, v3")
        A("v_lshlrev_b32 v3, 4, v2\nv_lshl_add_u32 v3, v1, 5, v3\nv_add_u32 v3, 1024, v3")
        A("v_lshlrev_b32 v7, 8, v2\nv_lshl_add_u32 v7, v1, 4, v7\nv_add_u32 v7, 1024, v7")
        A("v_cmp_gt_u32 vcc, 2, v2")
        A("v_min_u32 v6, 2, v2\ns_nop 0")
        A("v_cndmask_b32 v3, v7, v3, vcc\nv_add_u32 v29, s11, v3")
        A("v_lshlrev_b32 v3, 8, v6\nv_lshl_add_u32 v3, v1, 3, v3\nv_add_u32 v3, 2048, v3\nv_add_u32 v30, s11, v3")
        kmf(2)
        A("s_cmp_eq_u32 s53, 0\ns_cselect_b32 s15, s15, 0")
        A("v_mov_b32 v6, 0\nv_mov_b32 v7, 0\nv_mov_b32 v31, s11")
        A("v_writelane_b32 v6, s15, 0")
        A(f"v_add_f32 v{KA}, v{KA}, v6")
        A(f"ds_write_b128 v28, {v(KA,4)}")
        A(f"ds_write_b128 v29, {v(KA+4,4)}")
        A("s_nop 3")
        A("s_mov_b32 exec_hi, 1")
        A(f"ds_write_b64 v30, {v(KA+8,2)}")
        A("s_mov_b32 exec_hi, 0")
        A(f"ds_write_b64 v30, {v(KA+10,2)} offset:128")
        A("s_mov_b64 exec, -1")
        A(f"ds_write_b32 v31, v7 offset:{700*4}")
        self.dstamp()
        A(f"s_lshl_b32 s10, s2, 14\ns_lshl_b32 s11, s60, 12\ns_add_u32 s10, s10, s11\ns_add_u32 s10, s10, {WS_U2:#x}")
        A("v_lshlrev_b32 v13, 4, v0")
        UR = 132
        def uloads():
            for j in range(4): A(f"buffer_load_dwordx4 {v(UR+4*j,4)}, v13, s[72:75], s10 offen offset:{j*1024} sc1")
        uloads()
        self.sbar(1)
        self.dstamp()
        for i in range(17):
            A(f"ds_read2st64_b32 {v(32+2*i,2)}, v{GA+i} offset0:0 offset1:11")
            if i == 13: A("s_waitcnt lgkmcnt(8)")
        A(f"s_mul_i32 s11, s52, 8320\ns_lshl_b32 s12, s53, 11\ns_add_u32 s12, s12, s11\ns_add_u32 s12, s12, {L_R1}")
        A("v_lshl_add_u32 v4, v0, 5, s12")
        A("s_waitcnt lgkmcnt(0)")
        for i in range(17): A(f"v_add_f32 v{32+2*i}, v{32+2*i}, v{33+2*i}")
        for i in range(8): A(f"v_cvt_pk_bf16_f32 v{68+i}, v{32+4*i}, v{34+4*i}")
        A("ds_write_b128 v4, v[68:71]\nds_write_b128 v4, v[72:75] offset:16")
        for i in range(8): A(f"v_cvt_pk_bf16_f32 v{76+i}, v{34+4*i}, v{36+4*i}")
        A("ds_write_b128 v4, v[76:79] offset:4160\nds_write_b128 v4, v[80:83] offset:4176")
        A(f"s_mul_i32 s12, s53, 4160\ns_add_u32 s12, s12, s11\ns_add_u32 s12, s12, {L_R1+4096}")
        A("v_and_b32 v5, 7, v0\nv_lshl_add_u32 v5, v5, 2, s12\nds_write_b32 v5, v7")
        A(f"s_mul_i32 s12, s52, 4608\ns_add_u32 s12, s12, {L_UL}")
        A("v_min_u32 v5, 59, v0\nv_lshl_add_u32 v5, v5, 3, s12\nv_mov_b32 v6, 0\nds_write_b64 v5, v[6:7]")
        A(f"s_lshl_b32 s12, s60, 10\ns_add_u32 s12, s12, {L_UL+480}")
        A("v_lshl_add_u32 v5, v0, 2, s12")
        A("s_mov_b32 s12, 0x05040100\ns_mov_b32 s13, 0x07060302")
        A("L_s_uchk:")
        A("s_waitcnt vmcnt(0)")
        A("v_mov_b32 v6, s61")
        for j in range(4): A(f"v_bitop3_b32 v{84+j}, v{UR+4*j+1}, v{UR+4*j+3}, v6 bitop3:0x7e")
        A("v_or3_b32 v84, v84, v85, v86\nv_or_b32 v84, v84, v87\nv_cmp_ne_u32 vcc, 0, v84")
        A("s_cbranch_vccz L_s_uok")
        A("s_sleep 8")
        self.guard()
        uloads()
        A("s_branch L_s_uchk")
        A("L_s_uok:")
        for j in range(4):
            A(f"v_perm_b32 v{84+2*j}, v{UR+4*j+2}, v{UR+4*j}, s12")
            A(f"v_perm_b32 v{85+2*j}, v{UR+4*j+2}, v{UR+4*j}, s13")
            A(f"ds_write_b32 v5, v{84+2*j} offset:{256*j}")
            A(f"ds_write_b32 v5, v{85+2*j} offset:{256*j+4608}")
        A(f"s_mul_i32 s11, s52, 4608\ns_lshl_b32 s12, s53, 8\ns_sub_u32 s11, s11, s12\ns_add_u32 s11, s11, {L_UL+448-192}")
        A("v_lshlrev_b32 v3, 4, v2\nv_lshl_add_u32 v3, v1, 5, v3\nv_add_u32 v4, s11, v3")
        A("v_sub_u32 v3, 2031, v1\nv_lshrrev_b32 v3, 1, v3\nv_lshl_add_u32 v3, v2, 2, v3\nv_lshlrev_b32 v3, 2, v3")
        A("v_and_b32 v6, 1, v1\nv_xor_b32 v6, 1, v6\nv_mul_u32_u24 v6, 4160, v6\nv_add_u32 v3, v3, v6")
        A(f"s_mul_i32 s11, s52, 8320\ns_sub_u32 s11, s11, s12\ns_add_u32 s11, s11, {L_R1-192-512}")
        A("v_add_u32 v24, s11, v3")
        for sp in range(1, 4): A(f"v_subrev_u32 v{24+sp}, {1024*sp}, v24")
        self.dstamp()
        self.sbar(2)
        self.dstamp()
        CA = 28; KR = 60; UB = [92, 124]
        lg = Cnt(A, "lgkmcnt", 15)
        def uread(rr, T):
            lg.op(f"ds_read_b128 {v(UB[rr&1]+4*T,4)}, v4 offset:{64*(3-rr)+512*T}", ("u", rr, T))
        def kread(rr, sg):
            o = 16*(3-rr) + (128 if (sg & 1) == 0 else 0)
            lg.op(f"ds_read2_b32 {v(KR+4*sg,2)}, v{24+(sg>>1)} offset0:{o} offset1:{o+1}", None)
            lg.op(f"ds_read2_b32 {v(KR+4*sg+2,2)}, v{24+(sg>>1)} offset0:{o+2} offset1:{o+3}", ("k", rr, sg))
        kread(0, 0)
        for T in range(8): uread(0, T)
        kread(0, 1); kread(0, 2)
        for rr in range(4):
            pend = []
            for sg in range(8):
                if rr == 0 and sg + 3 < 8: pend.append(("k", 0, sg+3))
                if rr < 3 and sg >= 1: pend.append(("k", rr+1, sg-1))
                if rr > 0 and sg == 0: pend.append(("k", rr, 7))
                if rr < 3 and sg == 1: pend += [("u", rr+1, T) for T in range(4)]
                if rr < 3 and sg == 2: pend += [("u", rr+1, T) for T in range(4, 8)]
                lg.need(("k", rr, sg))
                for T in range(8 - sg):
                    lg.need(("u", rr, T))
                    first = (rr == 0 and sg == 0)
                    acc = v(CA+4*(sg+T), 4)
                    A(f"v_mfma_f32_16x16x32_bf16 {acc}, {v(UB[rr&1]+4*T,4)}, {v(KR+4*sg,4)}, {'0' if first else acc}")
                    if pend:
                        if len(lg.q) > 13:
                            A("s_waitcnt lgkmcnt(8)"); lg.q = lg.q[-8:]
                        x = pend.pop(0)
                        (kread if x[0] == "k" else uread)(x[1], x[2])
            while pend:
                if len(lg.q) > 13:
                    A("s_waitcnt lgkmcnt(8)"); lg.q = lg.q[-8:]
                x = pend.pop(0)
                (kread if x[0] == "k" else uread)(x[1], x[2])
        self.dstamp()
        A(f"s_lshl_b32 s11, s60, 12\ns_add_u32 s12, s11, {L_KP}\nv_add_u32 v4, s12, v13")
        A(f"s_xor_b32 s11, s11, 8192\ns_add_u32 s12, s11, {L_KP}\nv_add_u32 v5, s12, v13")
        A("s_cmp_eq_u32 s53, 0\ns_cbranch_scc1 L_s_x0")
        A("s_nop 4")
        for q in range(4): A(f"ds_write_b128 v4, {v(CA+4*q,4)} offset:{q*1024}")
        A("s_nop 1")
        for q in range(16): A(f"v_mov_b32 v{CA+q}, v{CA+16+q}")
        A("s_branch L_s_xj")
        A("L_s_x0:")
        A("s_nop 4")
        for q in range(4): A(f"ds_write_b128 v4, {v(CA+16+4*q,4)} offset:{q*1024}")
        A("L_s_xj:")
        self.sbar(3)
        for q in range(4): A(f"ds_read_b128 {v(60+4*q,4)}, v5 offset:{q*1024}")
        for i in range(8): A(f"v_mov_b32 v{77+2*i}, s61")
        A(f"s_lshl_b32 s10, s2, 14\ns_lshl_b32 s11, s52, 13\ns_add_u32 s10, s10, s11\ns_lshl_b32 s11, s53, 12\ns_add_u32 s10, s10, s11\ns_add_u32 s10, s10, {WS_A:#x}")
        for q in range(4):
            A(f"s_waitcnt lgkmcnt({3-q})")
            A(f"v_pk_add_f32 {v(60+4*q,2)}, {v(60+4*q,2)}, {v(CA+4*q,2)}")
            A(f"v_pk_add_f32 {v(62+4*q,2)}, {v(62+4*q,2)}, {v(CA+4*q+2,2)}")
            A(f"v_cvt_pk_bf16_f32 v{76+4*q}, v{60+4*q}, v{61+4*q}")
            A(f"v_cvt_pk_bf16_f32 v{78+4*q}, v{62+4*q}, v{63+4*q}")
            A(f"buffer_store_dwordx4 {v(76+4*q,4)}, v13, s[72:75], s10 offen offset:{q*1024} sc1")
        self.dstamp()
        A("s_lshl_b32 s10, s55, 19\ns_lshl_b32 s11, s60, 17\ns_add_u32 s10, s10, s11\ns_lshl_b32 s11, s59, 8\ns_add_u32 s10, s10, s11")
        A(f"s_add_u32 s10, s10, {WS_A:#x}")
        for i in range(1, 4): A(f"s_add_u32 s{10+i}, s10, {8192*i}")
        A("v_lshlrev_b32 v3, 15, v2\nv_lshl_add_u32 v4, v1, 4, v3")
        A(f"s_lshl_b32 s14, s59, 9\ns_add_u32 s14, s14, {WS_G:#x}")
        A("v_lshlrev_b32 v5, 3, v1")
        A("s_lshl_b32 s15, s55, 7\ns_lshl_b32 s9, s60, 5\ns_add_u32 s15, s15, s9\nv_lshl_add_u32 v6, v2, 3, s15")
        A("global_load_dwordx2 v[56:57], v6, s[42:43]")
        A(f"s_lshl_b32 s15, s53, 13\ns_lshl_b32 s9, s52, 11\ns_add_u32 s15, s15, s9\ns_add_u32 s15, s15, {L_R1}")
        A("v_lshrrev_b32 v3, 1, v2\nv_lshlrev_b32 v3, 10, v3\nv_lshl_add_u32 v3, v1, 4, v3\nv_and_b32 v6, 1, v2\nv_lshl_add_u32 v3, v6, 9, v3\nv_add_u32 v11, s15, v3")
        A(f"v_lshlrev_b32 v12, 2, v1\nv_add_u32 v12, {L_OMG}, v12")
        A("v_mov_b32 v6, s61")
        A("s_sleep 16")
        A("L_s_aget:")
        for i in range(4): A(f"buffer_load_dwordx4 {v(32+4*i,4)}, v4, s[72:75], s{10+i} offen sc1")
        for r in range(4): A(f"buffer_load_dwordx2 {v(48+2*r,2)}, v5, s[72:75], s14 offen offset:{128*r} sc1")
        A("s_waitcnt vmcnt(0)")
        for i in range(4): A(f"v_bitop3_b32 v{60+i}, v{33+4*i}, v{35+4*i}, v6 bitop3:0x7e")
        A("v_bitop3_b32 v64, v49, v51, v6 bitop3:0x7e\nv_bitop3_b32 v65, v53, v55, v6 bitop3:0x7e")
        A("v_or3_b32 v60, v60, v61, v62\nv_or3_b32 v63, v63, v64, v65\nv_or_b32 v60, v60, v63\nv_cmp_ne_u32 vcc, 0, v60")
        A("s_cbranch_vccz L_s_aok")
        self.guard()
        A("s_sleep 8\ns_branch L_s_aget")
        A("L_s_aok:")
        self.dstamp()
        A("v_lshlrev_b32 v60, 16, v56\nv_and_b32 v61, 0xffff0000, v56\nv_lshlrev_b32 v62, 16, v57\nv_and_b32 v63, 0xffff0000, v57")
        for r in range(4):
            for i in range(4):
                src = 32 + 4*i + (2 if r >= 2 else 0)
                d = 64 + 4*r + i
                A(f"v_lshlrev_b32 v{d}, 16, v{src}" if (r & 1) == 0 else f"v_and_b32 v{d}, 0xffff0000, v{src}")
                A(f"v_sub_f32 v{d}, v{d}, v{60+i}")
                A(f"v_fma_f32 v{d}, v{48+2*r}, v{d}, v{60+i}")
            A(f"ds_write_b128 v11, {v(64+4*r,4)} offset:{(r>>1)*4096+(r&1)*256}")
            A(f"v_sub_f32 v{80+r}, 1.0, v{48+2*r}")
            A(f"ds_write_b32 v12, v{80+r} offset:{64*r}")
        A("s_waitcnt lgkmcnt(0) vmcnt(0)")
        self.dstamp()
        self.dump_ts()
        A("s_endpgm")

    def build(self):
        self.prologue(); self.loader(); self.helper(); self.ssm(); self.consumer()
        self.A("L_end:\ns_endpgm\nL_codeend:")
        return single(self.A.text(), 256, 64*NWAVES, LDS_TOTAL, 168, 102, 168)

if __name__ == "__main__":
    args = sys.argv[2:]
    open(sys.argv[1], "w").write(G(ts="ts" in args, opts=args).build())
```

```python
import sys, struct
from asmgen import *

WS_EPOCH = 0
WS_G     = 0x1000
WS_H     = 0x200000
WS_U2    = 0x800000
WS_A     = 0xC00000
WS_END   = 0x1000000
WS_TS    = 0x2000000
EPC = 0x9E3779B9
TM  = 0x69969669

SLOT = 28672; XB = 16384
S0   = 4*SLOT
L_R1 = S0
L_UL = S0 + 18432
L_KP = L_UL + 9216
L_OMG = L_R1 + 16384
L_RED = 3*SLOT
L_OT  = 3*SLOT + 16384
L_FLAG = 163328
F_PROG, F_SB, F_TAG, F_FREE = 0, 4, 8, 16
LDS_TOTAL = 163840
assert L_KP + 16384 <= L_FLAG
NWAVES = 10
LOG2E = 0x3fb8aa3b
INV2PI = 0x3e22f983

class Cnt:
    def __init__(self, A, name, mx): self.A = A; self.q = []; self.name = name; self.mx = mx; self.issued = set()
    def op(self, text, tag=None):
        self.A(text); self.q.append(tag); self.issued.add(tag)
        assert len(self.q) <= self.mx, "counter overflow"
    def need(self, tag):
        assert tag in self.issued, tag
        idx = [i for i, t in enumerate(self.q) if t == tag]
        if not idx: return
        n = len(self.q) - 1 - idx[-1]
        self.A(f"s_waitcnt {self.name}({min(n, self.mx)})")
        self.q = self.q[idx[-1]+1:]
    def drain(self):
        self.A(f"s_waitcnt {self.name}(0)"); self.q = []

class G:
    def __init__(self, ts=False, opts=()):
        self.A = Asm(); self.ts = ts; self.opts = set(opts)
    def dstamp(self):
        if not self.ts: return
        self.A("s_memtime s[64:65]\ns_waitcnt lgkmcnt(0)\ns_sub_u32 s64, s64, s70\ns_mov_b32 m0, s67\ns_add_u32 s67, s67, 1\nv_writelane_b32 v167, s64, m0")
    def dump_ts(self):
        A = self.A
        if not self.ts: return
        A("s_waitcnt lgkmcnt(0) vmcnt(0)")
        A("s_mov_b64 exec, -1")
        A("s_memrealtime s[64:65]")
        srd(A, 4, 50, 1 << 28)
        A("s_waitcnt lgkmcnt(0)")
        A("v_writelane_b32 v167, s68, 63")
        A("v_writelane_b32 v167, s64, 62")
        A("s_lshl_b32 s8, s2, 4\ns_add_u32 s8, s8, s3\ns_lshl_b32 s8, s8, 8")
        A(f"s_add_u32 s8, s8, {WS_TS:#x}")
        A("v_mbcnt_lo_u32_b32 v16, -1, 0\nv_mbcnt_hi_u32_b32 v16, -1, v16\nv_lshlrev_b32 v16, 2, v16")
        A("buffer_store_dword v167, v16, s[4:7], s8 offen")
        A("s_waitcnt vmcnt(0)")

    def guard(self):
        self.A("s_add_u32 s66, s66, 0x1000\ns_cbranch_scc1 L_end")

    def lds_wait_ge(self, vaddr, off, target, vt, st, name, sleep=1):
        A = self.A; L = A.lab(name); L2 = A.lab(name)
        if sleep:
            A(f"s_branch {L2}")
            A(f"{L}:")
            A(f"s_sleep {sleep}")
            A(f"{L2}:")
        else:
            A(f"{L}:")
        A(f"ds_read_b32 v{vt}, v{vaddr} offset:{off}")
        self.guard()
        A("s_waitcnt lgkmcnt(0)")
        A(f"v_readfirstlane_b32 s{st}, v{vt}")
        A(f"s_cmp_lt_u32 s{st}, {target}")
        A(f"s_cbranch_scc1 {L}")

    def get_tag(self, vaddr, vt, sdst, name):
        A = self.A; L = A.lab(name)
        A(f"{L}:")
        A(f"ds_read_b64 v[{vt}:{vt+1}], v{vaddr} offset:{F_TAG}")
        self.guard()
        A("s_waitcnt lgkmcnt(0)")
        A(f"v_readfirstlane_b32 s9, v{vt+1}")
        A(f"v_readfirstlane_b32 s{sdst}, v{vt}")
        A(f"s_cmp_eq_u32 s9, 0\ns_cbranch_scc1 {L}")

    def map_mn(self):
        A = self.A
        A("s_bfe_u32 s56, s2, 0x20001\ns_lshl_b32 s56, s56, 2\ns_bfe_u32 s54, s2, 0x20003\ns_add_u32 s56, s56, s54")
        A("s_and_b32 s57, s2, 1\ns_lshl_b32 s57, s57, 3\ns_lshr_b32 s55, s2, 5\ns_add_u32 s57, s57, s55")
    def map_tb(self):
        A = self.A
        A("s_and_b32 s59, s2, 7\ns_lshl_b32 s59, s59, 2\ns_bfe_u32 s54, s2, 0x20003\ns_add_u32 s59, s59, s54\ns_lshr_b32 s55, s2, 5")

    def prologue(self):
        A = self.A
        if self.ts:
            A("s_memtime s[70:71]\ns_memrealtime s[68:69]\ns_mov_b32 s67, 0\nv_mov_b32 v167, 0")
        if "dbgts" in self.opts: A("s_memrealtime s[68:69]")
        A("s_load_dwordx16 s[16:31], s[0:1], 0")
        A("s_load_dwordx16 s[32:47], s[0:1], 64")
        A("s_load_dwordx4 s[48:51], s[0:1], 128")
        A("v_lshrrev_b32 v2, 6, v0")
        A("s_cmp_ge_u32 s2, 256\ns_cbranch_scc1 L_end")
        A("v_readfirstlane_b32 s3, v2")
        A("v_and_b32 v0, 63, v0")
        A("s_mov_b32 s66, 0")
        A("s_cmp_ge_u32 s3, 6\ns_cbranch_scc1 L_ssm")
        A("s_cmp_ge_u32 s3, 2\ns_cbranch_scc1 L_cons")
        A("s_cmp_eq_u32 s3, 1\ns_cbranch_scc1 L_help")

    def free_issue(self):
        self.A(f"ds_read_b128 v[20:23], v8 offset:{F_FREE}")
    def free_check(self, target, name):
        A = self.A; L = A.lab(name); L2 = A.lab(name); L3 = A.lab(name)
        A(f"{L}:")
        A("s_waitcnt lgkmcnt(0)")
        A("v_min3_u32 v20, v20, v21, v22\nv_min_u32 v20, v20, v23\ns_nop 0\nv_readfirstlane_b32 s9, v20")
        A(f"s_cmp_ge_u32 s9, {target}\ns_cbranch_scc1 {L2}")
        A("s_sleep 1")
        self.guard()
        self.free_issue()
        A(f"s_branch {L}")
        A(f"{L2}:")
    def throttle(self):
        t = [o[3:] for o in self.opts if o.startswith("thr")]
        if t: self.A(f"s_waitcnt vmcnt({t[0]})")
    def signal(self, vm):
        A = self.A
        A("v_add_u32 v9, 1, v9")
        A(f"s_waitcnt vmcnt({vm})")
        A(f"ds_write_b32 v8, v9 offset:{F_PROG}")

    def loader(self):
        A = self.A
        A("s_getpc_b64 s[8:9]")
        A("L_pc0:")
        A("s_bfe_u32 s10, s2, 0x20003\ns_lshl_b32 s10, s10, 13")
        A("v_lshl_add_u32 v1, v0, 7, s10")
        A(f"v_min_u32 v1, L_codeend-L_pc0-4, v1")
        A("global_load_dword v14, v1, s[8:9]")
        A("s_setprio %s" % ([o[5:] for o in self.opts if o.startswith("lprio")] + ["0"])[0])
        A(f"v_mov_b32 v8, {L_FLAG}\nv_lshl_add_u32 v3, v0, 3, v8\nv_mov_b64 v[4:5], 0\nds_write_b64 v3, v[4:5]")
        self.map_mn()
        A("v_lshrrev_b32 v1, 3, v0")
        A("v_lshrrev_b32 v2, 4, v0")
        A("v_and_b32 v3, 7, v0")
        A("v_xor_b32 v2, v3, v2")
        A("v_lshlrev_b32 v1, 10, v1")
        A("v_lshl_add_u32 v4, v2, 4, v1")
        A("v_xor_b32 v5, 64, v4")
        A(f"v_add_u32 v5, {7*1024}, v5")
        A(f"v_add_u32 v6, {14*1024}, v4")
        A(f"v_add_u32 v7, {14*1024}, v5")
        for j in range(3):
            A(f"v_add_u32 v1, {64*j}, v0")
            A(f"v_mul_u32_u24 v2, 0xaaab, v1\nv_lshrrev_b32 v{24+j}, 19, v2")
            A(f"v_mul_u32_u24 v2, {2752-192}, v{24+j}")
            A(f"v_lshl_add_u32 v{10+j}, v0, 4, v2")
        A("s_lshl_b32 s10, s56, 17")
        A("s_mul_i32 s58, s57, 192")
        A("s_mov_b32 s11, 0")
        A("s_mov_b32 s12, 0")
        A("s_mov_b32 s13, 0")
        A("v_mov_b32 v9, 0")
        A("s_mov_b32 s6, 0x200000\ns_mov_b32 s7, 0x20000")
        A(f"s_mov_b32 s62, {512*2752}\ns_mov_b32 s63, 0x20000")
        A(f"s_mov_b32 s52, {64*2752}\ns_mov_b32 s53, {16*2752}")
        A("s_waitcnt lgkmcnt(0)")
        A("s_mov_b32 s4, s16\ns_and_b32 s5, s17, 0xffff")
        A("s_mov_b32 s60, s36\ns_and_b32 s61, s37, 0xffff")
        A("s_cmp_eq_u32 s57, 15\ns_cbranch_scc1 L_ld_gate")
        A("L_ld_go:")
        self.dstamp()
        if "nol" in self.opts:
            A("s_barrier\nv_mov_b32 v9, 100"); A(f"ds_write_b32 v8, v9 offset:{F_PROG}")
            self.dump_ts(); A("s_endpgm")
        A("L_ld_loop:")
        A("s_lshl_b32 s14, s11, 7\ns_add_u32 s14, s14, s10")
        A("s_cmp_ge_u32 s12, 2\ns_cselect_b32 s15, 1, 0")
        for g in range(4):
            A(f"s_add_u32 m0, s13, {g*4096}")
            if g: A(f"s_add_u32 s14, s14, 32768")
            else: A(f"s_mul_i32 s59, s11, s52")
            self.throttle()
            for j in range(4):
                A(f"buffer_load_dwordx4 v{4+j}, s[4:7], s14 offen offset:{j*1024} lds")
            if g == 2:
                A("v_add_u32 v9, s15, v9")
                A(f"s_waitcnt vmcnt(40)")
                A(f"ds_write_b32 v8, v9 offset:{F_PROG}")
        A("s_add_u32 s59, s59, s58")
        for g in range(4):
            A(f"s_add_u32 m0, s13, {XB+g*3072}")
            if g: A(f"s_add_u32 s59, s59, s53")
            else: A("s_add_u32 s11, s11, 1")
            if g == 3: self.free_issue()
            self.throttle()
            for j in range(3):
                A(f"buffer_load_dwordx4 v{10+j}, s[60:63], s59 offen offset:{j*1024} lds")
        self.dstamp()
        A("s_cmp_lg_u32 s12, 0\ns_cbranch_scc1 L_ld_nb\ns_barrier\nL_ld_nb:")
        A(f"s_add_u32 s13, s13, {SLOT}\ns_cmp_eq_u32 s13, {4*SLOT}\ns_cselect_b32 s13, 0, s13")
        A("s_add_u32 s12, s12, 1")
        A("s_cmp_lt_u32 s12, 4\ns_cbranch_scc1 L_ld_loop")
        A("s_sub_u32 s15, s12, 3")
        self.free_check("s15", "L_ld_f")
        A("s_cmp_lt_u32 s12, 8\ns_cbranch_scc1 L_ld_loop")
        A("v_lshrrev_b32 v1, 3, v0\nv_lshlrev_b32 v1, 10, v1")
        A("v_bfe_u32 v2, v0, 4, 1\nv_lshlrev_b32 v2, 2, v2\nv_and_b32 v3, 7, v0\nv_xor_b32 v2, v2, v3")
        A("v_lshl_add_u32 v16, v2, 4, v1")
        for j in range(1, 4): A(f"v_add_u32 v{16+j}, {7*1024*j}, v16")
        srd(A, 4, 40, 1376*1024)
        A("s_lshl_b32 s10, s55, 7")
        A(f"s_add_u32 s14, s10, {1344*1024}")
        A(f"s_mov_b32 m0, 24576")
        A("s_nop 0")
        for j in range(4):
            A(f"buffer_load_dwordx4 v{16+j}, s[4:7], s14 offen offset:{j*1024} lds")
        def block(sig_at=None, sig_vm=None):
            A("s_mov_b32 s14, s10")
            for g in range(6):
                A(f"s_add_u32 m0, s13, {g*4096}")
                if g == 3: A(f"s_add_u32 s14, s10, {7*96*1024}")
                elif g: A("s_add_u32 s14, s14, 32768")
                else: A("s_nop 0")
                if g == 5: self.free_issue()
                self.throttle()
                for j in range(4):
                    A(f"buffer_load_dwordx4 v{16+j}, s[4:7], s14 offen offset:{j*1024} lds")
                if g == sig_at: self.signal(sig_vm)
            A(f"s_add_u32 s10, s10, {96*1024}")
            A(f"s_add_u32 s13, s13, {SLOT}\ns_cmp_eq_u32 s13, {4*SLOT}\ns_cselect_b32 s13, 0, s13")
            A("s_add_u32 s12, s12, 1")
        A("L_ld_w2a:")
        block(2, 36)
        self.dstamp()
        A("s_cmp_eq_u32 s12, 12\ns_cbranch_scc1 L_ld_w2a_done")
        A("s_sub_u32 s15, s12, 3")
        self.free_check("s15", "L_ld_g")
        A("s_branch L_ld_w2a")
        A("L_ld_w2a_done:")
        self.signal(24); self.signal(0)
        self.dstamp()
        A("L_ld_w2b:")
        A("s_sub_u32 s15, s12, 3")
        self.free_check("s15", "L_ld_h")
        A("s_cmp_lg_u32 s12, 14\ns_cbranch_scc1 L_ld_w2c")
        self.signal(24)
        A("L_ld_w2c:")
        block()
        self.dstamp()
        A("s_cmp_lt_u32 s12, 15\ns_cbranch_scc1 L_ld_w2b")
        self.signal(24); self.signal(0)
        self.dstamp()
        A("s_waitcnt lgkmcnt(0)")
        self.dump_ts()
        A("s_endpgm")
        A("L_ld_gate:")
        A("s_sub_u32 s60, s44, 2048\ns_subb_u32 s61, s45, 0\ns_and_b32 s61, s61, 0xffff")
        A("s_mov_b32 s62, 3072\ns_mov_b32 s52, 128\ns_mov_b32 s53, 32\ns_mov_b32 s58, 0")
        A("v_mov_b32 v15, 0x80000000")
        for j in range(3):
            A(f"v_add_u32 v1, {64*j}, v0")
            A(f"v_mul_u32_u24 v2, 12, v{24+j}\nv_sub_u32 v1, v1, v2")
            A(f"v_and_b32 v2, 1, v{24+j}")
            A("v_cmp_eq_u32 vcc, v1, v2")
            A(f"v_and_b32 v2, 14, v{24+j}\nv_lshlrev_b32 v2, 1, v2\nv_add_u32 v2, {2048-1024*j}, v2")
            A(f"v_cndmask_b32 v{10+j}, v15, v2, vcc")
        A("s_branch L_ld_go")

    def helper(self):
        A = self.A
        A("L_help:")
        A("v_lshlrev_b32 v1, 7, v0")
        A("v_min_u32 v1, 5376, v1")
        A(f"v_mov_b32 v8, {L_FLAG}")
        A("s_mul_i32 s10, s2, 5504")
        A("s_waitcnt lgkmcnt(0)")
        A(f"s_load_dword s61, s[50:51], {WS_EPOCH}")
        if "notouch" not in self.opts:
            A("s_add_u32 s12, s36, s10\ns_addc_u32 s13, s37, 0")
            A("global_load_dword v6, v1, s[12:13]")
        A("s_barrier")
        A("s_waitcnt lgkmcnt(0)")
        A(f"s_add_u32 s61, s61, {EPC:#x}")
        A("v_mov_b32 v2, s61\nv_mov_b32 v3, 1")
        A(f"ds_write_b64 v8, v[2:3] offset:{F_TAG}")
        self.dstamp()
        if "notouch" not in self.opts:
            self.lds_wait_ge(8, F_PROG, 1, 4, 9, "L_h_p", sleep=4)
            A("s_add_u32 s12, s40, s10\ns_addc_u32 s13, s41, 0")
            A("global_load_dword v7, v1, s[12:13]")
        if "nos" in self.opts: A("s_branch L_h_done")
        A("s_cmp_lg_u32 s2, 0\ns_cbranch_scc1 L_h_done")
        srd(A, 4, 50, WS_END)
        self.lds_wait_ge(8, F_PROG, 8, 4, 9, "L_h_q", sleep=8)
        A("v_lshrrev_b32 v4, 5, v0\nv_lshlrev_b32 v4, 19, v4\nv_and_b32 v5, 31, v0\nv_lshl_add_u32 v4, v5, 9, v4")
        A(f"v_add_u32 v4, {WS_U2+4:#x}, v4")
        A("L_h_bump:")
        for i in range(4):
            A(f"s_mov_b32 s11, {i<<20:#x}")
            A(f"buffer_load_dword v{10+i}, v4, s[4:7], s11 offen sc1")
        A("s_waitcnt vmcnt(0)")
        for i in range(4): A(f"v_xor_b32 v{10+i}, s61, v{10+i}")
        A("v_or3_b32 v10, v10, v11, v12\nv_or_b32 v10, v10, v13")
        A("v_cmp_ne_u32 vcc, 0, v10")
        A("s_cbranch_vccz L_h_ok")
        self.guard()
        A("s_sleep 16\ns_branch L_h_bump")
        A("L_h_ok:")
        A(f"v_mov_b32 v4, {WS_EPOCH}")
        A("s_mov_b64 exec, 1")
        A("buffer_store_dword v2, v4, s[4:7], 0 offen sc1")
        A("L_h_done:")
        A("s_waitcnt vmcnt(0) lgkmcnt(0)")
        self.dstamp()
        self.dump_ts()
        A("s_endpgm")

    def consumer(self):
        A = self.A
        ACC = 16
        FR = [64, 80, 96, 112]
        A("L_cons:")
        A("s_setprio %s" % ([o[5:] for o in self.opts if o.startswith("cprio")] + ["2"])[0])
        self.map_mn()
        A("s_sub_u32 s60, s3, 2")
        A(f"v_mov_b32 v9, {L_FLAG}")
        A("s_lshl_b32 s10, s60, 2")
        A("v_add_u32 v11, s10, v9")
        A("v_mov_b32 v12, 0")
        A("v_and_b32 v1, 31, v0")
        A("v_lshrrev_b32 v2, 5, v0")
        A("v_bfe_u32 v3, v0, 1, 3")
        A("v_xor_b32 v3, v3, v2")
        A("v_lshlrev_b32 v3, 4, v3")
        A("v_lshl_add_u32 v3, v1, 7, v3")
        A("s_lshl_b32 s10, s60, 12")
        A("v_add_u32 v4, s10, v3")
        for st in range(1, 4): A(f"v_xor_b32 v{4+st}, {st*32}, v4")
        A("v_bfe_u32 v3, v0, 2, 2")
        A("v_lshl_add_u32 v3, v2, 3, v3")
        A("v_mul_u32_u24 v3, 192, v3")
        A("v_bfe_u32 v8, v0, 4, 1\nv_lshl_add_u32 v3, v8, 5, v3")
        A("v_and_b32 v8, 3, v0\nv_lshl_add_u32 v3, v8, 3, v3")
        A(f"v_add_u32 v8, {XB}, v3")
        A("s_mul_i32 s10, s57, 192")
        A("v_lshlrev_b32 v13, 1, v1")
        A("v_lshl_or_b32 v13, v2, 16, v13")
        B0 = FR[3]
        for fb in range(3):
            for q in range(1, 4): A(f"v_mov_b32 v{B0+4+4*fb+q}, 0")
        A(f"v_mov_b32 v{B0}, 0x3f80")
        for q in range(1, 4): A(f"v_mov_b32 v{B0+q}, 0")
        A("s_waitcnt lgkmcnt(0)")
        srd(A, 4, 38, 1376*2)
        for fb in range(3):
            A(f"buffer_load_ushort v{B0+4+4*fb}, v13, s[4:7], s10 offen offset:{64*fb}")
        A("s_barrier")
        self.dstamp()
        if "noc" in self.opts:
            A("v_mov_b32 v12, 100"); A(f"ds_write_b32 v11, v12 offset:{F_FREE}")
            self.dump_ts(); A("s_endpgm")
        self.get_tag(9, 14, 61, "L_c_tag")
        A(f"s_and_b32 s62, s61, 1\ns_sub_u32 s62, 0, s62\ns_xor_b32 s62, s62, {TM:#x}")
        A("v_lshrrev_b32 v15, v1, s62\nv_and_b32 v15, 1, v15\nv_sub_u32 v15, 0, v15\nv_and_b32 v15, 0x80008000, v15")
        srd(A, 72, 50, WS_END)
        A("s_mov_b32 s63, 0x7fff7fff")
        A("v_lshlrev_b32 v13, 4, v0")
        A("s_waitcnt vmcnt(0)")
        for fb in range(3):
            A(f"v_mfma_f32_32x32x16_bf16 {v(ACC+16*fb,16)}, {v(B0+4+4*fb,4)}, {v(B0,4)}, 0")
        def reads(st):
            buf = FR[st]
            out = [f"ds_read_b128 {v(buf,4)}, v{4+st}"]
            for fb in range(3):
                for h in range(2):
                    out.append(f"ds_read_b64_tr_b16 {v(buf+4+4*fb+2*h,2)}, v8 offset:{st*3072+h*768+fb*64}")
            return out
        def mfmas(st):
            buf = FR[st]
            return [f"v_mfma_f32_32x32x16_bf16 {v(ACC+16*fb,16)}, {v(buf+4+4*fb,4)}, {v(buf,4)}, {v(ACC+16*fb,16)}" for fb in range(3)]
        FLAGRD = f"ds_read_b32 v10, v9 offset:{F_PROG}"
        FREEWR = f"ds_write_b32 v11, v12 offset:{F_FREE}"
        A("s_mov_b32 s13, 0")
        A(f"s_mov_b32 s11, {SLOT}")
        A("s_mov_b32 s12, 1")
        A("L_c_poll:")
        self.lds_wait_ge(9, F_PROG, "s12", 10, 14, "L_c_p0", sleep=0)
        for r in reads(0): A(r)
        for r in reads(1): A(r)
        A(".p2align 3")
        A("L_c_loop:")
        ms, rs = mfmas(0), reads(2)
        A("s_waitcnt lgkmcnt(7)")
        A(ms[0]); A(FLAGRD); A(rs[0]); A(rs[1]); A("s_add_u32 s12, s12, 1")
        A(ms[1]); A(rs[2]); A(rs[3]); A(rs[4]); A("s_cmp_eq_u32 s12, 9\ns_cselect_b32 s12, -1, s12")
        A(ms[2]); A(rs[5]); A(rs[6]); A(f"s_add_u32 s13, s13, 1\ns_cmp_eq_u32 s13, 4")
        ms, rs = mfmas(1), reads(3)
        A("s_waitcnt lgkmcnt(7)")
        A(ms[0]); A(f"s_cselect_b32 s15, {-3*SLOT & 0xffffffff:#x}, s11\ns_cselect_b32 s13, 0, s13"); A(rs[0]); A(rs[1]); A(rs[2])
        A(ms[1]); A("v_readfirstlane_b32 s14, v10"); A(rs[3]); A(rs[4]); A(rs[5]); A(rs[6])
        A(ms[2])
        for q in (0, 1, 4): A(f"v_add_u32 v{4+q}, s15, v{4+q}")
        A("s_cmp_lt_u32 s14, s12\ns_cbranch_scc1 L_c_slow")
        ms, rs = mfmas(2), reads(0)
        A("s_waitcnt lgkmcnt(7)")
        A(ms[0]); A(rs[0]); A(rs[1]); A("v_add_u32 v6, s15, v6\nv_add_u32 v7, s15, v7")
        A(ms[1]); A(rs[2]); A(rs[3]); A(rs[4]); A("v_add_u32 v12, 1, v12")
        A(ms[2]); A(rs[5]); A(rs[6])
        ms, rs = mfmas(3), reads(1)
        A("s_waitcnt lgkmcnt(7)")
        A(ms[0]); A(FREEWR); A(rs[0]); A(rs[1])
        A(ms[1]); A(rs[2]); A(rs[3]); A(rs[4])
        A(ms[2]); A(rs[5]); A(rs[6])
        A("s_branch L_c_loop")
        A("L_c_slow:")
        A("s_waitcnt lgkmcnt(7)")
        ms = mfmas(2)
        A(ms[0]); A("v_add_u32 v6, s15, v6\nv_add_u32 v7, s15, v7\nv_add_u32 v12, 1, v12"); A(ms[1]); A(ms[2])
        A("s_waitcnt lgkmcnt(0)")
        A(FREEWR)
        for m in mfmas(3): A(m)
        A("s_cmp_lg_u32 s12, -1\ns_cbranch_scc1 L_c_poll")
        self.dstamp()
        A("s_lshl_b32 s10, s56, 2\ns_add_u32 s10, s10, s60")
        A("s_cmp_eq_u32 s57, 15\ns_cbranch_scc1 L_c_gate")
        A("s_mul_i32 s10, s10, 86\ns_mul_i32 s11, s57, 6\ns_add_u32 s10, s10, s11\ns_lshl_b32 s10, s10, 10")
        A(f"s_add_u32 s10, s10, {WS_H:#x}")
        A("s_add_u32 s11, s10, 4096")
        A("s_nop 4")
        for fb in range(3):
            if fb == 1: A("s_cmp_eq_u32 s57, 14\ns_cbranch_scc1 L_c_e1done")
            for hs in range(2):
                o = 64 + 8*fb + 4*hs
                for q in range(4):
                    r0 = ACC + 16*fb + 8*hs + 2*q
                    A(f"v_max_f32 v{r0}, 0, v{r0}\nv_max_f32 v{r0+1}, 0, v{r0+1}")
                    A(f"v_mul_f32 v{r0}, v{r0}, v{r0}\nv_mul_f32 v{r0+1}, v{r0+1}, v{r0+1}")
                for q in range(4):
                    r0 = ACC + 16*fb + 8*hs + 2*q
                    A(f"v_cvt_pk_bf16_f32 v{o+q}, v{r0}, v{r0+1}")
                for q in range(4):
                    A(f"v_and_or_b32 v{o+q}, v{o+q}, s63, v15")
                idx = 2*fb + hs
                A(f"buffer_store_dwordx4 {v(o,4)}, v13, s[72:75], s{10 if idx < 4 else 11} offen offset:{(idx&3)*1024} sc1")
        A("s_branch L_c_e1done")
        A("L_c_gate:")
        A("s_nop 7")
        A(f"v_add_f32 v64, v{ACC}, v{ACC+5}")
        A(f"v_mul_f32 v64, {LOG2E ^ 0x80000000:#x}, v64")
        A("v_exp_f32 v64, v64")
        A("v_mov_b32 v65, s61")
        A("v_add_f32 v64, 1.0, v64")
        A("v_rcp_f32 v64, v64")
        A("s_lshl_b32 s10, s10, 8")
        A(f"s_add_u32 s10, s10, {WS_G:#x}")
        A("v_lshlrev_b32 v66, 3, v0")
        A("s_mov_b32 exec_hi, 0")
        A("buffer_store_dwordx2 v[64:65], v66, s[72:75], s10 offen sc1")
        A("s_mov_b64 exec, -1")
        A("L_c_e1done:")
        self.dstamp()
        if "nos" in self.opts or "g1only" in self.opts:
            A("v_mov_b32 v12, 100"); A(f"ds_write_b32 v11, v12 offset:{F_FREE}")
            self.dump_ts(); A("s_endpgm")
        self.gemm2()

    def gemm2(self):
        A = self.A
        AC2 = 16
        HB = [48, 72, 96]; HX = 120
        WF = [124, 132, 140, 148]
        BAD, T0, T1 = 156, 157, 158
        self.map_tb()
        A("s_and_b32 s52, s60, 1\ns_lshr_b32 s53, s60, 1")
        A("v_lshrrev_b32 v2, 5, v0\nv_bfe_u32 v3, v0, 2, 2\nv_lshl_add_u32 v2, v2, 2, v3\nv_lshlrev_b32 v2, 7, v2")
        A("v_bfe_u32 v3, v0, 3, 1\nv_lshl_add_u32 v2, v3, 6, v2")
        A("v_bfe_u32 v3, v0, 4, 1\nv_lshl_add_u32 v2, v3, 5, v2")
        A("v_and_b32 v3, 3, v0\nv_lshl_add_u32 v2, v3, 3, v2")
        A("s_mul_i32 s10, s53, 12288")
        A("v_add_u32 v4, s10, v2\nv_xor_b32 v5, 64, v4")
        A(f"v_add_u32 v6, {2*SLOT}, v4\nv_add_u32 v7, {2*SLOT}, v5")
        A("s_lshl_b32 s10, s53, 11")
        A("v_add_u32 v159, s10, v2\nv_xor_b32 v160, 64, v159")
        A("s_lshl_b32 s10, s59, 1\ns_add_u32 s10, s10, s52\ns_mul_i32 s10, s10, 86")
        A("s_add_u32 s11, s10, s53\ns_add_u32 s11, s11, 84\ns_lshl_b32 s11, s11, 10")
        A(f"s_add_u32 s76, s11, {WS_H:#x}")
        A("s_mul_i32 s11, s53, 42\ns_add_u32 s10, s10, s11\ns_lshl_b32 s10, s10, 10")
        A(f"s_add_u32 s77, s10, {WS_H:#x}")
        A("s_mov_b32 s62, 0x80008000")
        for g in range(7):
            A(f"s_add_u32 s{78+2*g}, s77, {g*6144}\ns_add_u32 s{79+2*g}, s77, {g*6144+4096}")
        def hload(g, s_):
            if g == 7: return f"buffer_load_dwordx4 {v(HX,4)}, v13, s[72:75], s76 offen sc1"
            return f"buffer_load_dwordx4 {v(HB[g%3]+4*s_,4)}, v13, s[72:75], s{78+2*g+(s_>>2)} offen offset:{(s_&3)*1024} sc1"
        def hreg(g, s_): return HX if g == 7 else HB[g%3] + 4*s_
        def chk(r, first):
            o = [f"v_xor_b32 v{r+i}, v{r+i}, v15" for i in range(4)]
            o.append(f"v_or_b32 v{BAD}, v{r}, v{r+1}" if first else f"v_or3_b32 v{BAD}, v{BAD}, v{r}, v{r+1}")
            o.append(f"v_or3_b32 v{BAD}, v{BAD}, v{r+2}, v{r+3}")
            return o
        A("s_mov_b64 exec, 0xff")
        A("L_g2_probe:")
        A(hload(0, 5))
        self.guard()
        A("s_waitcnt vmcnt(0)")
        for x in chk(hreg(0,5), True): A(x)
        A(f"v_and_b32 v{BAD}, s62, v{BAD}\nv_cmp_ne_u32 vcc, 0, v{BAD}")
        A("s_cbranch_vccz L_g2_go\ns_sleep 2\ns_branch L_g2_probe")
        A("L_g2_go:")
        A("s_mov_b64 exec, -1")
        self.dstamp()
        vm = Cnt(A, "vmcnt", 63); lg = Cnt(A, "lgkmcnt", 15)
        for g in range(3):
            for s_ in range(6): vm.op(hload(g, s_), (g, s_))
        slow = []
        def verdict(g):
            Ls, Lr = A.lab("L_g2_slow"), A.lab("L_g2_ret")
            A(f"v_and_b32 v{BAD}, s62, v{BAD}\nv_cmp_ne_u32 vcc, 0, v{BAD}")
            A(f"s_cbranch_vccnz {Ls}")
            A(f"{Lr}:")
            slow.append((Ls, Lr, g))
        def wreads(q):
            buf = WF[q & 3]; o = []
            for db in range(2):
                for h in range(2):
                    if q == 42: a, off = 159+db, 24576 + h*1024
                    else:
                        b, s_ = divmod(q, 6); sl = b & 3
                        a = 4 + db + (2 if sl >= 2 else 0); off = (sl & 1)*SLOT + s_*2048 + h*1024
                    o.append(f"ds_read_b64_tr_b16 {v(buf+4*db+2*h,2)}, v{a} offset:{off}")
            return o
        progs = []
        def progcheck(b):
            Lp, Lr = A.lab("L_g2_pp"), A.lab("L_g2_pr")
            A(f"s_cmp_lt_u32 s14, {9+b}\ns_cbranch_scc1 {Lp}")
            A(f"{Lr}:")
            progs.append((Lp, Lr, 9+b))
        self.lds_wait_ge(9, F_PROG, 9, 10, 14, "L_g2_p0", sleep=0)
        for q in range(3):
            for r in wreads(q): lg.op(r, ("w", q))
        for s_ in range(6):
            vm.need((0, s_))
            for x in chk(hreg(0, s_), s_ == 0): A(x)
        verdict(0)
        self.dstamp()
        for q in range(43):
            g, s_ = divmod(q, 6)
            buf = WF[q & 3]; hr = hreg(g, s_)
            cin = [v(AC2+16*db,16) if q else "0" for db in range(2)]
            lg.need(("w", q))
            A(f"v_mfma_f32_32x32x16_bf16 {v(AC2,16)}, {v(buf,4)}, {v(hr,4)}, {cin[0]}")
            if s_ == 5 and g < 7:
                A("v_add_u32 v12, 1, v12")
                lg.op(f"ds_write_b32 v11, v12 offset:{F_FREE}")
            if s_ == 0 and g < 6: lg.op(f"ds_read_b32 v10, v9 offset:{F_PROG}", "flag")
            if q == 36: lg.op(f"ds_read_b128 v[162:165], v9 offset:{F_FREE}", "free")
            if s_ == 2 and g < 6:
                lg.need("flag"); A("v_readfirstlane_b32 s14, v10")
            if s_ == 3 and g < 6: progcheck(g+1)
            rs = wreads(q+3) if q+3 <= 42 else []
            for r in rs[:2]: lg.op(r, ("w", q+3))
            pq = q - 1
            if pq >= 0:
                pg, ps = divmod(pq, 6)
                if pg + 3 <= 6: vm.op(hload(pg+3, ps), (pg+3, ps))
                if pq == 23: vm.op(hload(7, 0), (7, 0))
            A(f"v_mfma_f32_32x32x16_bf16 {v(AC2+16,16)}, {v(buf+4,4)}, {v(hr,4)}, {cin[1]}")
            for r in rs[2:]: lg.op(r, ("w", q+3))
            if g + 1 <= 6:
                vm.need((g+1, s_))
                for x in chk(hreg(g+1, s_), s_ == 0): A(x)
                if g+1 == 6 and s_ == 5:
                    vm.need((7, 0))
                    for x in chk(HX, False): A(x)
                if s_ == 5: verdict(g+1)
        self.dstamp()
        lg.need("free")
        A("v_min3_u32 v162, v162, v163, v164\nv_min_u32 v162, v162, v165\ns_nop 0\nv_readfirstlane_b32 s14, v162")
        A("s_cmp_ge_u32 s14, 12\ns_cbranch_scc1 L_g2_red")
        A("L_g2_fw:")
        self.guard()
        A(f"ds_read_b128 v[162:165], v9 offset:{F_FREE}\ns_waitcnt lgkmcnt(0)")
        A("v_min3_u32 v162, v162, v163, v164\nv_min_u32 v162, v162, v165\ns_nop 0\nv_readfirstlane_b32 s14, v162")
        A("s_cmp_lt_u32 s14, 12\ns_cbranch_scc1 L_g2_fw")
        A("L_g2_red:")
        A("s_lshl_b32 s10, s60, 12")
        A(f"s_add_u32 s11, s10, {L_RED}\nv_add_u32 v4, s11, v13")
        A(f"s_xor_b32 s11, s10, 8192\ns_add_u32 s11, s11, {L_RED}\nv_add_u32 v5, s11, v13")
        A(f"s_add_u32 s11, s10, {L_R1}\nv_add_u32 v6, s11, v13")
        A(f"s_lshl_b32 s11, s52, 7\ns_add_u32 s11, s11, {L_OMG}\nv_lshl_add_u32 v7, v1, 2, s11")
        A("s_cmp_eq_u32 s53, 0\ns_cbranch_scc1 L_g2_k0")
        A("s_nop 7")
        for q in range(4): A(f"ds_write_b128 v4, {v(AC2+4*q,4)} offset:{q*1024}")
        A("s_nop 1")
        for q in range(16): A(f"v_mov_b32 v{AC2+q}, v{AC2+16+q}")
        A("s_branch L_g2_kj")
        A("L_g2_k0:")
        A("s_nop 7")
        for q in range(4): A(f"ds_write_b128 v4, {v(AC2+16+4*q,4)} offset:{q*1024}")
        A("L_g2_kj:")
        A("s_waitcnt lgkmcnt(0)")
        A("s_barrier")
        self.dstamp()
        A("ds_read_b32 v8, v7")
        for q in range(4): A(f"ds_read_b128 {v(48+4*q,4)}, v5 offset:{q*1024}")
        for q in range(4): A(f"ds_read_b128 {v(64+4*q,4)}, v6 offset:{q*1024}")
        A("s_mul_i32 s10, s60, 2560")
        A(f"s_add_u32 s10, s10, {L_OT}")
        A("v_mul_u32_u24 v2, 80, v1\nv_lshrrev_b32 v3, 5, v0\nv_lshl_add_u32 v2, v3, 3, v2\nv_add_u32 v2, s10, v2")
        A("v_lshrrev_b32 v3, 2, v0\nv_mul_u32_u24 v4, 80, v3\nv_and_b32 v5, 3, v0\nv_lshl_add_u32 v4, v5, 4, v4\nv_add_u32 v4, s10, v4")
        A("v_lshlrev_b32 v3, 10, v3\nv_lshl_add_u32 v3, v5, 4, v3")
        srd(A, 4, 46, 2048*1024)
        A("s_lshl_b32 s10, s59, 1\ns_add_u32 s10, s10, s52\ns_lshl_b32 s10, s10, 15")
        A("s_lshl_b32 s11, s55, 7\ns_add_u32 s10, s10, s11\ns_lshl_b32 s11, s53, 6\ns_add_u32 s10, s10, s11")
        A("s_add_u32 s11, s10, 16384")
        for q in range(4):
            A(f"s_waitcnt lgkmcnt({7-q})")
            for r in range(0, 4, 2):
                A(f"v_pk_add_f32 {v(AC2+4*q+r,2)}, {v(AC2+4*q+r,2)}, {v(48+4*q+r,2)}")
        for q in range(4):
            A(f"s_waitcnt lgkmcnt(3)")
            for r in range(4):
                A(f"v_fma_f32 v{64+4*q+r}, v{AC2+4*q+r}, v8, v{64+4*q+r}")
            A(f"v_cvt_pk_bf16_f32 v{80+2*q}, v{64+4*q}, v{64+4*q+1}")
            A(f"v_cvt_pk_bf16_f32 v{81+2*q}, v{64+4*q+2}, v{64+4*q+3}")
            A(f"ds_write_b64 v2, {v(80+2*q,2)} offset:{16*q}")
        A("ds_read_b128 v[88:91], v4\nds_read_b128 v[92:95], v4 offset:1280")
        A("s_waitcnt lgkmcnt(1)")
        A("buffer_store_dwordx4 v[88:91], v3, s[4:7], s10 offen sc1")
        A("s_waitcnt lgkmcnt(0)")
        A("buffer_store_dwordx4 v[92:95], v3, s[4:7], s11 offen sc1")
        self.dstamp()
        if self.ts:
            A("s_waitcnt vmcnt(0)")
            self.dstamp()
        if "dbgts" in self.opts:
            A("s_waitcnt vmcnt(0)\ns_memrealtime s[64:65]\ns_waitcnt lgkmcnt(0)")
            A("s_not_b32 s68, s68\nv_mov_b32 v2, s68\nv_mov_b32 v3, s64\nv_mov_b32 v4, 0\ns_mov_b64 exec, 1")
            A("s_cmp_lg_u32 s60, 0\ns_cbranch_scc1 L_end")
            A("global_atomic_umax v4, v2, s[48:49]\nglobal_atomic_umax v4, v3, s[48:49] offset:4")
        self.dump_ts()
        A("s_endpgm")
        for Ls, Lr, g in slow:
            A(f"{Ls}:")
            A("s_sleep 2")
            self.guard()
            fr = [(g, s_) for s_ in range(6)] + ([(7, 0)] if g == 6 else [])
            for x in fr: A(hload(*x))
            A("s_waitcnt vmcnt(0)")
            for i, x in enumerate(fr):
                for y in chk(hreg(*x), i == 0): A(y)
            A(f"v_and_b32 v{BAD}, s62, v{BAD}\nv_cmp_ne_u32 vcc, 0, v{BAD}")
            A(f"s_cbranch_vccnz {Ls}\ns_branch {Lr}")
        for Lp, Lr, n in progs:
            A(f"{Lp}:")
            self.guard()
            A(f"ds_read_b32 v10, v9 offset:{F_PROG}\ns_waitcnt lgkmcnt(0)\nv_readfirstlane_b32 s14, v10")
            A(f"s_cmp_lt_u32 s14, {n}\ns_cbranch_scc1 {Lp}\ns_branch {Lr}")

    def sbar(self, k):
        A = self.A
        A("s_waitcnt lgkmcnt(0)")
        A("s_mov_b64 exec, 1")
        A(f"ds_add_u32 v9, v8 offset:{F_SB}")
        A("s_mov_b64 exec, -1")
        self.lds_wait_ge(9, F_SB, 4*k, 10, 9, "L_sb", sleep=0)

    def ssm(self):
        A = self.A
        A("L_ssm:")
        for o in self.opts:
            if o.startswith("sprio"): A(f"s_setprio {o[5:]}")
        A("s_sub_u32 s60, s3, 6")
        A("s_and_b32 s52, s60, 1\ns_lshr_b32 s53, s60, 1")
        self.map_tb()
        A("s_lshl_b32 s10, s59, 16\ns_lshl_b32 s11, s60, 14\ns_add_u32 s10, s10, s11\ns_lshl_b32 s11, s55, 7\ns_add_u32 s10, s10, s11")
        A("v_lshrrev_b32 v1, 3, v0\nv_lshrrev_b32 v2, 4, v0\nv_and_b32 v3, 7, v0\nv_xor_b32 v2, v3, v2\nv_lshlrev_b32 v1, 10, v1\nv_lshl_add_u32 v4, v2, 4, v1")
        A(f"v_xor_b32 v5, 64, v4\nv_add_u32 v5, {7*1024}, v5")
        A(f"s_lshl_b32 s11, s60, 11\ns_add_u32 s58, s11, {L_UL}\ns_mov_b32 m0, s58")
        A("s_lshl_b32 s12, s2, 9\ns_lshl_b32 s13, s52, 8\ns_add_u32 s12, s12, s13\ns_lshl_b32 s13, s53, 7\ns_add_u32 s12, s12, s13")
        A("v_lshl_add_u32 v6, v0, 1, s12")
        A("s_lshl_b32 s13, s2, 2")
        A("s_waitcnt lgkmcnt(0)")
        srd(A, 4, 16, 2048*1024)
        A("buffer_load_dwordx4 v4, s[4:7], s10 offen lds")
        A("buffer_load_dwordx4 v5, s[4:7], s10 offen offset:1024 lds")
        for i in range(6):
            A(f"global_load_ushort v{16+i}, v6, s[{18+2*i}:{19+2*i}]")
        A("s_load_dword s14, s[30:31], s13")
        A("s_load_dword s15, s[32:33], s13")
        A("s_barrier")
        self.dstamp()
        if "nos" in self.opts:
            self.dump_ts(); A("s_endpgm")
        A(f"v_mov_b32 v9, {L_FLAG}\nv_mov_b32 v8, 1")
        srd(A, 72, 50, WS_END)
        GA = 100
        A("s_lshl_b32 s11, s53, 10\ns_sub_u32 s11, 2047, s11")
        A("v_lshlrev_b32 v1, 4, v0\nv_sub_u32 v1, s11, v1")
        A(f"s_mul_i32 s11, s52, 5632\ns_add_u32 s11, s11, {L_KP}")
        for i in range(17):
            A(f"v_subrev_u32 v2, {i}, v1")
            A("v_cvt_f32_i32 v3, v2")
            A("v_cvt_pk_bf16_f32 v3, v3, v3")
            A("v_min_i32 v7, 128, v2")
            A("v_and_b32 v3, 0xffff, v3")
            A("v_subrev_u32 v3, 0x4280, v3")
            A("v_max_i32 v3, v3, v7")
            if i == 16: A("v_min_u32 v3, 700, v3")
            A(f"v_lshl_add_u32 v{GA+i}, v3, 2, s11")
        A("v_and_b32 v1, 7, v0\nv_lshrrev_b32 v2, 5, v0\nv_xor_b32 v2, v2, v1\nv_lshlrev_b32 v2, 4, v2\nv_lshl_add_u32 v2, v1, 8, v2")
        A("v_bfe_u32 v3, v0, 3, 2\nv_lshl_add_u32 v2, v3, 2, v2\nv_add_u32 v24, s58, v2")
        for it_ in range(1, 4): A(f"v_xor_b32 v{24+it_}, {32*it_}, v24")
        A("v_lshrrev_b32 v2, 3, v0\nv_lshlrev_b32 v2, 14, v2\nv_lshl_add_u32 v28, v1, 4, v2")
        A("s_lshl_b32 s10, s55, 19\ns_lshl_b32 s11, s59, 9\ns_add_u32 s10, s10, s11\ns_lshl_b32 s11, s60, 7\ns_add_u32 s10, s10, s11")
        A(f"s_add_u32 s10, s10, {WS_U2:#x}")
        self.get_tag(9, 10, 61, "L_s_tag")
        for i in range(8): A(f"v_mov_b32 v{33+2*i}, s61")
        A("s_waitcnt vmcnt(6)")
        self.dstamp()
        for it_ in range(4):
            A(f"ds_read_b32 v{32+4*it_}, v{24+it_}\nds_read_b32 v{34+4*it_}, v{24+it_} offset:128")
        for it_ in range(4):
            A(f"s_waitcnt lgkmcnt({6-2*it_})")
            A(f"buffer_store_dwordx4 {v(32+4*it_,4)}, v28, s[72:75], s10 offen sc1")
            if it_ < 3: A("s_add_u32 s10, s10, 0x20000")
        A("s_lshl_b32 s11, s52, 4\ns_lshr_b32 s14, s14, s11\ns_lshl_b32 s14, s14, 16\ns_lshr_b32 s15, s15, s11\ns_lshl_b32 s15, s15, 16")
        A(f"v_mov_b32 v1, {LOG2E:#x}\nv_mul_f32 v2, s14, v1\nv_exp_f32 v2, v2")
        A("s_waitcnt vmcnt(4)")
        self.dstamp()
        A("v_cvt_pk_bf16_f32 v2, v2, v2\nv_lshlrev_b32 v2, 16, v2")
        for i in range(6): A(f"v_lshlrev_b32 v{16+i}, 16, v{16+i}")
        A("v_mul_f32 v16, v2, v16\nv_mul_f32 v17, v2, v17\nv_mul_f32 v18, v2, v18\nv_mul_f32 v19, v2, v19")
        A("v_mul_f32 v16, v1, v16")
        A(f"v_mul_f32 v17, {INV2PI:#x}, v17")
        def cmul(d, a, b):
            if "pk" in self.opts:
                A(f"v_pk_mul_f32 {v(d,2)}, {v(a,2)}, {v(b,2)} op_sel:[0,0] op_sel_hi:[1,0]")
                A(f"v_pk_fma_f32 {v(d,2)}, {v(a,2)}, {v(b,2)}, {v(d,2)} op_sel:[1,1,0] op_sel_hi:[0,1,1] neg_lo:[1,0,0]")
            else:
                A(f"v_mul_f32 v{d}, v{a}, v{b}\nv_mul_f32 v{d+1}, v{a+1}, v{b}")
                A(f"v_fma_f32 v{d}, -v{a+1}, v{b+1}, v{d}\nv_fmac_f32 v{d+1}, v{a}, v{b+1}")
        def f2h(x): return struct.unpack("<I", struct.pack("<f", x))[0]
        def direct(d, L):
            if L != 1:
                A(f"v_mul_f32 v3, {f2h(float(L)):#x}, v16\nv_mul_f32 v7, {f2h(float(L)):#x}, v17")
                A("v_exp_f32 v3, v3\nv_fract_f32 v7, v7")
            else:
                A("v_exp_f32 v3, v16\nv_fract_f32 v7, v17")
            A(f"v_cos_f32 v{d}, v7\nv_sin_f32 v{d+1}, v7")
            A(f"v_mul_f32 v{d}, v3, v{d}\nv_mul_f32 v{d+1}, v3, v{d+1}")
        A(f"s_mul_i32 s11, s60, 4608\ns_add_u32 s11, s11, {L_R1}")
        A("v_lshl_add_u32 v4, v0, 4, s11")
        A("v_lshrrev_b32 v5, 2, v0\nv_lshlrev_b32 v5, 4, v5\nv_and_b32 v6, 1, v0\nv_lshl_add_u32 v5, v6, 3, v5")
        A("v_bfe_u32 v6, v0, 1, 1\nv_mul_u32_u24 v6, 1152, v6\nv_add3_u32 v5, v5, v6, s11")
        E1, E16, E256 = 22, 24, 26
        PA, PB = 28, 30
        EP = 32
        BF, AF = 60, 76
        KA = 120
        PK = 148
        ONE = 92
        prev = [None]
        def put(row, src, neg=False):
            if row & 1 == 0:
                prev[0] = src; return
            p = prev[0]; n = '-' if neg else ''
            A(f"v_cvt_pk_bf16_f32 v{PK+(row>>1)}, v{p}, v{src}")
            A(f"v_cvt_pk_bf16_f32 v{PK+8+(row>>1)}, {n}v{p+1}, {n}v{src+1}")
        def flush(hh):
            A(f"ds_write_b128 v4, {v(PK+4*hh,4)} offset:{1152*hh}")
            A(f"ds_write_b128 v4, {v(PK+8+4*hh,4)} offset:{1152*(2+hh)}")
        def frags(dst):
            for q in range(4):
                for h in range(2): A(f"ds_read_b64_tr_b16 {v(dst+4*q+2*h,2)}, v5 offset:{256*q+2304*h}")
        def kmf(k):
            A("s_waitcnt lgkmcnt(0)")
            for q in range(4):
                A(f"v_mfma_f32_16x16x32_bf16 {v(KA+4*k,4)}, {v(AF+4*q,4)}, {v(BF+4*q,4)}, {v(KA+4*k,4) if q else '0'}")
        direct(E16, 16)
        cmul(PA, 20, 18)
        cur, nxt = PA, PB
        for b in range(16):
            put(b, cur, neg=True)
            if b < 15:
                cmul(nxt, cur, E16); cur, nxt = nxt, cur
            if b == 7: flush(0)
        direct(E1, 1)
        flush(1)
        frags(BF)
        A(f"v_mov_b32 v{ONE}, 1.0\nv_mov_b32 v{ONE+1}, 0")
        put(0, ONE); put(1, E1)
        def ep(k): return E1 if k == 1 else EP + 2*(k-2)
        for k in range(2, 16):
            cmul(ep(k), ep(k-1), E1); put(k, ep(k))
            if k == 8: flush(0)
        direct(E256, 256)
        flush(1)
        frags(AF)
        put(0, E256)
        for r in range(1, 8):
            cmul(PA if r & 1 else PB, E256, ep(2*r)); put(r, PA if r & 1 else PB)
        BS = [96, 98]
        cmul(BS[0], E256, E256)
        kmf(0)
        flush(0)
        for a_ in range(2):
            base = BS[a_]
            put(8+4*a_, base)
            for r in range(1, 4):
                cmul(PA if r & 1 else PB, base, ep(4*r)); put(8+4*a_+r, PA if r & 1 else PB)
            cmul(BS[1-a_], base, E256)
        flush(1)
        frags(AF)
        cur = 0
        for a_ in range(4):
            put(2*a_, BS[cur])
            cmul(PA, BS[cur], ep(8)); put(2*a_+1, PA)
            cmul(BS[1-cur], BS[cur], E256); cur = 1-cur
        put(8, BS[cur]); put(9, BS[cur])
        kmf(1)
        flush(0); flush(1)
        frags(AF)
        A(f"s_mul_i32 s11, s52, 5632\ns_mul_i32 s12, s53, 2816\ns_add_u32 s11, s11, s12\ns_add_u32 s11, s11, {L_KP}")
        A("v_and_b32 v1, 15, v0\nv_lshrrev_b32 v2, 4, v0")
        A("v_lshlrev_b32 v3, 4, v2\nv_lshl_add_u32 v3, v1, 6, v3\nv_add_u32 v28, s11, v3")
        A("v_lshlrev_b32 v3, 4, v2\nv_lshl_add_u32 v3, v1, 5, v3\nv_add_u32 v3, 1024, v3")
        A("v_lshlrev_b32 v7, 8, v2\nv_lshl_add_u32 v7, v1, 4, v7\nv_add_u32 v7, 1024, v7")
        A("v_cmp_gt_u32 vcc, 2, v2")
        A("v_min_u32 v6, 2, v2\ns_nop 0")
        A("v_cndmask_b32 v3, v7, v3, vcc\nv_add_u32 v29, s11, v3")
        A("v_lshlrev_b32 v3, 8, v6\nv_lshl_add_u32 v3, v1, 3, v3\nv_add_u32 v3, 2048, v3\nv_add_u32 v30, s11, v3")
        kmf(2)
        A("s_cmp_eq_u32 s53, 0\ns_cselect_b32 s15, s15, 0")
        A("v_mov_b32 v6, 0\nv_mov_b32 v7, 0\nv_mov_b32 v31, s11")
        A("v_writelane_b32 v6, s15, 0")
        A(f"v_add_f32 v{KA}, v{KA}, v6")
        A(f"ds_write_b128 v28, {v(KA,4)}")
        A(f"ds_write_b128 v29, {v(KA+4,4)}")
        A("s_nop 3")
        A("s_mov_b32 exec_hi, 1")
        A(f"ds_write_b64 v30, {v(KA+8,2)}")
        A("s_mov_b32 exec_hi, 0")
        A(f"ds_write_b64 v30, {v(KA+10,2)} offset:128")
        A("s_mov_b64 exec, -1")
        A(f"ds_write_b32 v31, v7 offset:{700*4}")
        self.dstamp()
        A(f"s_lshl_b32 s10, s2, 14\ns_lshl_b32 s11, s60, 12\ns_add_u32 s10, s10, s11\ns_add_u32 s10, s10, {WS_U2:#x}")
        A("v_lshlrev_b32 v13, 4, v0")
        UR = 132
        def uloads():
            for j in range(4): A(f"buffer_load_dwordx4 {v(UR+4*j,4)}, v13, s[72:75], s10 offen offset:{j*1024} sc1")
        uloads()
        self.sbar(1)
        self.dstamp()
        for i in range(17):
            A(f"ds_read2st64_b32 {v(32+2*i,2)}, v{GA+i} offset0:0 offset1:11")
            if i == 13: A("s_waitcnt lgkmcnt(8)")
        A(f"s_mul_i32 s11, s52, 8320\ns_lshl_b32 s12, s53, 11\ns_add_u32 s12, s12, s11\ns_add_u32 s12, s12, {L_R1}")
        A("v_lshl_add_u32 v4, v0, 5, s12")
        A("s_waitcnt lgkmcnt(0)")
        for i in range(17): A(f"v_add_f32 v{32+2*i}, v{32+2*i}, v{33+2*i}")
        for i in range(8): A(f"v_cvt_pk_bf16_f32 v{68+i}, v{32+4*i}, v{34+4*i}")
        A("ds_write_b128 v4, v[68:71]\nds_write_b128 v4, v[72:75] offset:16")
        for i in range(8): A(f"v_cvt_pk_bf16_f32 v{76+i}, v{34+4*i}, v{36+4*i}")
        A("ds_write_b128 v4, v[76:79] offset:4160\nds_write_b128 v4, v[80:83] offset:4176")
        A(f"s_mul_i32 s12, s53, 4160\ns_add_u32 s12, s12, s11\ns_add_u32 s12, s12, {L_R1+4096}")
        A("v_and_b32 v5, 7, v0\nv_lshl_add_u32 v5, v5, 2, s12\nds_write_b32 v5, v7")
        A(f"s_mul_i32 s12, s52, 4608\ns_add_u32 s12, s12, {L_UL}")
        A("v_min_u32 v5, 59, v0\nv_lshl_add_u32 v5, v5, 3, s12\nv_mov_b32 v6, 0\nds_write_b64 v5, v[6:7]")
        A(f"s_lshl_b32 s12, s60, 10\ns_add_u32 s12, s12, {L_UL+480}")
        A("v_lshl_add_u32 v5, v0, 2, s12")
        A("s_mov_b32 s12, 0x05040100\ns_mov_b32 s13, 0x07060302")
        A("L_s_uchk:")
        A("s_waitcnt vmcnt(0)")
        A("v_mov_b32 v6, s61")
        for j in range(4): A(f"v_bitop3_b32 v{84+j}, v{UR+4*j+1}, v{UR+4*j+3}, v6 bitop3:0x7e")
        A("v_or3_b32 v84, v84, v85, v86\nv_or_b32 v84, v84, v87\nv_cmp_ne_u32 vcc, 0, v84")
        A("s_cbranch_vccz L_s_uok")
        A("s_sleep 8")
        self.guard()
        uloads()
        A("s_branch L_s_uchk")
        A("L_s_uok:")
        for j in range(4):
            A(f"v_perm_b32 v{84+2*j}, v{UR+4*j+2}, v{UR+4*j}, s12")
            A(f"v_perm_b32 v{85+2*j}, v{UR+4*j+2}, v{UR+4*j}, s13")
        for j in range(4):
            A(f"ds_write2st64_b32 v5, v{84+2*j}, v{85+2*j} offset0:{j} offset1:{j+18}")
        A(f"s_mul_i32 s11, s52, 4608\ns_lshl_b32 s12, s53, 8\ns_sub_u32 s11, s11, s12\ns_add_u32 s11, s11, {L_UL+448-192}")
        A("v_lshlrev_b32 v3, 4, v2\nv_lshl_add_u32 v3, v1, 5, v3\nv_add_u32 v4, s11, v3")
        A("v_sub_u32 v3, 2031, v1\nv_lshrrev_b32 v3, 1, v3\nv_lshl_add_u32 v3, v2, 2, v3\nv_lshlrev_b32 v3, 2, v3")
        A("v_and_b32 v6, 1, v1\nv_xor_b32 v6, 1, v6\nv_mul_u32_u24 v6, 4160, v6\nv_add_u32 v3, v3, v6")
        A(f"s_mul_i32 s11, s52, 8320\ns_sub_u32 s11, s11, s12\ns_add_u32 s11, s11, {L_R1-192-512}")
        A("v_add_u32 v24, s11, v3")
        for sp in range(1, 4): A(f"v_subrev_u32 v{24+sp}, {1024*sp}, v24")
        self.dstamp()
        self.sbar(2)
        self.dstamp()
        CA = 28; KR = 60; UB = [92, 124]
        lg = Cnt(A, "lgkmcnt", 15)
        def uread(rr, T):
            lg.op(f"ds_read_b128 {v(UB[rr&1]+4*T,4)}, v4 offset:{64*(3-rr)+512*T}", ("u", rr, T))
        def kread(rr, sg):
            o = 16*(3-rr) + (128 if (sg & 1) == 0 else 0)
            lg.op(f"ds_read2_b32 {v(KR+4*sg,2)}, v{24+(sg>>1)} offset0:{o} offset1:{o+1}", None)
            lg.op(f"ds_read2_b32 {v(KR+4*sg+2,2)}, v{24+(sg>>1)} offset0:{o+2} offset1:{o+3}", ("k", rr, sg))
        kread(0, 0)
        for T in range(8): uread(0, T)
        kread(0, 1); kread(0, 2)
        for rr in range(4):
            pend = []
            for sg in range(8):
                if rr == 0 and sg + 3 < 8: pend.append(("k", 0, sg+3))
                if rr < 3 and sg >= 1: pend.append(("k", rr+1, sg-1))
                if rr > 0 and sg == 0: pend.append(("k", rr, 7))
                if rr < 3 and sg == 1: pend += [("u", rr+1, T) for T in range(4)]
                if rr < 3 and sg == 2: pend += [("u", rr+1, T) for T in range(4, 8)]
                lg.need(("k", rr, sg))
                for T in range(8 - sg):
                    lg.need(("u", rr, T))
                    first = (rr == 0 and sg == 0)
                    acc = v(CA+4*(sg+T), 4)
                    A(f"v_mfma_f32_16x16x32_bf16 {acc}, {v(UB[rr&1]+4*T,4)}, {v(KR+4*sg,4)}, {'0' if first else acc}")
                    if pend:
                        if len(lg.q) > 13:
                            A("s_waitcnt lgkmcnt(8)"); lg.q = lg.q[-8:]
                        x = pend.pop(0)
                        (kread if x[0] == "k" else uread)(x[1], x[2])
            while pend:
                if len(lg.q) > 13:
                    A("s_waitcnt lgkmcnt(8)"); lg.q = lg.q[-8:]
                x = pend.pop(0)
                (kread if x[0] == "k" else uread)(x[1], x[2])
        self.dstamp()
        A(f"s_lshl_b32 s11, s60, 12\ns_add_u32 s12, s11, {L_KP}\nv_add_u32 v4, s12, v13")
        A(f"s_xor_b32 s11, s11, 8192\ns_add_u32 s12, s11, {L_KP}\nv_add_u32 v5, s12, v13")
        A("s_cmp_eq_u32 s53, 0\ns_cbranch_scc1 L_s_x0")
        A("s_nop 4")
        for q in range(4): A(f"ds_write_b128 v4, {v(CA+4*q,4)} offset:{q*1024}")
        A("s_nop 1")
        for q in range(16): A(f"v_mov_b32 v{CA+q}, v{CA+16+q}")
        A("s_branch L_s_xj")
        A("L_s_x0:")
        A("s_nop 4")
        for q in range(4): A(f"ds_write_b128 v4, {v(CA+16+4*q,4)} offset:{q*1024}")
        A("L_s_xj:")
        self.sbar(3)
        for q in range(4): A(f"ds_read_b128 {v(60+4*q,4)}, v5 offset:{q*1024}")
        for i in range(8): A(f"v_mov_b32 v{77+2*i}, s61")
        A(f"s_lshl_b32 s10, s2, 14\ns_lshl_b32 s11, s52, 13\ns_add_u32 s10, s10, s11\ns_lshl_b32 s11, s53, 12\ns_add_u32 s10, s10, s11\ns_add_u32 s10, s10, {WS_A:#x}")
        for q in range(4):
            A(f"s_waitcnt lgkmcnt({3-q})")
            for r in range(4): A(f"v_add_f32 v{60+4*q+r}, v{60+4*q+r}, v{CA+4*q+r}")
            A(f"v_cvt_pk_bf16_f32 v{76+4*q}, v{60+4*q}, v{61+4*q}")
            A(f"v_cvt_pk_bf16_f32 v{78+4*q}, v{62+4*q}, v{63+4*q}")
            A(f"buffer_store_dwordx4 {v(76+4*q,4)}, v13, s[72:75], s10 offen offset:{q*1024} sc1")
        self.dstamp()
        if "noc" in self.opts or "g1only" in self.opts:
            self.dump_ts(); A("s_endpgm")
        A("s_lshl_b32 s10, s55, 19\ns_lshl_b32 s11, s60, 17\ns_add_u32 s10, s10, s11\ns_lshl_b32 s11, s59, 8\ns_add_u32 s10, s10, s11")
        A(f"s_add_u32 s10, s10, {WS_A:#x}")
        for i in range(1, 4): A(f"s_add_u32 s{10+i}, s10, {8192*i}")
        A("v_lshlrev_b32 v3, 15, v2\nv_lshl_add_u32 v4, v1, 4, v3")
        A(f"s_lshl_b32 s14, s59, 9\ns_add_u32 s14, s14, {WS_G:#x}")
        A("v_lshlrev_b32 v5, 3, v1")
        A("s_lshl_b32 s15, s55, 7\ns_lshl_b32 s9, s60, 5\ns_add_u32 s15, s15, s9\nv_lshl_add_u32 v6, v2, 3, s15")
        A("global_load_dwordx2 v[56:57], v6, s[42:43]")
        A(f"s_lshl_b32 s15, s53, 13\ns_lshl_b32 s9, s52, 11\ns_add_u32 s15, s15, s9\ns_add_u32 s15, s15, {L_R1}")
        A("v_lshrrev_b32 v3, 1, v2\nv_lshlrev_b32 v3, 10, v3\nv_lshl_add_u32 v3, v1, 4, v3\nv_and_b32 v6, 1, v2\nv_lshl_add_u32 v3, v6, 9, v3\nv_add_u32 v11, s15, v3")
        A(f"v_lshlrev_b32 v12, 2, v0\nv_add_u32 v12, {L_OMG}, v12\nv_lshlrev_b32 v14, 3, v0")
        A("v_mov_b32 v6, s61")
        A("s_sleep 16")
        A("L_s_aget:")
        for i in range(4): A(f"buffer_load_dwordx4 {v(32+4*i,4)}, v4, s[72:75], s{10+i} offen sc1")
        for r in range(4): A(f"buffer_load_dwordx2 {v(48+2*r,2)}, v5, s[72:75], s14 offen offset:{128*r} sc1")
        A("buffer_load_dwordx2 v[58:59], v14, s[72:75], s14 offen sc1")
        A("s_waitcnt vmcnt(0)")
        for i in range(4): A(f"v_bitop3_b32 v{60+i}, v{33+4*i}, v{35+4*i}, v6 bitop3:0x7e")
        A("v_bitop3_b32 v64, v49, v51, v6 bitop3:0x7e\nv_bitop3_b32 v65, v53, v55, v6 bitop3:0x7e")
        A("v_or3_b32 v60, v60, v61, v62\nv_or3_b32 v63, v63, v64, v65\nv_xor_b32 v61, v59, v6\nv_or3_b32 v60, v60, v63, v61\nv_cmp_ne_u32 vcc, 0, v60")
        A("s_cbranch_vccz L_s_aok")
        self.guard()
        A("s_sleep 8\ns_branch L_s_aget")
        A("L_s_aok:")
        self.dstamp()
        A("v_lshlrev_b32 v60, 16, v56\nv_and_b32 v61, 0xffff0000, v56\nv_lshlrev_b32 v62, 16, v57\nv_and_b32 v63, 0xffff0000, v57")
        for r in range(4):
            for i in range(4):
                src = 32 + 4*i + (2 if r >= 2 else 0)
                d = 64 + 4*r + i
                A(f"v_lshlrev_b32 v{d}, 16, v{src}" if (r & 1) == 0 else f"v_and_b32 v{d}, 0xffff0000, v{src}")
                A(f"v_sub_f32 v{d}, v{d}, v{60+i}")
                A(f"v_fma_f32 v{d}, v{48+2*r}, v{d}, v{60+i}")
            A(f"ds_write_b128 v11, {v(64+4*r,4)} offset:{(r>>1)*4096+(r&1)*256}")
        A("v_sub_f32 v80, 1.0, v58\nds_write_b32 v12, v80")
        A("s_waitcnt lgkmcnt(0) vmcnt(0)")
        self.dstamp()
        self.dump_ts()
        A("s_endpgm")

    def build(self):
        self.prologue(); self.loader(); self.helper(); self.ssm(); self.consumer()
        self.A("L_end:\ns_endpgm\nL_codeend:")
        return single(self.A.text(), 256, 64*NWAVES, LDS_TOTAL, 168, 102, 168)

if __name__ == "__main__":
    args = sys.argv[2:]
    open(sys.argv[1], "w").write(G(ts="ts" in args, opts=args).build())
```

```python
import sys, struct
from asmgen import *

WS_EPOCH = 0
WS_G     = 0x1000
WS_FH    = 0x8000
WS_FG    = 0xC000
WS_FU    = 0xD000
WS_FA    = 0xF000
WS_H     = 0x80000
WS_UT    = 0x600000
WS_A     = 0x800000
WS_END   = 0xA00000
WS_TS    = 0x2000000
EPC = 0x9E3779B9
TM  = 0x69969669

KB = 1024
XS = [44*KB, 72*KB, 100*KB, 0, 16*KB]
WSL = [32*KB, 60*KB, 88*KB, 116*KB]
L_MINI = 0
BLK = [4*KB, 28*KB, 52*KB, 76*KB, 100*KB]
BLKNEED = [5, 6, 7, 7, 8]
L_TA = 0
L_TB = 116*KB
L_KF = 128*KB
L_OMG = L_KF + 16640
L_UL = 148*KB + 32
L_KP = 52*KB
L_PAR = 128*KB
L_ST  = 132*KB
L_RED = 52*KB
L_OT  = 68*KB
L_FLAG = 163840 - 128
F_SB, F_KS, F_TAG, F_PX, F_PW, F_UD, F_FREE = 0, 4, 8, 16, 20, 24, 32
LDS_TOTAL = 163840
assert L_KP + 4*2816 <= L_FLAG
NWAVES = 12
LOG2E = 0x3fb8aa3b
INV2PI = 0x3e22f983
def f2h(x): return struct.unpack("<I", struct.pack("<f", x))[0]
def pack8(vals): return sum((x//4096) << (8*i) for i, x in enumerate(vals))

class Cnt:
    def __init__(self, A, name, mx): self.A = A; self.q = []; self.name = name; self.mx = mx; self.issued = set()
    def op(self, text, tag=None):
        self.A(text); self.q.append(tag); self.issued.add(tag)
        assert len(self.q) <= self.mx, "counter overflow"
    def need(self, tag):
        assert tag in self.issued, tag
        idx = [i for i, t in enumerate(self.q) if t == tag]
        if not idx: return
        n = len(self.q) - 1 - idx[-1]
        self.A(f"s_waitcnt {self.name}({min(n, self.mx)})")
        self.q = self.q[idx[-1]+1:]

class G:
    def __init__(self, ts=False, opts=()):
        self.A = Asm(); self.ts = ts; self.opts = set(opts)
    def opt(self, name, default):
        return int(([o[len(name):] for o in self.opts if o.startswith(name) and o[len(name):].isdigit()] + [default])[0])
    def dstamp(self):
        if not self.ts: return
        self.A("s_memtime s[64:65]\ns_mov_b32 s95, m0\ns_waitcnt lgkmcnt(0)\ns_sub_u32 s64, s64, s70\ns_mov_b32 m0, s67\ns_add_u32 s67, s67, 1\nv_writelane_b32 v167, s64, m0\ns_mov_b32 m0, s95\ns_nop 0")
    def dump_ts(self):
        A = self.A
        if not self.ts: return
        A("s_waitcnt lgkmcnt(0) vmcnt(0)")
        A("s_mov_b64 exec, -1")
        A("s_memrealtime s[64:65]\ns_memtime s[10:11]")
        srd(A, 4, 50, 1 << 28)
        A("s_waitcnt lgkmcnt(0)")
        A("v_writelane_b32 v167, s70, 61\ns_sub_u32 s10, s10, s70\nv_writelane_b32 v167, s10, 60")
        A("v_writelane_b32 v167, s68, 63")
        A("v_writelane_b32 v167, s64, 62")
        A("s_lshl_b32 s8, s2, 4\ns_add_u32 s8, s8, s3\ns_lshl_b32 s8, s8, 8")
        A(f"s_add_u32 s8, s8, {WS_TS:#x}")
        A("v_mbcnt_lo_u32_b32 v16, -1, 0\nv_mbcnt_hi_u32_b32 v16, -1, v16\nv_lshlrev_b32 v16, 2, v16")
        A("buffer_store_dword v167, v16, s[4:7], s8 offen")
        A("s_waitcnt vmcnt(0)")
    def end(self):
        self.dump_ts(); self.A("s_endpgm")

    def guard(self):
        self.A("s_add_u32 s66, s66, 0x1000\ns_cbranch_scc1 L_end")

    def lds_wait_ge(self, vaddr, off, target, vt, name, sleep=0):
        A = self.A; L = A.lab(name); L2 = A.lab(name)
        if sleep:
            A(f"s_branch {L2}\n{L}:\ns_sleep {sleep}\n{L2}:")
        else:
            A(f"{L}:")
        A(f"ds_read_b32 v{vt}, v{vaddr} offset:{off}")
        self.guard()
        A("s_waitcnt lgkmcnt(0)")
        A(f"v_cmp_gt_u32 vcc, {target}, v{vt}")
        A(f"s_cbranch_vccnz {L}")

    def get_tag(self, vaddr, vt, sdst, name):
        A = self.A; L = A.lab(name)
        A(f"{L}:")
        A(f"ds_read_b64 v[{vt}:{vt+1}], v{vaddr} offset:{F_TAG}")
        self.guard()
        A("s_waitcnt lgkmcnt(0)")
        A(f"v_readfirstlane_b32 s9, v{vt+1}")
        A(f"v_readfirstlane_b32 s62, v{vt}")
        A(f"s_cmp_eq_u32 s9, 0\ns_cbranch_scc1 {L}")
        A("s_mov_b32 s63, s62")

    def flag_wait(self, n, soff, name, base=16, extra=None):
        A = self.A; L = A.lab(name)
        A(f"{L}:")
        A(f"s_load_dwordx{n} s[{base}:{base+n-1}], s[50:51], {soff} glc")
        m = n
        if extra:
            A(f"s_load_dwordx2 s[{base+n}:{base+n+1}], s[50:51], {extra} glc"); m = n + 2
        self.guard()
        A("s_waitcnt lgkmcnt(0)")
        for k in range(0, m, 2): A(f"s_xor_b64 s[{base+k}:{base+k+1}], s[{base+k}:{base+k+1}], s[62:63]")
        for k in range(2, m, 2): A(f"s_or_b64 s[{base}:{base+1}], s[{base}:{base+1}], s[{base+k}:{base+k+1}]")
        A(f"s_cbranch_scc1 {L}")
    def flag_set(self, soff):
        self.A(f"s_mov_b32 s9, s62\ns_atomic_swap s9, s[50:51], {soff}")

    def map_m(self):
        if "lmap" in self.opts:
            self.A("s_and_b32 s56, s2, 7\ns_lshl_b32 s56, s56, 1\ns_bfe_u32 s54, s2, 0x10003\ns_add_u32 s56, s56, s54"); return
        self.A("s_bfe_u32 s56, s2, 0x20001\ns_lshl_b32 s56, s56, 2\ns_bfe_u32 s54, s2, 0x20003\ns_add_u32 s56, s56, s54")
    def map_n(self):
        if "lmap" in self.opts:
            self.A("s_lshr_b32 s57, s2, 4"); return
        self.A("s_and_b32 s57, s2, 1\ns_lshl_b32 s57, s57, 3\ns_lshr_b32 s55, s2, 5\ns_add_u32 s57, s57, s55")
    def map_tb(self):
        self.A("s_and_b32 s59, s2, 7\ns_lshl_b32 s59, s59, 2\ns_bfe_u32 s54, s2, 0x20003\ns_add_u32 s59, s59, s54\ns_lshr_b32 s55, s2, 5")
    def tabptr(self):
        A = self.A; L = A.lab("L_tp")
        A(f"s_getpc_b64 s[92:93]\n{L}:")
        A(f"s_add_u32 s92, s92, L_tab-{L}\ns_addc_u32 s93, s93, 0")
    def dmaflag(self, vreg, m0src=None):
        A = self.A
        if m0src is not None: A(f"s_mov_b32 m0, {m0src}")
        A("s_mov_b64 exec, 1")
        A(f"global_load_lds_dword v{vreg}, s[92:93]")
        A("s_mov_b64 exec, -1")

    def prologue(self):
        A = self.A
        if "rt" in self.opts: A("s_memrealtime s[68:69]")
        if self.ts: A("s_memtime s[70:71]")
        A("s_load_dwordx16 s[16:31], s[0:1], 0")
        A("s_load_dwordx16 s[32:47], s[0:1], 64")
        A("s_load_dwordx4 s[48:51], s[0:1], 128")
        A("v_lshrrev_b32 v2, 6, v0")
        if self.ts or "rt" in self.opts: A("s_nop 0")
        else: A("s_cmpk_ge_u32 s2, 256\ns_cbranch_scc1 L_end")
        A("v_readfirstlane_b32 s3, v2")
        A("s_cmp_ge_u32 s3, 8\ns_cbranch_scc1 L_ssm")
        A("s_cmp_ge_u32 s3, 4\ns_cbranch_scc1 L_cons")
        A("s_cmp_lg_u32 s3, 0\ns_cbranch_scc1 L_disp")
        A("s_getpc_b64 s[8:9]")
        A("s_and_b32 s10, s2, 24\ns_lshl_b32 s10, s10, 10")
        A("v_lshl_add_u32 v1, v0, 7, s10")
        A("global_load_dword v14, v1, s[8:9]")
        A("s_lshl_b32 s10, s2, 9\ns_movk_i32 s11, 512")
        A("v_lshl_add_u32 v2, v0, 4, s10")
        A("s_lshl_b32 s10, s2, 13\nv_lshl_add_u32 v1, v0, 7, s10")
        A(f"s_mov_b32 m0, {L_PAR}")
        A("s_mov_b32 exec_lo, 0x07070707\ns_mov_b32 exec_hi, exec_lo")
        A("s_waitcnt lgkmcnt(0)")
        A("global_load_dword v15, v1, s[16:17]")
        A("s_mov_b32 exec_lo, -1\ns_mov_b32 exec_hi, 0")
        fill = ["s_movk_i32 s12, 2064", "s_mul_i32 s12, s12, s2", "v_lshl_add_u32 v3, v0, 6, s12", "global_load_dword v16, v3, s[36:37]", "s_nop 0", None]
        for i in range(6):
            A(f"global_load_lds_dwordx4 v2, s[{18+2*i}:{19+2*i}]")
            if fill[i]:
                A("s_add_u32 m0, m0, s11"); A(fill[i])
        A("s_mov_b64 exec, -1")
        A("L_disp:")
        A("v_and_b32 v0, 63, v0\ns_mov_b32 s66, 0")
        if self.ts: A("s_mov_b32 s67, 0\nv_mov_b32 v167, 0\ns_memrealtime s[68:69]")
        A("s_cmp_eq_u32 s3, 1\ns_cbranch_scc1 L_ldx")
        A("s_cmp_eq_u32 s3, 2\ns_cbranch_scc1 L_ldw")
    def entry(self):
        A = self.A
        A("v_and_b32 v0, 63, v0\ns_mov_b32 s66, 0")
        if self.ts: A("s_mov_b32 s67, 0\nv_mov_b32 v167, 0\ns_memrealtime s[68:69]")

    def free_issue(self):
        self.A(f"ds_read_b32 v20, v13")
    def free_check(self, target, name):
        A = self.A; L = A.lab(name); L2 = A.lab(name)
        chk = f"s_waitcnt lgkmcnt(0)\nv_cmp_gt_u32 vcc, {target}, v20\n"
        A(chk + f"s_cbranch_vccz {L2}")
        A(f"{L}:")
        self.free_issue()
        self.guard()
        A(chk + f"s_cbranch_vccnz {L}")
        A(f"{L2}:")
    def throttle(self):
        t = self.opt("thr", 0)
        if t: self.A(f"s_waitcnt vmcnt({t})")

    def loop_tail(self, p, depth):
        A = self.A
        A("v_add_u32 v9, 4, v9")
        self.dmaflag(9, "s94")
        if "lstamp" in self.opts: self.dstamp()
        A("s_add_u32 s12, s12, 1\ns_lshr_b64 s[96:97], s[96:97], 8")
        A(f"s_cmp_lg_u32 s12, {self.opt('lbar', 2)}\ns_cbranch_scc1 L_{p}_nb\ns_barrier")
        if "g2only" in self.opts: A("s_endpgm")
        A(f"L_{p}_nb:")
        A(f"s_cmp_lt_u32 s12, {depth}\ns_cbranch_scc1 L_{p}_loop")
        A(f"s_cmp_eq_u32 s12, 8\ns_cbranch_scc1 L_w2")
        A(f"s_sub_u32 s15, s12, {depth-1}")
        if "nofree" not in self.opts: self.free_check("s15", f"L_{p}_f")
        A(f"s_branch L_{p}_loop")

    def loader_x(self):
        A = self.A
        A("L_ldx:")
        self.tabptr()
        self.map_m()
        A("v_lshrrev_b32 v1, 3, v0\nv_lshrrev_b32 v2, 4, v0\nv_and_b32 v3, 7, v0\nv_xor_b32 v2, v3, v2\nv_lshlrev_b32 v1, 10, v1")
        A("v_lshl_add_u32 v4, v2, 4, v1")
        A("v_xor_b32 v5, 64, v4")
        A(f"v_add_u32 v5, {7*1024}, v5\nv_add_u32 v6, {14*1024}, v4\nv_add_u32 v7, {14*1024}, v5")
        A("s_lshl_b32 s10, s56, 17")
        xs = [XS[s % 5] for s in range(8)]
        A(f"s_mov_b32 s96, {pack8(xs[:4]):#x}\ns_mov_b32 s97, {pack8(xs[4:]):#x}")
        A(f"s_mov_b32 s94, {L_FLAG+F_PX}\ns_mov_b32 s12, 0\ns_mov_b32 s98, 0")
        A(f"v_mov_b32 v8, {L_FLAG}\nv_mov_b32 v9, 0\nv_and_b32 v13, 3, v0\nv_lshl_add_u32 v13, v13, 2, v8\nv_add_u32 v13, {F_FREE}, v13")
        A(f"s_mov_b64 exec, 1\nds_write_b32 v8, v9 offset:{F_PX}\ns_mov_b64 exec, -1")
        A("s_mov_b32 s6, 0x200000\ns_mov_b32 s7, 0x20000")
        A("s_waitcnt lgkmcnt(0)")
        A("s_mov_b32 s4, s16\ns_and_b32 s5, s17, 0xffff")
        self.dstamp()
        if self.opt("lprio", 0): A("s_setprio %d" % self.opt("lprio", 0))
        A("L_x_loop:")
        A("s_and_b32 s13, s96, 0xff\ns_lshl_b32 s13, s13, 12\ns_mov_b32 s14, s10")
        for g in range(4):
            A(f"s_add_u32 m0, s13, {g*4096}")
            if g: A(f"s_add_u32 s14, s14, 32768")
            else: A(f"s_add_u32 s10, s10, 128")
            if g == 3: self.free_issue()
            self.throttle()
            for j in range(4):
                A(f"buffer_load_dwordx4 v{4+j}, s[4:7], s14 offen offset:{j*1024} lds")
        self.loop_tail("x", 5)

    def loader_w(self):
        A = self.A
        A("L_ldw:")
        self.tabptr()
        A(f"v_mov_b32 v8, {L_FLAG}\nv_mov_b32 v9, 0\nv_lshl_add_u32 v3, v0, 2, v8")
        A("s_mov_b32 exec_hi, 0\ns_mov_b32 exec_lo, 0xffffffef\nds_write_b32 v3, v9\ns_mov_b64 exec, -1")
        self.map_n()
        for j in range(3):
            A(f"v_add_u32 v1, {64*j}, v0")
            A(f"v_mul_u32_u24 v2, 0xaaab, v1\nv_lshrrev_b32 v{24+j}, 19, v2")
            A(f"v_mul_u32_u24 v2, {2752-192}, v{24+j}")
            A(f"v_lshl_add_u32 v{4+j}, v0, 4, v2")
        A("s_mul_i32 s10, s57, 192")
        A(f"s_mov_b32 s53, {16*2752}")
        A(f"v_and_b32 v13, 3, v0\nv_lshl_add_u32 v13, v13, 2, v8\nv_add_u32 v13, {F_FREE}, v13")
        ws_ = [WSL[s % 4] for s in range(8)]
        A(f"s_mov_b32 s96, {pack8(ws_[:4]):#x}\ns_mov_b32 s97, s96")
        A(f"s_mov_b32 s94, {L_FLAG+F_PW}\ns_mov_b32 s12, 0\ns_mov_b32 s98, 1")
        A(f"s_mov_b32 s6, {512*2752}\ns_mov_b32 s7, 0x20000")
        A("s_waitcnt lgkmcnt(0)")
        A("s_mov_b32 s4, s36\ns_and_b32 s5, s37, 0xffff")
        A("s_cmp_eq_u32 s57, 15\ns_cbranch_scc1 L_ld_gate")
        A("L_ld_go:")
        self.dstamp()
        if self.opt("lprio", 0): A("s_setprio %d" % self.opt("lprio", 0))
        A("L_w_loop:")
        A("s_and_b32 s13, s96, 0xff\ns_lshl_b32 s13, s13, 12")
        for g in range(4):
            A(f"s_add_u32 m0, s13, {g*3072}")
            if g == 3: self.free_issue()
            else: A("s_nop 0")
            self.throttle()
            for j in range(3):
                A(f"buffer_load_dwordx4 v{4+j}, s[4:7], s10 offen offset:{j*1024} lds")
            A("s_add_u32 s10, s10, s53")
        self.loop_tail("w", 4)
        A("L_ld_gate:")
        A("s_sub_u32 s4, s44, 2048\ns_subb_u32 s5, s45, 0\ns_and_b32 s5, s5, 0xffff")
        A("s_mov_b32 s6, 3072\ns_mov_b32 s53, 32\ns_mov_b32 s10, 0")
        A("v_mov_b32 v15, 0x80000000")
        for j in range(3):
            A(f"v_add_u32 v1, {64*j}, v0")
            A(f"v_mul_u32_u24 v2, 12, v{24+j}\nv_sub_u32 v1, v1, v2")
            A(f"v_and_b32 v2, 1, v{24+j}")
            A("v_cmp_eq_u32 vcc, v1, v2")
            A(f"v_and_b32 v2, 14, v{24+j}\nv_lshlrev_b32 v2, 1, v2\nv_add_u32 v2, {2048-1024*j}, v2")
            A(f"v_cndmask_b32 v{4+j}, v15, v2, vcc")
        A("s_branch L_ld_go")

    def loader_w2(self):
        A = self.A
        A("L_w2:")
        A("v_lshrrev_b32 v1, 3, v0\nv_lshlrev_b32 v1, 10, v1")
        A("v_bfe_u32 v2, v0, 4, 1\nv_lshlrev_b32 v2, 2, v2\nv_and_b32 v3, 7, v0\nv_xor_b32 v2, v2, v3")
        A("v_lshl_add_u32 v16, v2, 4, v1")
        for j in range(1, 4): A(f"v_add_u32 v{16+j}, {7*1024*j}, v16")
        srd(A, 4, 40, 1376*1024)
        A("s_lshr_b32 s55, s2, 5\ns_lshl_b32 s10, s55, 7")
        A(f"s_lshl_b32 s14, s98, 14\ns_add_u32 s14, s14, s10\ns_add_u32 s14, s14, {1344*1024}")
        A(f"s_mul_i32 s11, s98, {7*96*1024}\ns_add_u32 s52, s10, s11\ns_add_u32 s53, s52, {7*96*1024}")
        A("s_mul_i32 s11, s98, 12288")
        if "norot" in self.opts: A("s_mov_b32 s55, 0")
        A(f"s_add_u32 s10, s55, 5\ns_cmp_ge_u32 s10, 7\ns_cselect_b32 s12, 7, 0\ns_sub_u32 s10, s10, s12\ns_mul_i32 s10, s10, {96*1024}\ns_add_u32 s10, s10, s52")
        RB = 32
        for k in range(6):
            for j in range(4):
                A(f"buffer_load_dwordx4 {v(RB+16*k+4*j,4)}, v{16+j}, s[4:7], s10 offen offset:{j*1024}")
            A("s_add_u32 s10, s10, 32768")
            if k % 3 == 2: A("s_cmp_eq_u32 s10, s53\ns_cselect_b32 s10, s52, s10")
        if "lstamp" in self.opts: self.dstamp()
        bl = [BLK[b] for b in range(5)] + [0, 0, 0]
        A(f"s_mov_b32 s96, {pack8(bl[:4]):#x}\ns_mov_b32 s97, {pack8(bl[4:]):#x}")
        nd = sum(x << (4*i) for i, x in enumerate(BLKNEED))
        A(f"s_mov_b32 s99, {nd:#x}")
        self.free_issue()
        self.free_check(self.opt("w2g", 8), "L_w2_m")
        A(f"s_lshl_b32 m0, s98, 11\ns_nop 0")
        for j in range(2):
            A(f"buffer_load_dwordx4 v{16+j}, s[4:7], s14 offen offset:{j*1024} lds")
        A("L_w2_loop:")
        A("s_and_b32 s13, s96, 0xff\ns_lshl_b32 s13, s13, 12\ns_add_u32 s13, s13, s11")
        for g in range(3):
            A(f"s_add_u32 m0, s13, {g*4096}")
            if g == 2: self.free_issue()
            else: A("s_nop 0")
            self.throttle()
            for j in range(4):
                A(f"buffer_load_dwordx4 v{16+j}, s[4:7], s10 offen offset:{j*1024} lds")
            A("s_add_u32 s10, s10, 32768")
        A("s_cmp_eq_u32 s10, s53\ns_cselect_b32 s10, s52, s10")
        A("v_add_u32 v9, 4, v9")
        self.dmaflag(9, "s94")
        if "lstamp" in self.opts: self.dstamp()
        A("s_lshr_b64 s[96:97], s[96:97], 8\ns_lshr_b32 s99, s99, 4")
        A("s_cbranch_scc0 L_w2_done")
        A("s_and_b32 s15, s99, 15")
        self.free_check("s15", "L_w2_f")
        A(f"s_cmp_lg_u32 s99, {nd >> 8:#x}\ns_cbranch_scc1 L_w2_loop")
        self.lds_wait_ge(8, F_SB, 4, 21, "L_w2_s")
        A("s_branch L_w2_loop")
        A("L_w2_done:")
        A("v_lshl_add_u32 v4, v0, 4, s11\nv_mov_b32 v5, s94")
        A("s_waitcnt vmcnt(0)")
        for bb in range(2):
            self.lds_wait_ge(13, 0, 9+bb, 20, "L_w2_r", sleep=1)
            for k in range(12): A(f"ds_write_b128 v4, {v(RB+48*bb+4*k,4)} offset:{BLK[bb]+1024*k}")
            A(f"v_mov_b32 v6, {14+bb}\ns_mov_b64 exec, 1\nds_write_b32 v5, v6\ns_mov_b64 exec, -1")
            if "lstamp" in self.opts: self.dstamp()
        A("s_waitcnt lgkmcnt(0)")
        self.dstamp()
        self.end()

    def helper(self):
        A = self.A
        A("s_cmp_eq_u32 s3, 0\ns_cbranch_scc1 L_h0")
        A("v_lshlrev_b32 v2, 21, v0\nv_add_u32 v2, 0x40, v2")
        A("s_waitcnt lgkmcnt(0)")
        A(f"s_load_dword s61, s[50:51], {WS_EPOCH}")
        A("s_mov_b64 exec, 0x1f")
        A("global_load_dword v70, v2, s[50:51]")
        A("s_lshr_b32 s10, s2, 5\ns_lshl_b32 s10, s10, 7\nv_mov_b32 v3, s10\ns_mov_b64 exec, 1")
        A("global_load_dword v71, v3, s[42:43]\nglobal_load_dword v72, v3, s[40:41]")
        A("s_mov_b64 exec, -1")
        A("s_branch L_h1")
        A("L_h0:")
        self.dstamp()
        A("s_waitcnt vmcnt(0)")
        self.dstamp()
        A("L_h1:")
        A("s_barrier")
        A("s_branch L_help2")
    def helper2(self):
        A = self.A
        A("L_help2:")
        A(f"v_mov_b32 v8, {L_FLAG}")
        A("s_and_b32 s60, s3, 1")
        A("s_cmp_eq_u32 s60, 0\ns_cbranch_scc1 L_h_nt")
        A("s_waitcnt lgkmcnt(0)")
        A(f"s_add_u32 s61, s61, {EPC:#x}")
        A("v_mov_b32 v2, s61\nv_mov_b32 v3, 1")
        A(f"s_mov_b64 exec, 1\nds_write_b64 v8, v[2:3] offset:{F_TAG}\ns_mov_b64 exec, -1")
        A("L_h_nt:")
        if "g2only" in self.opts: A("s_waitcnt lgkmcnt(0)\ns_endpgm")
        self.tabptr()
        srd(A, 72, 50, WS_END)
        A("s_lshr_b32 s59, s2, 3\ns_and_b32 s55, s2, 7")
        A("s_lshl_b32 s10, s59, 16\ns_lshl_b32 s11, s60, 6\ns_add_u32 s10, s10, s11\ns_lshl_b32 s11, s55, 7\ns_add_u32 s10, s10, s11")
        A("v_lshrrev_b32 v12, 3, v0\nv_bfe_u32 v4, v0, 2, 1\nv_lshl_add_u32 v4, v4, 5, v12\nv_and_b32 v11, 3, v0\nv_lshlrev_b32 v5, 4, v11\nv_lshl_add_u32 v4, v4, 10, v5")
        for j in range(1, 4): A(f"v_xor_b32 v{4+j}, {16*j}, v4\nv_add_u32 v{4+j}, {7*1024*j}, v{4+j}")
        A(f"s_lshl_b32 s11, s60, 12\ns_add_u32 s58, s11, {L_ST}\ns_mov_b32 m0, s58")
        srd(A, 4, 16, 2048*1024)
        npre = 0
        if self.opt("upub", 1): self.lds_wait_ge(8, F_PW, self.opt("upub", 1), 10, "L_h_u", sleep=1)
        A("s_setprio 3")
        for j in range(4): A(f"buffer_load_dwordx4 v{4+j}, s[4:7], s10 offen offset:{j*1024} lds")
        A("v_lshrrev_b32 v4, 5, v0\nv_xor_b32 v4, v4, v11\nv_lshlrev_b32 v4, 4, v4\nv_lshl_add_u32 v4, v11, 10, v4")
        A("v_bfe_u32 v5, v0, 2, 1\nv_lshl_add_u32 v4, v5, 6, v4\nv_bfe_u32 v5, v0, 3, 2\nv_lshl_add_u32 v4, v5, 2, v4\nv_add_u32 v24, s58, v4\nv_xor_b32 v25, 32, v24")
        A("v_and_b32 v4, 7, v0\nv_lshlrev_b32 v4, 4, v4\nv_lshl_add_u32 v28, v12, 13, v4")
        A("s_lshl_b32 s10, s55, 18\ns_lshl_b32 s12, s60, 17\ns_add_u32 s10, s10, s12\ns_lshl_b32 s12, s59, 7\ns_add_u32 s10, s10, s12")
        A(f"s_add_u32 s10, s10, {WS_UT:#x}\ns_add_u32 s11, s10, 4096\ns_add_u32 s52, s10, 0x10000\ns_add_u32 s53, s10, 0x11000")
        A("s_lshl_b32 s12, s55, 1\ns_add_u32 s12, s12, s60\ns_lshl_b32 s12, s12, 2\ns_lshr_b32 s13, s59, 3\ns_add_u32 s12, s12, s13\ns_lshl_b32 s12, s12, 7")
        A(f"s_and_b32 s13, s59, 7\ns_lshl_b32 s13, s13, 2\ns_add_u32 s12, s12, s13\ns_add_u32 s54, s12, {WS_FU:#x}")
        A("s_mov_b32 s12, 0x05040100\ns_mov_b32 s13, 0x07060302")
        self.get_tag(8, 2, 62, "L_h_tag")
        A(f"s_lshl_b32 s94, s60, 2\ns_add_u32 s94, s94, {L_FLAG+F_UD}\nv_mov_b32 v9, 4")
        A("s_waitcnt vmcnt(0)")
        self.dstamp()
        for it_ in range(2):
            for e in range(4): A(f"ds_read2_b32 {v(32+8*it_+2*e,2)}, v{24+it_} offset0:{64*e} offset1:{64*e+32}")
        for it_ in range(2):
            A(f"s_waitcnt lgkmcnt({4-4*it_})")
            for c_ in range(2):
                for e in range(4): A(f"v_perm_b32 v{48+8*it_+4*c_+e}, v{33+8*it_+2*e}, v{32+8*it_+2*e}, s{12+c_}")
                A(f"buffer_store_dwordx4 {v(48+8*it_+4*c_,4)}, v28, s[72:75], s{(10, 11, 52, 53)[2*it_+c_]} offen sc1")
        self.dmaflag(9, "s94")
        A("s_setprio 0")
        A("s_mul_i32 s14, s2, 5504\ns_mul_i32 s15, s60, 2752\ns_add_u32 s14, s14, s15\ns_add_u32 s12, s40, s14\ns_addc_u32 s13, s41, 0")
        if "notouch" not in self.opts:
            self.dstamp()
            for i in range(14): A(f"s_load_dword s{76+(i&15)}, s[12:13], {64*i}")
        A("s_waitcnt vmcnt(0)")
        self.flag_set("s54")
        if "notouch" not in self.opts:
            for i in range(14, 43): A(f"s_load_dword s{76+(i&15)}, s[12:13], {64*i}")
        A("s_waitcnt lgkmcnt(0)")
        self.dstamp()
        A("s_lshl_b32 s14, s2, 1\ns_add_u32 s14, s14, s60\ns_cmp_lg_u32 s14, 1\ns_cbranch_scc1 L_h_done")
        if "nopub" in self.opts or "nos" in self.opts: A("s_branch L_h_done")
        self.lds_wait_ge(8, F_PW, 8, 4, "L_h_q", sleep=4)
        A(f"v_lshlrev_b32 v4, 7, v0\nv_add_u32 v4, {WS_FU:#x}, v4")
        A("L_h_bump:")
        A("buffer_load_dwordx4 v[10:13], v4, s[72:75], 0 offen sc1\nbuffer_load_dwordx4 v[14:17], v4, s[72:75], 0 offen offset:16 sc1")
        A("s_waitcnt vmcnt(0)")
        for i in range(4): A(f"v_bitop3_b32 v{10+i}, v{10+2*i}, v{11+2*i}, v2 bitop3:0x7e")
        A("v_or3_b32 v10, v10, v11, v12\nv_or_b32 v10, v10, v13")
        A("v_cmp_ne_u32 vcc, 0, v10")
        A("s_cbranch_vccz L_h_ok")
        self.guard()
        A("s_sleep 16\ns_branch L_h_bump")
        A("L_h_ok:")
        A(f"v_mov_b32 v4, {WS_EPOCH}")
        A("s_mov_b64 exec, 1")
        A("buffer_store_dword v2, v4, s[72:75], 0 offen sc1")
        A("L_h_done:")
        A("s_waitcnt vmcnt(0) lgkmcnt(0)")
        if self.ts: self.lds_wait_ge(8, F_PW, 15, 4, "L_h_z", sleep=8)
        self.end()

    def kg_addr(self):
        A = self.A
        A(f"s_lshl_b32 s12, s52, 8\ns_lshl_b32 s13, s53, 7\ns_add_u32 s12, s12, s13\ns_add_u32 s12, s12, {L_PAR}")
        A("v_lshl_add_u32 v6, v0, 1, s12")
        A(f"s_lshl_b32 s12, s52, 1\ns_add_u32 s12, s12, {L_PAR+3072}\nv_mov_b32 v10, s12\nv_mov_b32 v1, {LOG2E:#x}")
    def kg_common(self, n, dsk=None):
        A = self.A
        A("ds_read_u16 v2, v10")
        for i in range(n): A(f"ds_read_u16 v{16+i}, v6 offset:{512*i}")
        if dsk: A(f"ds_read_u16 v{dsk}, v10 offset:4")
        A(f"s_waitcnt lgkmcnt({n + (1 if dsk else 0)})")
        A("v_lshlrev_b32 v2, 16, v2\nv_mul_f32 v2, v2, v1\nv_exp_f32 v2, v2")
        A("s_waitcnt lgkmcnt(0)")
        A("v_cvt_pk_bf16_f32 v2, v2, v2")
        for i in range(n): A(f"v_lshlrev_b32 v{16+i}, 16, v{16+i}")
        A("v_lshlrev_b32 v2, 16, v2")
    def cmul(self, d, a, b):
        A = self.A
        if "pk" in self.opts:
            A(f"v_pk_mul_f32 {v(d,2)}, {v(a,2)}, {v(b,2)} op_sel:[0,0] op_sel_hi:[1,0]")
            A(f"v_pk_fma_f32 {v(d,2)}, {v(a,2)}, {v(b,2)}, {v(d,2)} op_sel:[1,1,0] op_sel_hi:[0,1,1] neg_lo:[1,0,0]")
        else:
            A(f"v_mul_f32 v{d}, v{a}, v{b}\nv_mul_f32 v{d+1}, v{a+1}, v{b}")
            A(f"v_fma_f32 v{d}, -v{a+1}, v{b+1}, v{d}\nv_fmac_f32 v{d+1}, v{a}, v{b+1}")
    def direct(self, d, L):
        A = self.A
        if L != 1:
            A(f"v_mul_f32 v3, {f2h(float(L)):#x}, v16\nv_mul_f32 v7, {f2h(float(L)):#x}, v17")
            A("v_exp_f32 v3, v3\nv_fract_f32 v7, v7")
        else:
            A("v_exp_f32 v3, v16\nv_fract_f32 v7, v17")
        A(f"v_cos_f32 v{d}, v7\nv_sin_f32 v{d+1}, v7")
        A(f"v_mul_f32 v{d}, v3, v{d}\nv_mul_f32 v{d+1}, v3, v{d+1}")
    PK = 64
    def put(self, row, src, neg=False):
        if row & 1 == 0:
            self.prev = src; return
        p = self.prev; n = '-' if neg else ''; PK = self.PK
        self.A(f"v_cvt_pk_bf16_f32 v{PK+(row>>1)}, v{p}, v{src}")
        self.A(f"v_cvt_pk_bf16_f32 v{PK+8+(row>>1)}, {n}v{p+1}, {n}v{src+1}")
    def flush(self, tb, hh):
        PK = self.PK; a = 4 + hh
        self.A(f"ds_write_b128 v{a}, {v(PK+4*hh,4)} offset:{4096*tb+1024*hh}")
        self.A(f"ds_write_b128 v{a}, {v(PK+8+4*hh,4)} offset:{4096*tb+1024*(2+hh)}")
    def chain(self, va, vb, acc, fr):
        A = self.A
        lg = Cnt(A, "lgkmcnt", 15)
        def rd(q):
            o = (q >> 2)*16384 + (q & 3)*256; b = fr + 8*(q % 3)
            for h in range(2): lg.op(f"ds_read_b64_tr_b16 {v(b+2*h,2)}, v{va} offset:{o+2048*h}", q)
            for h in range(2): lg.op(f"ds_read_b64_tr_b16 {v(b+4+2*h,2)}, v{vb} offset:{o+2048*h}", q)
        for q in range(3): rd(q)
        for q in range(8):
            b = fr + 8*(q % 3)
            lg.need(q)
            A(f"v_mfma_f32_16x16x32_bf16 {v(acc,4)}, {v(b,4)}, {v(b+4,4)}, {v(acc,4) if q else '0'}")
            if q + 3 < 8: rd(q+3)
    def tr_addr(self, d):
        A = self.A
        A(f"v_lshrrev_b32 v{d}, 2, v0\nv_lshlrev_b32 v{d}, 4, v{d}\nv_and_b32 v3, 1, v0\nv_lshl_add_u32 v{d}, v3, 3, v{d}")
        A(f"v_bfe_u32 v3, v0, 1, 1\nv_mul_u32_u24 v3, 1152, v3\nv_xor_b32 v{d}, v{d}, v3")

    def consumer(self):
        A = self.A
        ACC = 16
        FR = [64, 80, 96, 112]
        A(".p2align 8")
        A("L_cons:")
        self.entry()
        A("s_sub_u32 s60, s3, 4")
        A("s_and_b32 s52, s60, 1\ns_lshr_b32 s53, s60, 1")
        A(f"v_mov_b32 v9, {L_FLAG}")
        B0 = FR[3]
        self.map_n(); self.map_m()
        A("v_and_b32 v129, 31, v0\nv_lshrrev_b32 v130, 5, v0")
        A("s_mul_i32 s10, s57, 192")
        A("v_lshlrev_b32 v13, 1, v0")
        A("s_waitcnt lgkmcnt(0)")
        srd(A, 4, 38, 1376*2)
        A(f"buffer_load_ushort v{B0+8}, v13, s[4:7], s10 offen")
        A(f"buffer_load_ushort v{B0+12}, v13, s[4:7], s10 offen offset:128")
        for q in (1, 2, 3, 5, 6, 7, 9, 10, 11, 13, 14, 15): A(f"v_mov_b32 v{B0+q}, 0")
        A(f"v_mul_u32_u24 v{B0+4}, 0x3f80, v130\nv_sub_u32 v{B0}, 0x3f80, v{B0+4}")
        A("v_mov_b32 v1, v129")
        A("v_bfe_u32 v3, v0, 1, 3\nv_xor_b32 v3, v3, v130\nv_lshlrev_b32 v3, 4, v3\nv_lshl_add_u32 v3, v1, 7, v3")
        A("s_lshl_b32 s10, s60, 12")
        A("v_add_u32 v134, s10, v3")
        for st in range(1, 4): A(f"v_xor_b32 v{134+st}, {st*32}, v134")
        A("v_bfe_u32 v3, v0, 2, 2\nv_lshl_add_u32 v3, v130, 3, v3\nv_mul_u32_u24 v3, 192, v3")
        A("v_bfe_u32 v8, v0, 4, 1\nv_lshl_add_u32 v3, v8, 5, v3")
        A("v_and_b32 v8, 3, v0\nv_lshl_add_u32 v138, v8, 3, v3")
        for q in range(4): A(f"v_add_u32 v{4+q}, {XS[0]}, v{134+q}")
        A(f"v_add_u32 v8, {WSL[0]}, v138")
        xs = [XS[s % 5] for s in range(1, 9)]; ws_ = [WSL[s % 4] for s in range(1, 9)]
        A(f"s_mov_b32 s96, {pack8(xs[:4]):#x}\ns_mov_b32 s97, {pack8(xs[4:]):#x}\ns_mov_b32 s98, {pack8(ws_[:4]):#x}\ns_mov_b32 s99, s98")
        A(f"v_and_b32 v11, 1, v0\nv_lshl_add_u32 v11, v11, 2, v9\nv_add_u32 v11, {F_PX}, v11")
        self.tabptr()
        A(f"s_lshl_b32 s94, s60, 2\ns_add_u32 s94, s94, {L_FLAG+F_FREE}\ns_mov_b32 m0, s94\nv_mov_b32 v14, 0")
        srd(A, 72, 50, WS_END)
        A("v_lshlrev_b32 v13, 4, v0")
        if "noc" in self.opts:
            A(f"v_mov_b32 v12, 100\ns_lshl_b32 s10, s60, 2\nv_add_u32 v11, s10, v9\nds_write_b32 v11, v12 offset:{F_FREE}")
            self.end()
        A("s_lshl_b32 s10, s56, 2\ns_add_u32 s58, s10, s60")
        A("s_mul_i32 s10, s58, 86\ns_mul_i32 s11, s57, 6\ns_add_u32 s10, s10, s11\ns_lshl_b32 s10, s10, 10")
        A(f"s_add_u32 s76, s10, {WS_H:#x}\ns_add_u32 s77, s76, 4096")
        A("s_cmp_ge_u32 s57, 7\ns_cselect_b32 s10, 100, 0\ns_lshl_b32 s11, s57, 2\ns_add_u32 s10, s10, s11\ns_lshl_b32 s11, s58, 8\ns_add_u32 s10, s10, s11")
        A(f"s_add_u32 s100, s10, {WS_FH:#x}")
        self.map_tb()
        A(f"s_lshl_b32 s10, s59, 1\ns_add_u32 s10, s10, s52\ns_lshl_b32 s10, s10, 1\ns_add_u32 s10, s10, s53\ns_lshl_b32 s10, s10, 7\ns_add_u32 s101, s10, {WS_FH:#x}")
        A("s_load_dword s16, s[50:51], s101 glc")
        A("s_setprio %d" % self.opt("cprio", 2))
        self.dstamp()
        A("s_barrier")
        A("s_waitcnt vmcnt(0)")
        for fb, (a_, b_) in enumerate(((8, 0), (8, 4), (12, 0))):
            A(f"v_mfma_f32_32x32x16_bf16 {v(ACC+16*fb,16)}, {v(B0+a_,4)}, {v(B0+b_,4)}, 0")
        self.get_tag(9, 2, 61, "L_c_tag")
        def reads(st):
            buf = FR[st]
            out = [f"ds_read_b128 {v(buf,4)}, v{4+st}"]
            for fb in range(3):
                for h in range(2):
                    out.append(f"ds_read_b64_tr_b16 {v(buf+4+4*fb+2*h,2)}, v8 offset:{st*3072+h*768+fb*64}")
            return out
        def mfmas(st):
            buf = FR[st]
            return [f"v_mfma_f32_32x32x16_bf16 {v(ACC+16*fb,16)}, {v(buf+4+4*fb,4)}, {v(buf,4)}, {v(ACC+16*fb,16)}" for fb in range(3)]
        FLAGRD = "ds_read_b32 v10, v11"
        if "g2only" in self.opts:
            A(f"v_mov_b32 v12, 100\nv_lshl_add_u32 v10, v0, 2, v9\ns_mov_b64 exec, 0xff\nds_write_b32 v10, v12 offset:{F_PX}\ns_mov_b64 exec, -1\ns_sleep 64\ns_branch L_c_e1done")
        A("s_mov_b32 s12, 1")
        self.dstamp()
        A("L_c_poll:")
        self.lds_wait_ge(11, 0, "s12", 10, "L_c_p0")
        if "cstamp" in self.opts: self.dstamp()
        A("L_c_rd:")
        for r in reads(0): A(r)
        for r in reads(1): A(r)
        A(".p2align 3")
        A("L_c_loop:")
        ms, rs = mfmas(0), reads(2)
        A("s_waitcnt lgkmcnt(7)")
        A(ms[0]); A(FLAGRD); A(rs[0]); A(rs[1]); A("s_add_u32 s12, s12, 1")
        A(ms[1]); A(rs[2]); A(rs[3]); A(rs[4]); A("s_cmp_eq_u32 s12, 9\ns_cselect_b32 s12, -1, s12")
        A(ms[2]); A(rs[5]); A(rs[6]); A("s_and_b32 s13, s96, 0xff\ns_and_b32 s15, s98, 0xff")
        ms, rs = mfmas(1), reads(3)
        A("s_waitcnt lgkmcnt(7)")
        A(ms[0]); A("s_lshl_b32 s13, s13, 12\ns_lshl_b32 s15, s15, 12"); A(rs[0]); A(rs[1]); A(rs[2])
        A(ms[1]); A("v_cmp_gt_u32 vcc, s12, v10"); A(rs[3]); A(rs[4]); A(rs[5]); A(rs[6])
        A(ms[2])
        A("v_add_u32 v4, s13, v134\nv_add_u32 v5, s13, v135\nv_add_u32 v8, s15, v138")
        A("s_cbranch_vccnz L_c_slow")
        ms, rs = mfmas(2), reads(0)
        A("s_waitcnt lgkmcnt(7)")
        A(ms[0]); A(rs[0]); A(rs[1]); A("v_add_u32 v6, s13, v136\nv_add_u32 v7, s13, v137")
        A(ms[1]); A(rs[2]); A(rs[3]); A(rs[4]); A("v_add_u32 v14, 4, v14")
        A(ms[2]); A(rs[5]); A(rs[6]); A("s_lshr_b64 s[96:97], s[96:97], 8\ns_lshr_b64 s[98:99], s[98:99], 8")
        ms, rs = mfmas(3), reads(1)
        A("s_waitcnt lgkmcnt(7)")
        A(ms[0])
        if "noflag" not in self.opts: self.dmaflag(14)
        A(rs[0]); A(rs[1])
        A(ms[1]); A(rs[2]); A(rs[3]); A(rs[4])
        A(ms[2]); A(rs[5]); A(rs[6])
        A("s_branch L_c_loop")
        A("L_c_slow:")
        A("s_waitcnt lgkmcnt(7)")
        ms = mfmas(2)
        A(ms[0]); A("v_add_u32 v6, s13, v136\nv_add_u32 v7, s13, v137\nv_add_u32 v14, 4, v14")
        A(ms[1])
        A("s_waitcnt lgkmcnt(0)")
        if "noflag" not in self.opts: self.dmaflag(14)
        A(FLAGRD)
        A(ms[2])
        A("s_lshr_b64 s[96:97], s[96:97], 8\ns_lshr_b64 s[98:99], s[98:99], 8")
        ms = mfmas(3)
        A(ms[0]); A(ms[1])
        A("s_waitcnt lgkmcnt(0)\nv_cmp_gt_u32 vcc, s12, v10")
        A(ms[2])
        A("s_cbranch_vccz L_c_rd")
        A("s_cmp_lg_u32 s12, -1\ns_cbranch_scc1 L_c_poll")
        self.dstamp()
        A("s_cmp_eq_u32 s57, 15\ns_cbranch_scc1 L_c_gate")
        A("s_nop 4")
        for fb in range(3):
            if fb == 1: A("s_cmp_eq_u32 s57, 14\ns_cbranch_scc1 L_c_e1done")
            for hs in range(2):
                o = 64 + 8*fb + 4*hs
                for q in range(8):
                    r0 = ACC + 16*fb + 8*hs + q
                    A(f"v_mul_f32 v{r0}, v{r0}, abs(v{r0})")
                for q in range(4):
                    r0 = ACC + 16*fb + 8*hs + 2*q
                    A(f"v_cvt_pk_bf16_f32 v{o+q}, v{r0}, v{r0+1}")
                for q in range(4): A(f"v_pk_max_i16 v{o+q}, v{o+q}, 0")
                idx = 2*fb + hs
                A(f"buffer_store_dwordx4 {v(o,4)}, v13, s[72:75], s{76 if idx < 4 else 77} offen offset:{(idx&3)*1024} sc1")
        A("s_branch L_c_e1done")
        A("L_c_gate:")
        A("s_nop 7")
        A(f"v_add_f32 v64, v{ACC}, v{ACC+5}")
        A(f"v_mul_f32 v64, {LOG2E ^ 0x80000000:#x}, v64")
        A("v_exp_f32 v64, v64")
        A("v_and_b32 v65, 15, v0")
        A("v_add_f32 v64, 1.0, v64")
        A("v_rcp_f32 v64, v64")
        A("s_lshr_b32 s10, s58, 1\ns_and_b32 s11, s58, 1\ns_lshl_b32 s12, s10, 7\ns_lshl_b32 s13, s11, 2\ns_add_u32 s12, s12, s13")
        A(f"s_add_u32 s100, s12, {WS_FG:#x}\ns_lshl_b32 s10, s12, 1\ns_add_u32 s10, s10, {WS_G:#x}")
        A("v_bfe_u32 v66, v0, 4, 1\nv_lshlrev_b32 v66, 2, v66\nv_lshl_add_u32 v66, v65, 4, v66")
        A("s_mov_b32 exec_hi, 0")
        A("buffer_store_dword v64, v66, s[72:75], s10 offen sc1")
        A("s_mov_b64 exec, -1")
        A("L_c_e1done:")
        self.dstamp()
        self.gemm2()

    def gemm2(self):
        A = self.A
        AC2 = 16
        NH = self.opt("nh", 16); HB = 48
        WF = [HB+4*NH+8*i for i in range(4)]
        AX = WF[3] + 8
        assert AX + 12 <= 167
        MI, FRA, FRV, RW, RR, RE, RO, OW, OR_, OG = AX, AX+2, AX+3, AX+4, AX+5, AX+6, AX+7, AX+8, AX+9, AX+10
        A("v_lshrrev_b32 v2, 5, v0\nv_bfe_u32 v3, v0, 2, 2\nv_lshl_add_u32 v2, v2, 2, v3\nv_lshlrev_b32 v2, 7, v2")
        A("v_bfe_u32 v3, v0, 3, 1\nv_xor_b32 v3, s53, v3\nv_lshl_add_u32 v2, v3, 6, v2")
        A("v_bfe_u32 v3, v0, 4, 1\nv_lshl_add_u32 v2, v3, 5, v2")
        A("v_and_b32 v3, 3, v0\nv_lshl_add_u32 v2, v3, 3, v2")
        A("s_mul_i32 s10, s53, 12288")
        A("v_add_u32 v4, s10, v2\nv_xor_b32 v5, 64, v4")
        A(f"v_add_u32 v6, {52*KB}, v4\nv_add_u32 v7, {52*KB}, v5")
        A("s_lshl_b32 s10, s53, 11")
        A(f"v_add_u32 v{MI}, s10, v2\nv_xor_b32 v{MI+1}, 64, v{MI}")
        A("s_lshl_b32 s10, s59, 1\ns_add_u32 s10, s10, s52\ns_mul_i32 s10, s10, 86")
        A("s_add_u32 s11, s10, s53\ns_add_u32 s11, s11, 84\ns_lshl_b32 s11, s11, 10")
        A(f"s_add_u32 s76, s11, {WS_H:#x}")
        A("s_mul_i32 s11, s53, 42\ns_add_u32 s10, s10, s11\ns_lshl_b32 s10, s10, 10")
        A(f"s_add_u32 s77, s10, {WS_H:#x}")
        A(f"v_and_b32 v{FRA}, 3, v0\nv_lshl_add_u32 v{FRA}, v{FRA}, 2, v9")
        A(f"s_lshl_b32 s10, s53, 2\ns_add_u32 s10, s10, {L_FLAG+F_PX}\nv_mov_b32 v11, s10")
        A("v_mov_b32 v8, s94\nv_mov_b32 v12, 8")
        A("s_mov_b32 s10, 0" if "norot" in self.opts else "s_cmp_eq_u32 s55, 7\ns_cselect_b32 s10, 0, s55")
        A(f"s_mul_i32 s10, s10, 6144\ns_add_u32 s10, s10, s77\ns_add_u32 s11, s77, {7*6144}")
        for g in range(7):
            A(f"s_mov_b32 s{78+2*g}, s10\ns_add_u32 s{79+2*g}, s10, 4096")
            if g < 6: A("s_add_u32 s10, s10, 6144\ns_cmp_eq_u32 s10, s11\ns_cselect_b32 s10, s77, s10")
        A("s_lshl_b32 s10, s60, 12")
        A(f"s_add_u32 s11, s10, {L_RED}\nv_add_u32 v{RW}, s11, v13")
        A(f"s_xor_b32 s11, s10, 8192\ns_add_u32 s11, s11, {L_RED}\nv_add_u32 v{RR}, s11, v13")
        A(f"s_xor_b32 s11, s53, 1\ns_lshl_b32 s11, s11, 13\ns_lshl_b32 s12, s52, 11\ns_add_u32 s11, s11, s12\ns_add_u32 s11, s11, {L_KF}\nv_add_u32 v{RE}, s11, v13")
        A(f"s_lshl_b32 s11, s52, 3\ns_add_u32 s11, s11, {L_OMG}\nv_and_b32 v2, 15, v0\nv_lshl_add_u32 v2, v2, 4, s11\nv_bfe_u32 v3, v0, 4, 1\nv_lshl_add_u32 v{RO}, v3, 2, v2")
        A("s_mul_i32 s10, s60, 2560")
        A(f"s_add_u32 s10, s10, {L_OT}")
        A(f"v_mul_u32_u24 v2, 80, v1\nv_lshrrev_b32 v3, 5, v0\nv_lshl_add_u32 v2, v3, 3, v2\nv_add_u32 v{OW}, s10, v2")
        A(f"v_lshrrev_b32 v3, 2, v0\nv_mul_u32_u24 v2, 80, v3\nv_and_b32 v10, 3, v0\nv_lshl_add_u32 v2, v10, 4, v2\nv_add_u32 v{OR_}, s10, v2")
        A(f"v_lshlrev_b32 v3, 10, v3\nv_lshl_add_u32 v{OG}, v10, 4, v3")
        srd(A, 4, 46, 2048*1024)
        A("s_lshl_b32 s10, s59, 1\ns_add_u32 s10, s10, s52\ns_lshl_b32 s10, s10, 15")
        A("s_lshl_b32 s11, s55, 7\ns_add_u32 s10, s10, s11\ns_lshl_b32 s11, s53, 6\ns_add_u32 s96, s10, s11")
        A("s_add_u32 s97, s96, 16384")
        A("s_waitcnt vmcnt(0)")
        self.flag_set("s100")
        A("s_cmp_lg_u32 s57, 14\ns_cbranch_scc1 L_g2_f1\ns_sub_u32 s100, s100, 128\ns_mov_b32 s8, s62\ns_atomic_swap s8, s[50:51], s100\nL_g2_f1:")
        self.dstamp()
        if "g2only" not in self.opts: self.flag_wait(8, "s101", "L_g2_w")
        self.dstamp()
        def hload(q):
            r = HB + 4*(q % NH)
            if q == 42: return f"buffer_load_dwordx4 {v(r,4)}, v13, s[72:75], s76 offen sc1"
            g, s_ = divmod(q, 6)
            return f"buffer_load_dwordx4 {v(r,4)}, v13, s[72:75], s{78+2*g+(s_>>2)} offen offset:{(s_&3)*1024} sc1"
        vm = Cnt(A, "vmcnt", 63); lg = Cnt(A, "lgkmcnt", 15)
        N0 = self.opt("hpre", 10)
        def wreads(q):
            buf = WF[q & 3]; o = []
            for db in range(2):
                for h in range(2):
                    if q == 42: a, off = MI+db, L_MINI + h*1024
                    else:
                        b, s_ = divmod(q, 6); base = BLK[b % 5]
                        hi = base >= 52*KB
                        a = 4 + db + (2 if hi else 0); off = base - (52*KB if hi else 0) + s_*2048 + h*1024
                    o.append(f"ds_read_b64_tr_b16 {v(buf+4*db+2*h,2)}, v{a} offset:{off}")
            return o
        progs = []
        def progcheck(b):
            Lp, Lr = A.lab("L_g2_pp"), A.lab("L_g2_pr")
            A(f"s_cbranch_vccnz {Lp}")
            A(f"{Lr}:")
            progs.append((Lp, Lr, 9+b))
        for q in range(4): vm.op(hload(q), q)
        self.lds_wait_ge(11, 0, 9, 10, "L_g2_p0")
        for q in range(3):
            for r in wreads(q): lg.op(r, ("w", q))
        for q in range(4, N0): vm.op(hload(q), q)
        nxt = N0
        for q in range(43):
            g, s_ = divmod(q, 6)
            buf = WF[q & 3]; hr = HB + 4*(q % NH)
            cin = [v(AC2+16*db,16) if q else "0" for db in range(2)]
            vm.need(q)
            if q == 0: self.dstamp()
            lg.need(("w", q))
            A(f"v_mfma_f32_32x32x16_bf16 {v(AC2+16,16)}, {v(buf+4,4)}, {v(hr,4)}, {cin[1]}")
            if s_ == 5 and g < 4 and "g2only" not in self.opts:
                A("v_add_u32 v12, 1, v12\ns_mov_b64 exec, 1")
                lg.op("ds_write_b32 v8, v12")
                A("s_mov_b64 exec, -1")
            if s_ == 0 and g < 6: lg.op("ds_read_b32 v10, v11", "flag")
            if q == 38: lg.op(f"ds_read_b32 v{FRV}, v{FRA} offset:{F_FREE}", "free")
            if s_ == 2 and g < 6:
                lg.need("flag"); A(f"v_cmp_gt_u32 vcc, {10+g}, v10")
            if s_ == 3 and g < 6: progcheck(g+1)
            rs = wreads(q+3) if q+3 <= 42 else []
            for r in rs[:2]: lg.op(r, ("w", q+3))
            if nxt <= 42 and nxt - q < NH: vm.op(hload(nxt), nxt); nxt += 1
            A(f"v_mfma_f32_32x32x16_bf16 {v(AC2,16)}, {v(buf,4)}, {v(hr,4)}, {cin[0]}")
            for r in rs[2:]: lg.op(r, ("w", q+3))
            if nxt <= 42 and nxt - q < NH and q < NH - N0: vm.op(hload(nxt), nxt); nxt += 1
            if q == 41:
                lg.need("free"); A(f"v_cmp_gt_u32 vcc, 12, v{FRV}")
        self.dstamp()
        A("s_cbranch_vccz L_g2_red")
        self.lds_wait_ge(FRA, F_FREE, 12, FRV, "L_g2_fw")
        A("L_g2_red:")
        A("s_nop 9")
        for q in range(4): A(f"ds_write_b128 v{RW}, {v(AC2+16+4*q,4)} offset:{q*1024}")
        A("s_waitcnt lgkmcnt(0)")
        A("s_barrier")
        self.dstamp()
        A(f"ds_read_b32 v8, v{RO}")
        for q in range(4):
            A(f"ds_read_b128 {v(48+4*q,4)}, v{RR} offset:{q*1024}")
            A(f"ds_read_b128 {v(64+4*q,4)}, v{RE} offset:{(q>>1)*4096+(q&1)*1024}")
        for q in range(4):
            A(f"s_waitcnt lgkmcnt({6-q})")
            for r in range(0, 4, 2):
                A(f"v_pk_add_f32 {v(AC2+4*q+r,2)}, {v(AC2+4*q+r,2)}, {v(48+4*q+r,2)}")
            for r in range(0, 4, 2):
                A(f"v_pk_fma_f32 {v(64+4*q+r,2)}, {v(AC2+4*q+r,2)}, v[8:9], {v(64+4*q+r,2)} op_sel_hi:[1,0,1]")
            A(f"v_cvt_pk_bf16_f32 v{80+2*q}, v{64+4*q}, v{64+4*q+1}")
            A(f"v_cvt_pk_bf16_f32 v{81+2*q}, v{64+4*q+2}, v{64+4*q+3}")
            A(f"ds_write_b64 v{OW}, {v(80+2*q,2)} offset:{16*q}")
        A(f"ds_read_b128 v[88:91], v{OR_}\nds_read_b128 v[92:95], v{OR_} offset:1280")
        A("s_waitcnt lgkmcnt(1)")
        A(f"buffer_store_dwordx4 v[88:91], v{OG}, s[4:7], s96 offen sc1")
        A("s_waitcnt lgkmcnt(0)")
        A(f"buffer_store_dwordx4 v[92:95], v{OG}, s[4:7], s97 offen sc1")
        self.dstamp()
        if self.ts:
            A("s_waitcnt vmcnt(0)")
            self.dstamp()
        if "rt" in self.opts:
            A("s_waitcnt vmcnt(0)\ns_memrealtime s[64:65]\ns_lshl_b32 s8, s2, 2\ns_add_u32 s8, s8, s60\ns_lshl_b32 s8, s8, 3")
            A(f"s_add_u32 s8, s8, {WS_TS:#x}\nv_mov_b32 v4, s8\ns_waitcnt lgkmcnt(0)")
            A("v_mov_b32 v2, s68\nv_mov_b32 v3, s64\ns_mov_b64 exec, 1\nglobal_store_dwordx2 v4, v[2:3], s[50:51]")
        self.end()
        for Lp, Lr, n in progs:
            A(f"{Lp}:")
            self.lds_wait_ge(11, 0, n, 10, "L_g2_pw")
            A(f"s_branch {Lr}")

    def sbar(self, k):
        A = self.A
        A("s_waitcnt lgkmcnt(0)")
        A(f"s_mov_b64 exec, 1\nds_add_u32 v9, v8 offset:{F_SB}\ns_mov_b64 exec, -1")
        self.lds_wait_ge(9, F_SB, 4*k, 10, "L_sb")

    def ssm(self):
        A = self.A
        A(".p2align 8")
        A("L_ssm:")
        self.entry()
        A("s_sub_u32 s60, s3, 8")
        A("s_and_b32 s52, s60, 1\ns_lshr_b32 s53, s60, 1")
        A("s_lshl_b32 s13, s2, 2")
        A("s_lshl_b32 s10, s2, 13\ns_lshl_b32 s11, s60, 11\ns_add_u32 s10, s10, s11")
        A("s_mul_i32 s11, s2, 688\ns_and_b32 s11, s11, 0xffffffc0\ns_mul_i32 s12, s60, 192\ns_add_u32 s11, s11, s12\ns_min_u32 s11, s11, 175936")
        A("s_waitcnt lgkmcnt(0)")
        A("s_load_dword s14, s[30:31], s13\ns_load_dword s15, s[32:33], s13")
        A("s_add_u32 s96, s16, s10\ns_addc_u32 s97, s17, 0\ns_add_u32 s98, s36, s11\ns_addc_u32 s99, s37, 0")
        A("s_add_u32 s98, s98, %d\ns_addc_u32 s99, s99, 0" % (3*176128))
        pfq = []
        if "notouch" not in self.opts:
            for sl in range(3, 8):
                for r in range(2):
                    for h in range(2): pfq.append(f"s[96:97], {1024*r+128*sl+64*h}")
                for k in range(3): pfq.append(f"s[98:99], {176128*(sl-3)+64*k}")
        pfn = [0]
        def pf(n):
            for _ in range(n):
                if pfq:
                    A(f"s_load_dword s{76+(pfn[0]&15)}, {pfq.pop(0)}"); pfn[0] += 1
        pf(12)
        A("s_setprio %d" % self.opt("sprio", 1))
        self.map_tb()
        A(f"s_lshl_b32 s11, s60, 10\ns_add_u32 s58, s11, {L_UL+480}")
        A(f"v_mov_b32 v9, {L_FLAG}\nv_mov_b32 v8, 1")
        srd(A, 72, 50, WS_END)
        A("v_and_b32 v123, 15, v0\nv_lshrrev_b32 v124, 4, v0")
        SEL = 158
        A("v_and_b32 v1, 31, v0\nv_lshrrev_b32 v2, 5, v0\nv_lshlrev_b32 v2, 4, v2\nv_sub_u32 v1, v1, v2")
        A("v_and_b32 v2, 1, v1\nv_lshlrev_b32 v2, 4, v2\nv_mov_b32 v3, 0x3f80\nv_lshlrev_b32 v2, v2, v3\nv_ashrrev_i32 v1, 1, v1")
        for j in range(8):
            A(f"v_cmp_eq_u32 vcc, {j}, v1\ns_nop 1\nv_cndmask_b32 v{SEL+j}, 0, v2, vcc")
        A(f"s_lshl_b32 s12, s52, 8\ns_lshl_b32 s13, s53, 7\ns_add_u32 s12, s12, s13\ns_add_u32 s12, s12, {L_PAR}")
        A("v_lshl_add_u32 v6, v0, 1, s12")
        A(f"s_mul_i32 s12, s52, 4608\ns_add_u32 s12, s12, {L_UL}\nv_lshl_add_u32 v12, v0, 3, s12\nv_mov_b64 v[2:3], 0")
        A("s_mov_b32 exec_hi, 0x0fffffff\nds_write_b64 v12, v[2:3]\ns_mov_b64 exec, -1")
        GA = 100
        A(f"s_mul_i32 s11, s52, 5632\ns_add_u32 s11, s11, {L_KP}")
        A("v_lshlrev_b32 v1, 4, v0\nv_sub_u32 v1, 1023, v1\nv_cvt_f32_i32 v7, v1")
        for i in range(17):
            A(f"v_subrev_u32 v2, {i}, v1")
            A(f"v_subrev_f32 v3, {f2h(float(i)):#x}, v7")
            A("v_cvt_pk_bf16_f32 v3, v3, 0")
            A("v_min_i32 v2, 128, v2")
            A("v_subrev_u32 v3, 0x4280, v3")
            A("v_max_i32 v3, v3, v2")
            if i == 16: A("v_min_u32 v3, 700, v3")
            A(f"v_lshl_add_u32 v{GA+i}, v3, 2, s11")
        A("s_barrier")
        if "stop0" in self.opts or "g2only" in self.opts: A("s_endpgm")
        for i in range(6): A(f"ds_read_u16 v{16+i}, v6 offset:{512*i}")
        A("s_waitcnt lgkmcnt(0)")
        self.dstamp()
        pf(14)
        A("s_lshl_b32 s11, s52, 4\ns_lshr_b32 s14, s14, s11\ns_lshl_b32 s14, s14, 16\ns_lshr_b32 s15, s15, s11\ns_lshl_b32 s15, s15, 16")
        A(f"v_mov_b32 v1, {LOG2E:#x}\nv_mul_f32 v2, s14, v1\nv_exp_f32 v2, v2")
        for i in range(6): A(f"v_lshlrev_b32 v{16+i}, 16, v{16+i}")
        A("v_cvt_pk_bf16_f32 v2, v2, v2\nv_lshlrev_b32 v2, 16, v2")
        A("v_mul_f32 v16, v2, v16\nv_mul_f32 v17, v2, v17\nv_mul_f32 v18, v2, v18\nv_mul_f32 v19, v2, v19")
        A(f"v_mul_f32 v16, v1, v16\nv_mul_f32 v17, {INV2PI:#x}, v17")
        E1, E16, E256, PA, PB, ONE, BS = 22, 24, 26, 28, 30, 4, [46, 48]
        PK, BF, TRE, TIM, KA = self.PK, 80, 126, 142, 50
        def ep(k): return E1 if k == 1 else (32 + k - 2 if k % 2 == 0 else PA)
        def tr(dre, hh):
            for d, p in ((dre, PK), (TIM, PK+8)):
                A(f"v_mfma_f32_32x32x16_bf16 {v(d,16)}, {v(p+4*hh,4)}, {v(SEL+4*hh,4)}, {v(d,16) if hh else '0'}")
        def repack(dre):
            for q in range(4):
                A(f"v_cvt_pk_bf16_f32 v{dre+4*q}, v{dre+4*q}, v{dre+4*q+1}\nv_cvt_pk_bf16_f32 v{dre+4*q+1}, v{dre+4*q+2}, v{dre+4*q+3}")
            for q in range(4):
                A(f"v_cvt_pk_bf16_f32 v{dre+4*q+2}, v{TIM+4*q}, v{TIM+4*q+1}\nv_cvt_pk_bf16_f32 v{dre+4*q+3}, v{TIM+4*q+2}, v{TIM+4*q+3}")
        def kmf(k):
            for q in range(4):
                A(f"v_mfma_f32_16x16x32_bf16 {v(KA+4*k,4)}, {v(TRE+4*q,4)}, {v(BF+4*q,4)}, {v(KA+4*k,4) if q else '0'}")
        self.direct(E16, 16)
        self.cmul(PA, 20, 18)
        cur, nxt = PA, PB
        for b in range(16):
            self.put(b, cur, neg=True)
            if b < 15:
                self.cmul(nxt, cur, E16); cur, nxt = nxt, cur
            if b == 7: tr(BF, 0)
        self.direct(E1, 1)
        tr(BF, 1)
        pf(99)
        A(f"v_mov_b32 v{ONE}, 1.0\nv_mov_b32 v{ONE+1}, 0")
        self.put(0, ONE); self.put(1, E1)
        for k in range(2, 16):
            self.cmul(ep(k), ep(k-1), E1); self.put(k, ep(k))
            if k == 7: repack(BF)
            if k == 8: tr(TRE, 0)
        self.direct(E256, 256)
        tr(TRE, 1)
        self.put(0, E256)
        for r in range(1, 8):
            self.cmul(PA if r & 1 else PB, E256, ep(2*r)); self.put(r, PA if r & 1 else PB)
        repack(TRE)
        self.cmul(BS[0], E256, E256)
        kmf(0)
        tr(TRE, 0)
        for a_ in range(2):
            self.put(8+4*a_, BS[a_])
            for r in range(1, 4):
                self.cmul(PA if r & 1 else PB, BS[a_], ep(4*r)); self.put(8+4*a_+r, PA if r & 1 else PB)
            self.cmul(BS[1-a_], BS[a_], E256)
        tr(TRE, 1)
        cur = 0
        for a_ in range(4):
            self.put(2*a_, BS[cur])
            self.cmul(PA, BS[cur], ep(8)); self.put(2*a_+1, PA)
            self.cmul(BS[1-cur], BS[cur], E256); cur = 1-cur
        repack(TRE)
        self.put(8, BS[cur]); self.put(9, BS[cur])
        kmf(1)
        tr(TRE, 0); tr(TRE, 1)
        A(f"s_mul_i32 s11, s52, 5632\ns_mul_i32 s12, s53, 2816\ns_add_u32 s57, s11, s12\ns_add_u32 s57, s57, {L_KP}\ns_add_u32 s56, s11, {L_KP}")
        A("v_lshlrev_b32 v3, 4, v124\nv_lshl_add_u32 v120, v123, 6, v3\nv_add_u32 v120, s57, v120")
        A("v_lshl_add_u32 v3, v123, 5, v3\nv_lshlrev_b32 v2, 8, v124\nv_lshl_add_u32 v4, v123, 4, v2")
        A("v_cmp_gt_u32 vcc, 2, v124")
        A("v_lshl_add_u32 v122, v123, 3, v2\nv_add_u32 v122, s57, v122")
        A("v_cndmask_b32 v3, v4, v3, vcc\nv_add_u32 v121, s57, v3\nv_mov_b32 v125, s57")
        repack(TRE)
        A("s_cmp_eq_u32 s53, 0\ns_cselect_b32 s15, s15, 0")
        kmf(2)
        A("v_mov_b32 v6, 0\nv_mov_b32 v7, 0")
        A("v_writelane_b32 v6, s15, 0")
        A(f"v_add_f32 v{KA}, v{KA}, v6")
        self.dstamp()
        KX = 32
        GV = 126
        A(f"s_mul_i32 s11, s52, 8320\ns_lshl_b32 s12, s53, 11\ns_add_u32 s12, s12, s11\ns_add_u32 s12, s12, {L_KF}")
        A("v_lshl_add_u32 v4, v0, 5, s12")
        A(f"s_mul_i32 s12, s53, 4160\ns_add_u32 s12, s12, s11\ns_add_u32 s12, s12, {L_KF+4096}")
        A("v_lshl_add_u32 v11, v0, 2, s12")
        self.get_tag(9, 2, 61, "L_s_tag")
        A("v_mov_b32 v1, v123\nv_mov_b32 v2, v124\nv_lshlrev_b32 v13, 4, v0\nv_mov_b32 v6, 0")
        A(f"s_mul_i32 s11, s52, 4608\ns_lshl_b32 s12, s53, 8\ns_sub_u32 s11, s11, s12\ns_add_u32 s11, s11, {L_UL+448-192}")
        A("v_lshlrev_b32 v3, 4, v2\nv_lshl_add_u32 v3, v1, 5, v3\nv_add_u32 v14, s11, v3")
        A("v_sub_u32 v3, 2031, v1\nv_lshrrev_b32 v3, 1, v3\nv_lshl_add_u32 v3, v2, 2, v3\nv_lshlrev_b32 v3, 2, v3")
        A("v_and_b32 v15, 1, v1\nv_xor_b32 v15, 1, v15\nv_mul_u32_u24 v15, 4160, v15\nv_add_u32 v3, v3, v15")
        A(f"s_mul_i32 s11, s52, 8320\ns_sub_u32 s11, s11, s12\ns_add_u32 s11, s11, {L_KF-192-512}")
        A("v_add_u32 v24, s11, v3")
        for sp in range(1, 4): A(f"v_subrev_u32 v{24+sp}, {1024*sp}, v24")
        A(f"v_lshlrev_b32 v16, 3, v0\nv_sub_u32 v16, s56, v16\nv_add_u32 v16, {638*4}, v16\nv_add_u32 v17, 8, v16")
        A(f"v_and_b32 v18, 7, v0\nv_lshl_add_u32 v19, v18, 2, v9")
        A("v_lshlrev_b32 v18, 2, v18\nv_mov_b32 v20, 0x66661188\nv_lshrrev_b32 v20, v18, v20\nv_and_b32 v20, 15, v20")
        A(f"s_lshr_b32 s10, s2, 4\ns_lshl_b32 s10, s10, 2\ns_add_u32 s10, s10, s60\ns_lshl_b32 s10, s10, 7\ns_add_u32 s10, s10, {WS_FU:#x}")
        self.flag_wait(8, "s10", "L_s_uw")
        A(f"s_lshl_b32 s10, s2, 13\ns_lshl_b32 s11, s60, 10\ns_add_u32 s10, s10, s11\ns_add_u32 s10, s10, {WS_UT:#x}\ns_mov_b32 m0, s58\ns_add_u32 s11, s10, 4096")
        A("buffer_load_dwordx4 v13, s[72:75], s10 offen sc1 lds")
        A("s_add_u32 m0, s58, 4608\ns_nop 0")
        A("buffer_load_dwordx4 v13, s[72:75], s11 offen sc1 lds")
        A("s_lshl_b32 s15, s55, 7\ns_lshl_b32 s9, s60, 5\ns_add_u32 s15, s15, s9\nv_lshl_add_u32 v3, v2, 3, s15")
        A("global_load_dwordx2 v[22:23], v3, s[42:43]")
        self.dstamp()
        A("s_setprio %d" % self.opt("slp", 1))
        self.lds_wait_ge(19, F_PX, "v20", 10, "L_s_lp")
        self.dstamp()
        A(f"ds_write_b128 v120, {v(KA,4)}")
        A(f"ds_write_b128 v121, {v(KA+4,4)} offset:1024")
        A(f"s_mov_b32 exec_hi, 1\nds_write_b64 v122, {v(KA+8,2)} offset:2048")
        A(f"s_mov_b32 exec_hi, 0\nds_write_b64 v122, {v(KA+10,2)} offset:2176")
        A(f"s_mov_b64 exec, 1\nds_write_b32 v125, v7 offset:{700*4}\nds_add_u32 v9, v8 offset:{F_KS}")
        A("s_mov_b64 exec, 0xff\nds_write_b32 v11, v7\ns_mov_b64 exec, -1")
        self.lds_wait_ge(9, F_KS, 4, 10, "L_s_ks")
        A("s_cmp_eq_u32 s53, 0\ns_cbranch_scc1 L_s_g0")
        for i in range(17):
            A(f"ds_read2st64_b32 {v(GV+2*i,2)}, v{GA+i} offset0:0 offset1:11")
            if i == 13: A("s_waitcnt lgkmcnt(8)")
        A("s_waitcnt lgkmcnt(8)")
        for i in range(17):
            if i == 9: A("s_waitcnt lgkmcnt(0)")
            A(f"v_add_f32 v{GV+2*i}, v{GV+2*i}, v{GV+2*i+1}")
        for i in range(8): A(f"v_cvt_pk_bf16_f32 v{KX+i}, v{GV+4*i}, v{GV+4*i+2}")
        for i in range(8): A(f"v_cvt_pk_bf16_f32 v{KX+8+i}, v{GV+4*i+2}, v{GV+4*i+4}")
        A("s_branch L_s_gj")
        A("L_s_g0:")
        A(f"ds_read_b64 {v(GV,2)}, v16\nds_read_b64 {v(GV+2,2)}, v16 offset:2816\nds_read2st64_b32 {v(GV+4,2)}, v17 offset0:0 offset1:11")
        A("s_waitcnt lgkmcnt(0)")
        A(f"v_add_f32 v{GV}, v{GV}, v{GV+2}\nv_add_f32 v{GV+1}, v{GV+1}, v{GV+3}\nv_add_f32 v{GV+2}, v{GV+4}, v{GV+5}")
        seq = [GV+2]*4 + [GV+1]*7 + [GV]*6
        for i in range(8): A(f"v_cvt_pk_bf16_f32 v{KX+i}, v{seq[2*i]}, v{seq[2*i+1]}")
        for i in range(8): A(f"v_cvt_pk_bf16_f32 v{KX+8+i}, v{seq[2*i+1]}, v{seq[2*i+2]}")
        A("L_s_gj:")
        A(f"ds_write_b128 v4, {v(KX,4)}\nds_write_b128 v4, {v(KX+4,4)} offset:16")
        A(f"ds_write_b128 v4, {v(KX+8,4)} offset:4160\nds_write_b128 v4, {v(KX+12,4)} offset:4176")
        A("s_waitcnt vmcnt(0)")
        A(f"s_mov_b64 exec, 1\nds_add_u32 v9, v8 offset:{F_SB}\ns_mov_b64 exec, -1")
        self.lds_wait_ge(9, F_SB, 4, 10, "L_sb")
        A("s_setprio %d" % self.opt("scv", 1))
        self.dstamp()
        CA = 28; KR = 60; UB = [92, 124]
        lg = Cnt(A, "lgkmcnt", 15)
        def uread(rr, T):
            lg.op(f"ds_read_b128 {v(UB[rr&1]+4*T,4)}, v14 offset:{64*(3-rr)+512*T}", ("u", rr, T))
        def kread(rr, sg):
            o = 16*(3-rr) + (128 if (sg & 1) == 0 else 0)
            lg.op(f"ds_read2_b32 {v(KR+4*sg,2)}, v{24+(sg>>1)} offset0:{o} offset1:{o+1}", None)
            lg.op(f"ds_read2_b32 {v(KR+4*sg+2,2)}, v{24+(sg>>1)} offset0:{o+2} offset1:{o+3}", ("k", rr, sg))
        kread(0, 0)
        for T in range(8): uread(0, T)
        kread(0, 1); kread(0, 2)
        for rr in range(4):
            pend = []
            for sg in range(8):
                if rr == 0 and sg + 3 < 8: pend.append(("k", 0, sg+3))
                if rr < 3 and sg >= 1: pend.append(("k", rr+1, sg-1))
                if rr > 0 and sg == 0: pend.append(("k", rr, 7))
                if rr < 3 and sg == 1: pend += [("u", rr+1, T) for T in range(4)]
                if rr < 3 and sg == 2: pend += [("u", rr+1, T) for T in range(4, 8)]
                lg.need(("k", rr, sg))
                for T in range(8 - sg):
                    lg.need(("u", rr, T))
                    first = (rr == 0 and sg == 0)
                    acc = v(CA+4*(sg+T), 4)
                    A(f"v_mfma_f32_16x16x32_bf16 {acc}, {v(UB[rr&1]+4*T,4)}, {v(KR+4*sg,4)}, {'0' if first else acc}")
                    if pend:
                        if len(lg.q) > 13:
                            A("s_waitcnt lgkmcnt(8)"); lg.q = lg.q[-8:]
                        x = pend.pop(0)
                        (kread if x[0] == "k" else uread)(x[1], x[2])
                if rr == 3 and sg == 1:
                    A("s_waitcnt lgkmcnt(0)"); lg.q = []
                    A(f"s_mov_b64 exec, 1\nds_add_u32 v9, v8 offset:{F_SB}\ns_mov_b64 exec, -1")
            assert not pend
        self.dstamp()
        A("s_setprio %d" % self.opt("sxp", 1))
        A(f"s_lshl_b32 s11, s60, 12\ns_add_u32 s12, s11, {L_KF}\nv_add_u32 v4, s12, v13")
        A(f"s_xor_b32 s11, s11, 8192\ns_add_u32 s58, s11, {L_KF}\nv_add_u32 v5, s58, v13")
        self.lds_wait_ge(9, F_SB, 8, 10, "L_s_kd")
        A(f"s_lshl_b32 s10, s2, 13\ns_lshl_b32 s11, s52, 12\ns_add_u32 s10, s10, s11\ns_lshl_b32 s11, s53, 11\ns_add_u32 s10, s10, s11\ns_add_u32 s10, s10, {WS_A:#x}")
        A("s_cmp_eq_u32 s53, 0\ns_cbranch_scc1 L_s_x0")
        def xchg(send, keep):
            for q in range(4): A(f"ds_write_b128 v4, {v(send+4*q,4)} offset:{q*1024}")
            A(f"s_mov_b64 exec, 1\nds_add_u32 v9, v8 offset:{F_SB}\ns_mov_b64 exec, -1")
            A("v_and_b32 v3, 7, v0\nv_lshlrev_b32 v3, 4, v3\nv_lshl_add_u32 v3, v2, 7, v3\nv_bfe_u32 v6, v0, 3, 1\nv_lshl_add_u32 v6, v6, 9, v3")
            self.lds_wait_ge(9, F_SB, 12, 10, "L_s_xw")
            for q in range(4): A(f"ds_read_b128 {v(60+4*q,4)}, v5 offset:{q*1024}")
            for q in range(4):
                A(f"s_waitcnt lgkmcnt({3-q})")
                for r in range(4): A(f"v_add_f32 v{60+4*q+r}, v{60+4*q+r}, v{keep+4*q+r}")
        xchg(CA, CA+16)
        A("s_branch L_s_xj")
        A("L_s_x0:")
        xchg(CA+16, CA)
        A("L_s_xj:")
        for i in range(8): A(f"v_cvt_pk_bf16_f32 v{76+i}, v{60+2*i}, v{61+2*i}")
        for p in range(2):
            for i in range(2): A(f"v_mov_b32 v{84+2*p+i}, v{76+4*p+i}")
        for p in range(2):
            for i in range(2): A(f"v_mov_b32_dpp v{76+4*p+i}, v{78+4*p+i} row_ror:8 row_mask:0xf bank_mask:0xc")
            for i in range(2): A(f"v_mov_b32_dpp v{78+4*p+i}, v{84+2*p+i} row_ror:8 row_mask:0xf bank_mask:0x3")
            A(f"buffer_store_dwordx4 {v(76+4*p,4)}, v6, s[72:75], s10 offen offset:{1024*p} sc1")
        self.dstamp()
        A("s_lshl_b32 s10, s2, 1\ns_add_u32 s10, s10, s52\ns_lshr_b32 s11, s10, 6\ns_lshl_b32 s11, s11, 3\ns_lshl_b32 s12, s53, 2\ns_add_u32 s11, s11, s12\ns_bfe_u32 s12, s10, 0x20004\ns_add_u32 s11, s11, s12")
        A(f"s_lshl_b32 s11, s11, 7\ns_and_b32 s10, s10, 15\ns_lshl_b32 s10, s10, 2\ns_add_u32 s10, s10, s11\ns_add_u32 s56, s10, {WS_FA:#x}")
        A("s_lshl_b32 s10, s55, 3\ns_lshr_b32 s11, s59, 4\ns_lshl_b32 s11, s11, 2\ns_add_u32 s10, s10, s11\ns_add_u32 s10, s10, s60\ns_lshl_b32 s10, s10, 7")
        A(f"s_add_u32 s57, s10, {WS_FA:#x}\ns_lshl_b32 s10, s59, 7\ns_add_u32 s54, s10, {WS_FG:#x}")
        A("s_lshl_b32 s10, s55, 18\ns_lshl_b32 s11, s60, 16\ns_add_u32 s10, s10, s11\ns_lshl_b32 s11, s59, 7\ns_add_u32 s10, s10, s11")
        A(f"s_add_u32 s10, s10, {WS_A:#x}")
        for i in range(1, 4): A(f"s_add_u32 s{10+i}, s10, {4096*i}")
        A("v_lshlrev_b32 v3, 14, v2\nv_lshl_add_u32 v4, v1, 3, v3")
        A("v_and_b32 v3, 1, v1\nv_lshrrev_b32 v1, 1, v1\nv_lshl_add_u32 v1, v3, 3, v1")
        A(f"s_lshl_b32 s14, s59, 8\ns_add_u32 s14, s14, {WS_G:#x}")
        A("v_lshlrev_b32 v5, 4, v1")
        A("v_lshrrev_b32 v3, 1, v2\nv_lshlrev_b32 v3, 10, v3\nv_add_u32 v3, v3, v5\nv_and_b32 v6, 1, v2\nv_lshl_add_u32 v3, v6, 9, v3\nv_add_u32 v11, s58, v3")
        A(f"v_add_u32 v12, {L_OMG}, v5")
        A("s_waitcnt vmcnt(0)")
        self.flag_set("s56")
        self.dstamp()
        self.flag_wait(16, "s57", "L_s_aw", extra="s54")
        self.dstamp()
        for i in range(4): A(f"buffer_load_dwordx2 {v(32+2*i,2)}, v4, s[72:75], s{10+i} offen sc1")
        A("buffer_load_dwordx4 v[48:51], v5, s[72:75], s14 offen sc1")
        A("s_waitcnt vmcnt(0)")
        self.dstamp()
        A("v_lshlrev_b32 v60, 16, v22\nv_and_b32 v61, 0xffff0000, v22\nv_lshlrev_b32 v62, 16, v23\nv_and_b32 v63, 0xffff0000, v23")
        for r in range(4):
            for i in range(4):
                src = 32 + 2*i + (r >> 1)
                d = 64 + 4*r + i
                A(f"v_lshlrev_b32 v{d}, 16, v{src}" if (r & 1) == 0 else f"v_and_b32 v{d}, 0xffff0000, v{src}")
                A(f"v_sub_f32 v{d}, v{d}, v{60+i}")
                A(f"v_fma_f32 v{d}, v{48+r}, v{d}, v{60+i}")
            A(f"ds_write_b128 v11, {v(64+4*r,4)} offset:{(r>>1)*2048+(r&1)*256}")
        for r in range(4): A(f"v_sub_f32 v{80+r}, 1.0, v{48+r}")
        A("s_mov_b64 exec, 0xffff\nds_write_b128 v12, v[80:83]")
        A("s_waitcnt lgkmcnt(0)")
        self.dstamp()
        self.end()

    def build(self):
        self.prologue(); self.helper(); self.loader_x(); self.loader_w(); self.helper2(); self.loader_w2(); self.ssm(); self.consumer()
        self.A("L_end:\ns_endpgm\n.p2align 6\nL_tab:")
        self.A(".long " + ", ".join(str(i) for i in range(16)))
        self.A(f"L_codeend:\n.fill (33024-(L_codeend-{NAME}))/4, 4, 0xbf800000")
        return single(self.A.text(), 256, 64*NWAVES, LDS_TOTAL, 168, 102, 168)

if __name__ == "__main__":
    args = sys.argv[2:]
    open(sys.argv[1], "w").write(G(ts="ts" in args, opts=args).build())
```

```python
import sys, struct
from asmgen import *

WS_EPOCH = 0
WS_G     = 0x1000
WS_FH    = 0x8000
WS_FG    = 0xC000
WS_FU    = 0xD000
WS_FA    = 0xF000
WS_H     = 0x80000
WS_UT    = 0x600000
WS_A     = 0x800000
WS_END   = 0xA00000
WS_TS    = 0x2000000
EPC = 0x9E3779B9
TM  = 0x69969669

KB = 1024
XS = [44*KB, 72*KB, 100*KB, 0, 16*KB]
WSL = [32*KB, 60*KB, 88*KB, 116*KB]
L_MINI = 0
BLK = [4*KB, 28*KB, 52*KB, 76*KB, 100*KB]
BLKNEED = [5, 6, 7, 7, 8]
L_TA = 0
L_TB = 116*KB
L_KF = 128*KB
L_OMG = L_KF + 16640
L_UL = 148*KB + 32
L_KP = 52*KB
L_PAR = 128*KB
L_ST  = 132*KB
L_RED = 52*KB
L_OT  = 68*KB
L_FLAG = 163840 - 128
F_SB, F_KS, F_TAG, F_PX, F_PW, F_UD, F_FREE = 0, 4, 8, 16, 20, 24, 32
LDS_TOTAL = 163840
assert L_KP + 4*2816 <= L_FLAG
NWAVES = 12
LOG2E = 0x3fb8aa3b
INV2PI = 0x3e22f983
def f2h(x): return struct.unpack("<I", struct.pack("<f", x))[0]
def pack8(vals): return sum((x//4096) << (8*i) for i, x in enumerate(vals))

class Cnt:
    def __init__(self, A, name, mx): self.A = A; self.q = []; self.name = name; self.mx = mx; self.issued = set()
    def op(self, text, tag=None):
        self.A(text); self.q.append(tag); self.issued.add(tag)
        assert len(self.q) <= self.mx, "counter overflow"
    def need(self, tag):
        assert tag in self.issued, tag
        idx = [i for i, t in enumerate(self.q) if t == tag]
        if not idx: return
        n = len(self.q) - 1 - idx[-1]
        self.A(f"s_waitcnt {self.name}({min(n, self.mx)})")
        self.q = self.q[idx[-1]+1:]

class G:
    def __init__(self, ts=False, opts=()):
        self.A = Asm(); self.ts = ts; self.opts = set(opts); self.role = None; self.npt = 0
        self.amprole = "s" if "amps" in self.opts else "c"
    def opt(self, name, default):
        return int(([o[len(name):] for o in self.opts if o.startswith(name) and o[len(name):].isdigit()] + [default])[0])
    def dstamp(self):
        if self.role == self.amprole:
            self.npt += 1
            if self.npt == self.opt("amp", 0): self.A("s_memrealtime s[70:71]\ns_waitcnt lgkmcnt(0)")
        if not self.ts: return
        self.A("s_memtime s[64:65]\ns_mov_b32 s95, m0\ns_waitcnt lgkmcnt(0)\ns_sub_u32 s64, s64, s70\ns_mov_b32 m0, s67\ns_add_u32 s67, s67, 1\nv_writelane_b32 v167, s64, m0\ns_mov_b32 m0, s95\ns_nop 0")
    def dump_ts(self):
        A = self.A
        if not self.ts: return
        A("s_waitcnt lgkmcnt(0) vmcnt(0)")
        A("s_mov_b64 exec, -1")
        A("s_memrealtime s[64:65]\ns_memtime s[10:11]")
        srd(A, 4, 50, 1 << 28)
        A("s_waitcnt lgkmcnt(0)")
        A("v_writelane_b32 v167, s70, 61\ns_sub_u32 s10, s10, s70\nv_writelane_b32 v167, s10, 60")
        A("v_writelane_b32 v167, s68, 63")
        A("v_writelane_b32 v167, s64, 62")
        A("s_lshl_b32 s8, s2, 4\ns_add_u32 s8, s8, s3\ns_lshl_b32 s8, s8, 8")
        A(f"s_add_u32 s8, s8, {WS_TS:#x}")
        A("v_mbcnt_lo_u32_b32 v16, -1, 0\nv_mbcnt_hi_u32_b32 v16, -1, v16\nv_lshlrev_b32 v16, 2, v16")
        A("buffer_store_dword v167, v16, s[4:7], s8 offen")
        A("s_waitcnt vmcnt(0)")
    def end(self):
        if self.opt("amp", 0) and self.role == self.amprole:
            A = self.A; L = A.lab("L_amp")
            A("s_waitcnt vmcnt(0)\ns_memrealtime s[64:65]\ns_waitcnt lgkmcnt(0)")
            if self.opt("amp", 0) == 99: A("s_mov_b32 s70, s64")
            A("s_sub_u32 s70, s70, s68\ns_lshl_b32 s70, s70, 1\ns_min_u32 s70, s70, 20000")
            A(f"{L}:\ns_sleep 1\ns_memrealtime s[10:11]\ns_waitcnt lgkmcnt(0)\ns_sub_u32 s10, s10, s64\ns_cmp_lt_u32 s10, s70\ns_cbranch_scc1 {L}")
        self.dump_ts(); self.A("s_endpgm")

    def guard(self):
        self.A("s_add_u32 s66, s66, 0x1000\ns_cbranch_scc1 L_end")

    def lds_wait_ge(self, vaddr, off, target, vt, name, sleep=0):
        A = self.A; L = A.lab(name); L2 = A.lab(name)
        if sleep:
            A(f"s_branch {L2}\n{L}:\ns_sleep {sleep}\n{L2}:")
        else:
            A(f"{L}:")
        A(f"ds_read_b32 v{vt}, v{vaddr} offset:{off}")
        self.guard()
        A("s_waitcnt lgkmcnt(0)")
        A(f"v_cmp_gt_u32 vcc, {target}, v{vt}")
        A(f"s_cbranch_vccnz {L}")

    def get_tag(self, vaddr, vt, sdst, name):
        A = self.A; L = A.lab(name)
        A(f"{L}:")
        A(f"ds_read_b64 v[{vt}:{vt+1}], v{vaddr} offset:{F_TAG}")
        self.guard()
        A("s_waitcnt lgkmcnt(0)")
        A(f"v_readfirstlane_b32 s9, v{vt+1}")
        A(f"v_readfirstlane_b32 s62, v{vt}")
        A(f"s_cmp_eq_u32 s9, 0\ns_cbranch_scc1 {L}")
        A("s_mov_b32 s63, s62")

    def flag_wait(self, n, soff, name, base=16, extra=None):
        A = self.A; L = A.lab(name)
        A(f"{L}:")
        A(f"s_load_dwordx{n} s[{base}:{base+n-1}], s[50:51], {soff} glc")
        m = n
        if extra:
            A(f"s_load_dwordx2 s[{base+n}:{base+n+1}], s[50:51], {extra} glc"); m = n + 2
        self.guard()
        A("s_waitcnt lgkmcnt(0)")
        for k in range(0, m, 2): A(f"s_xor_b64 s[{base+k}:{base+k+1}], s[{base+k}:{base+k+1}], s[62:63]")
        for k in range(2, m, 2): A(f"s_or_b64 s[{base}:{base+1}], s[{base}:{base+1}], s[{base+k}:{base+k+1}]")
        A(f"s_cbranch_scc1 {L}")
    def flag_set(self, soff):
        self.A(f"s_mov_b32 s9, s62\ns_atomic_swap s9, s[50:51], {soff}")

    def map_m(self):
        if "lmap" in self.opts:
            self.A("s_and_b32 s56, s2, 7\ns_lshl_b32 s56, s56, 1\ns_bfe_u32 s54, s2, 0x10003\ns_add_u32 s56, s56, s54"); return
        self.A("s_bfe_u32 s56, s2, 0x20001\ns_lshl_b32 s56, s56, 2\ns_bfe_u32 s54, s2, 0x20003\ns_add_u32 s56, s56, s54")
    def map_n(self):
        if "lmap" in self.opts:
            self.A("s_lshr_b32 s57, s2, 4"); return
        self.A("s_and_b32 s57, s2, 1\ns_lshl_b32 s57, s57, 3\ns_lshr_b32 s55, s2, 5\ns_add_u32 s57, s57, s55")
    def map_tb(self):
        self.A("s_and_b32 s59, s2, 7\ns_lshl_b32 s59, s59, 2\ns_bfe_u32 s54, s2, 0x20003\ns_add_u32 s59, s59, s54\ns_lshr_b32 s55, s2, 5")
    def tabptr(self):
        A = self.A; L = A.lab("L_tp")
        A(f"s_getpc_b64 s[92:93]\n{L}:")
        A(f"s_add_u32 s92, s92, L_tab-{L}\ns_addc_u32 s93, s93, 0")
    def dmaflag(self, vreg, m0src=None):
        A = self.A
        if m0src is not None: A(f"s_mov_b32 m0, {m0src}")
        A("s_mov_b64 exec, 1")
        A(f"global_load_lds_dword v{vreg}, s[92:93]")
        A("s_mov_b64 exec, -1")

    def prologue(self):
        A = self.A
        if "rt" in self.opts or self.opt("amp", 0): A("s_memrealtime s[68:69]")
        if self.ts: A("s_memtime s[70:71]")
        A("s_load_dwordx16 s[16:31], s[0:1], 0")
        A("s_load_dwordx16 s[32:47], s[0:1], 64")
        A("s_load_dwordx4 s[48:51], s[0:1], 128")
        A("v_lshrrev_b32 v2, 6, v0")
        if self.ts or "rt" in self.opts: A("s_nop 0")
        else: A("s_cmpk_ge_u32 s2, 256\ns_cbranch_scc1 L_end")
        A("v_readfirstlane_b32 s3, v2")
        A("s_cmp_ge_u32 s3, 8\ns_cbranch_scc1 L_ssm")
        A("s_cmp_ge_u32 s3, 4\ns_cbranch_scc1 L_cons")
        A("s_cmp_lg_u32 s3, 0\ns_cbranch_scc1 L_disp")
        A("s_getpc_b64 s[8:9]")
        A("s_and_b32 s10, s2, 24\ns_lshl_b32 s10, s10, 10")
        A("v_lshl_add_u32 v1, v0, 7, s10")
        A("global_load_dword v14, v1, s[8:9]")
        A("s_lshl_b32 s10, s2, 9\ns_movk_i32 s11, 512")
        A("v_lshl_add_u32 v2, v0, 4, s10")
        A("s_lshl_b32 s10, s2, 13\nv_lshl_add_u32 v1, v0, 7, s10")
        A(f"s_mov_b32 m0, {L_PAR}")
        A("s_mov_b32 exec_lo, 0x07070707\ns_mov_b32 exec_hi, exec_lo")
        A("s_waitcnt lgkmcnt(0)")
        A("global_load_dword v15, v1, s[16:17]")
        A("s_mov_b32 exec_lo, -1\ns_mov_b32 exec_hi, 0")
        fill = ["s_movk_i32 s12, 2064", "s_mul_i32 s12, s12, s2", "v_lshl_add_u32 v3, v0, 6, s12", "global_load_dword v16, v3, s[36:37]", "s_nop 0", None]
        for i in range(6):
            A(f"global_load_lds_dwordx4 v2, s[{18+2*i}:{19+2*i}]")
            if fill[i]:
                A("s_add_u32 m0, m0, s11"); A(fill[i])
        A("s_mov_b64 exec, -1")
        A("L_disp:")
        A("v_and_b32 v0, 63, v0\ns_mov_b32 s66, 0")
        if self.ts: A("s_mov_b32 s67, 0\nv_mov_b32 v167, 0\ns_memrealtime s[68:69]")
        A("s_cmp_eq_u32 s3, 1\ns_cbranch_scc1 L_ldx")
        A("s_cmp_eq_u32 s3, 2\ns_cbranch_scc1 L_ldw")
    def entry(self):
        A = self.A
        A("v_and_b32 v0, 63, v0\ns_mov_b32 s66, 0")
        if self.ts: A("s_mov_b32 s67, 0\nv_mov_b32 v167, 0\ns_memrealtime s[68:69]")

    def free_issue(self):
        self.A(f"ds_read_b32 v20, v13")
    def free_check(self, target, name):
        A = self.A; L = A.lab(name); L2 = A.lab(name)
        chk = f"s_waitcnt lgkmcnt(0)\nv_cmp_gt_u32 vcc, {target}, v20\n"
        A(chk + f"s_cbranch_vccz {L2}")
        A(f"{L}:")
        self.free_issue()
        self.guard()
        A(chk + f"s_cbranch_vccnz {L}")
        A(f"{L2}:")
    def throttle(self):
        t = self.opt("thr", 0)
        if t: self.A(f"s_waitcnt vmcnt({t})")

    def loop_tail(self, p, depth):
        A = self.A
        A("v_add_u32 v9, 4, v9")
        self.dmaflag(9, "s94")
        if "lstamp" in self.opts: self.dstamp()
        A("s_add_u32 s12, s12, 1\ns_lshr_b64 s[96:97], s[96:97], 8")
        A(f"s_cmp_lg_u32 s12, {self.opt('lbar', 2)}\ns_cbranch_scc1 L_{p}_nb\ns_barrier")
        if "g2only" in self.opts: A("s_endpgm")
        A(f"L_{p}_nb:")
        A(f"s_cmp_lt_u32 s12, {depth}\ns_cbranch_scc1 L_{p}_loop")
        A(f"s_cmp_eq_u32 s12, 8\ns_cbranch_scc1 L_w2")
        A(f"s_sub_u32 s15, s12, {depth-1}")
        if "nofree" not in self.opts: self.free_check("s15", f"L_{p}_f")
        A(f"s_branch L_{p}_loop")

    def loader_x(self):
        A = self.A
        A("L_ldx:")
        self.tabptr()
        self.map_m()
        A("v_lshrrev_b32 v1, 3, v0\nv_lshrrev_b32 v2, 4, v0\nv_and_b32 v3, 7, v0\nv_xor_b32 v2, v3, v2\nv_lshlrev_b32 v1, 10, v1")
        A("v_lshl_add_u32 v4, v2, 4, v1")
        A("v_xor_b32 v5, 64, v4")
        A(f"v_add_u32 v5, {7*1024}, v5\nv_add_u32 v6, {14*1024}, v4\nv_add_u32 v7, {14*1024}, v5")
        A("s_lshl_b32 s10, s56, 17")
        xs = [XS[s % 5] for s in range(8)]
        A(f"s_mov_b32 s96, {pack8(xs[:4]):#x}\ns_mov_b32 s97, {pack8(xs[4:]):#x}")
        A(f"s_mov_b32 s94, {L_FLAG+F_PX}\ns_mov_b32 s12, 0\ns_mov_b32 s98, 0")
        A(f"v_mov_b32 v8, {L_FLAG}\nv_mov_b32 v9, 0\nv_and_b32 v13, 3, v0\nv_lshl_add_u32 v13, v13, 2, v8\nv_add_u32 v13, {F_FREE}, v13")
        A(f"s_mov_b64 exec, 1\nds_write_b32 v8, v9 offset:{F_PX}\ns_mov_b64 exec, -1")
        A("s_mov_b32 s6, 0x200000\ns_mov_b32 s7, 0x20000")
        A("s_waitcnt lgkmcnt(0)")
        A("s_mov_b32 s4, s16\ns_and_b32 s5, s17, 0xffff")
        self.dstamp()
        if self.opt("lprio", 0): A("s_setprio %d" % self.opt("lprio", 0))
        A("L_x_loop:")
        A("s_and_b32 s13, s96, 0xff\ns_lshl_b32 s13, s13, 12\ns_mov_b32 s14, s10")
        for g in range(4):
            A(f"s_add_u32 m0, s13, {g*4096}")
            if g: A(f"s_add_u32 s14, s14, 32768")
            else: A(f"s_add_u32 s10, s10, 128")
            if g == 3: self.free_issue()
            self.throttle()
            for j in range(4):
                A(f"buffer_load_dwordx4 v{4+j}, s[4:7], s14 offen offset:{j*1024} lds")
        self.loop_tail("x", 5)

    def loader_w(self):
        A = self.A
        A("L_ldw:")
        self.tabptr()
        A(f"v_mov_b32 v8, {L_FLAG}\nv_mov_b32 v9, 0\nv_lshl_add_u32 v3, v0, 2, v8")
        A("s_mov_b32 exec_hi, 0\ns_mov_b32 exec_lo, 0xffffffef\nds_write_b32 v3, v9\ns_mov_b64 exec, -1")
        self.map_n()
        for j in range(3):
            A(f"v_add_u32 v1, {64*j}, v0")
            A(f"v_mul_u32_u24 v2, 0xaaab, v1\nv_lshrrev_b32 v{24+j}, 19, v2")
            A(f"v_mul_u32_u24 v2, {2752-192}, v{24+j}")
            A(f"v_lshl_add_u32 v{4+j}, v0, 4, v2")
        A("s_mul_i32 s10, s57, 192")
        A(f"s_mov_b32 s53, {16*2752}")
        A(f"v_and_b32 v13, 3, v0\nv_lshl_add_u32 v13, v13, 2, v8\nv_add_u32 v13, {F_FREE}, v13")
        ws_ = [WSL[s % 4] for s in range(8)]
        A(f"s_mov_b32 s96, {pack8(ws_[:4]):#x}\ns_mov_b32 s97, s96")
        A(f"s_mov_b32 s94, {L_FLAG+F_PW}\ns_mov_b32 s12, 0\ns_mov_b32 s98, 1")
        A(f"s_mov_b32 s6, {512*2752}\ns_mov_b32 s7, 0x20000")
        A("s_waitcnt lgkmcnt(0)")
        A("s_mov_b32 s4, s36\ns_and_b32 s5, s37, 0xffff")
        A("s_cmp_eq_u32 s57, 15\ns_cbranch_scc1 L_ld_gate")
        A("L_ld_go:")
        self.dstamp()
        if self.opt("lprio", 0): A("s_setprio %d" % self.opt("lprio", 0))
        A("L_w_loop:")
        A("s_and_b32 s13, s96, 0xff\ns_lshl_b32 s13, s13, 12")
        for g in range(4):
            A(f"s_add_u32 m0, s13, {g*3072}")
            if g == 3: self.free_issue()
            else: A("s_nop 0")
            self.throttle()
            for j in range(3):
                A(f"buffer_load_dwordx4 v{4+j}, s[4:7], s10 offen offset:{j*1024} lds")
            A("s_add_u32 s10, s10, s53")
        self.loop_tail("w", 4)
        A("L_ld_gate:")
        A("s_sub_u32 s4, s44, 2048\ns_subb_u32 s5, s45, 0\ns_and_b32 s5, s5, 0xffff")
        A("s_mov_b32 s6, 3072\ns_mov_b32 s53, 32\ns_mov_b32 s10, 0")
        A("v_mov_b32 v15, 0x80000000")
        for j in range(3):
            A(f"v_add_u32 v1, {64*j}, v0")
            A(f"v_mul_u32_u24 v2, 12, v{24+j}\nv_sub_u32 v1, v1, v2")
            A(f"v_and_b32 v2, 1, v{24+j}")
            A("v_cmp_eq_u32 vcc, v1, v2")
            A(f"v_and_b32 v2, 14, v{24+j}\nv_lshlrev_b32 v2, 1, v2\nv_add_u32 v2, {2048-1024*j}, v2")
            A(f"v_cndmask_b32 v{4+j}, v15, v2, vcc")
        A("s_branch L_ld_go")

    def loader_w2(self):
        A = self.A
        A("L_w2:")
        A("v_lshrrev_b32 v1, 3, v0\nv_lshlrev_b32 v1, 10, v1")
        A("v_bfe_u32 v2, v0, 4, 1\nv_lshlrev_b32 v2, 2, v2\nv_and_b32 v3, 7, v0\nv_xor_b32 v2, v2, v3")
        A("v_lshl_add_u32 v16, v2, 4, v1")
        for j in range(1, 4): A(f"v_add_u32 v{16+j}, {7*1024*j}, v16")
        srd(A, 4, 40, 1376*1024)
        A("s_lshr_b32 s55, s2, 5\ns_lshl_b32 s10, s55, 7")
        A(f"s_lshl_b32 s14, s98, 14\ns_add_u32 s14, s14, s10\ns_add_u32 s14, s14, {1344*1024}")
        A(f"s_mul_i32 s11, s98, {7*96*1024}\ns_add_u32 s52, s10, s11\ns_add_u32 s53, s52, {7*96*1024}")
        A("s_mul_i32 s11, s98, 12288")
        if "norot" in self.opts: A("s_mov_b32 s55, 0")
        A(f"s_add_u32 s10, s55, 5\ns_cmp_ge_u32 s10, 7\ns_cselect_b32 s12, 7, 0\ns_sub_u32 s10, s10, s12\ns_mul_i32 s10, s10, {96*1024}\ns_add_u32 s10, s10, s52")
        RB = 32
        for k in range(6):
            for j in range(4):
                A(f"buffer_load_dwordx4 {v(RB+16*k+4*j,4)}, v{16+j}, s[4:7], s10 offen offset:{j*1024}")
            A("s_add_u32 s10, s10, 32768")
            if k % 3 == 2: A("s_cmp_eq_u32 s10, s53\ns_cselect_b32 s10, s52, s10")
        if "lstamp" in self.opts: self.dstamp()
        bl = [BLK[b] for b in range(5)] + [0, 0, 0]
        A(f"s_mov_b32 s96, {pack8(bl[:4]):#x}\ns_mov_b32 s97, {pack8(bl[4:]):#x}")
        nd = sum(x << (4*i) for i, x in enumerate(BLKNEED))
        A(f"s_mov_b32 s99, {nd:#x}")
        self.free_issue()
        self.free_check(self.opt("w2g", 8), "L_w2_m")
        A(f"s_lshl_b32 m0, s98, 11\ns_nop 0")
        for j in range(2):
            A(f"buffer_load_dwordx4 v{16+j}, s[4:7], s14 offen offset:{j*1024} lds")
        A("L_w2_loop:")
        A("s_and_b32 s13, s96, 0xff\ns_lshl_b32 s13, s13, 12\ns_add_u32 s13, s13, s11")
        for g in range(3):
            A(f"s_add_u32 m0, s13, {g*4096}")
            if g == 2: self.free_issue()
            else: A("s_nop 0")
            self.throttle()
            for j in range(4):
                A(f"buffer_load_dwordx4 v{16+j}, s[4:7], s10 offen offset:{j*1024} lds")
            A("s_add_u32 s10, s10, 32768")
        A("s_cmp_eq_u32 s10, s53\ns_cselect_b32 s10, s52, s10")
        A("v_add_u32 v9, 4, v9")
        self.dmaflag(9, "s94")
        if "lstamp" in self.opts: self.dstamp()
        A("s_lshr_b64 s[96:97], s[96:97], 8\ns_lshr_b32 s99, s99, 4")
        A("s_cbranch_scc0 L_w2_done")
        A("s_and_b32 s15, s99, 15")
        self.free_check("s15", "L_w2_f")
        A(f"s_cmp_lg_u32 s99, {nd >> 8:#x}\ns_cbranch_scc1 L_w2_loop")
        self.lds_wait_ge(8, F_SB, 4, 21, "L_w2_s")
        A("s_branch L_w2_loop")
        A("L_w2_done:")
        A("v_lshl_add_u32 v4, v0, 4, s11\nv_mov_b32 v5, s94")
        A("s_waitcnt vmcnt(0)")
        for bb in range(2):
            self.lds_wait_ge(13, 0, 9+bb, 20, "L_w2_r", sleep=1)
            for k in range(12): A(f"ds_write_b128 v4, {v(RB+48*bb+4*k,4)} offset:{BLK[bb]+1024*k}")
            A(f"v_mov_b32 v6, {14+bb}\ns_mov_b64 exec, 1\nds_write_b32 v5, v6\ns_mov_b64 exec, -1")
            if "lstamp" in self.opts: self.dstamp()
        A("s_waitcnt lgkmcnt(0)")
        self.dstamp()
        self.end()

    def helper(self):
        A = self.A
        A("s_cmp_eq_u32 s3, 0\ns_cbranch_scc1 L_h0")
        A("v_lshlrev_b32 v2, 21, v0\nv_add_u32 v2, 0x40, v2")
        A("s_waitcnt lgkmcnt(0)")
        A(f"s_load_dword s61, s[50:51], {WS_EPOCH}")
        A("s_mov_b64 exec, 0x1f")
        A("global_load_dword v70, v2, s[50:51]")
        A("s_lshr_b32 s10, s2, 5\ns_lshl_b32 s10, s10, 7\nv_mov_b32 v3, s10\ns_mov_b64 exec, 1")
        A("global_load_dword v71, v3, s[42:43]\nglobal_load_dword v72, v3, s[40:41]")
        A("s_mov_b64 exec, -1")
        A("s_branch L_h1")
        A("L_h0:")
        self.dstamp()
        A("s_waitcnt vmcnt(0)")
        self.dstamp()
        A("L_h1:")
        A("s_barrier")
        A("s_branch L_help2")
    def helper2(self):
        A = self.A
        A("L_help2:")
        A(f"v_mov_b32 v8, {L_FLAG}")
        A("s_and_b32 s60, s3, 1")
        A("s_cmp_eq_u32 s60, 0\ns_cbranch_scc1 L_h_nt")
        A("s_waitcnt lgkmcnt(0)")
        A(f"s_add_u32 s61, s61, {EPC:#x}")
        A("v_mov_b32 v2, s61\nv_mov_b32 v3, 1")
        A(f"s_mov_b64 exec, 1\nds_write_b64 v8, v[2:3] offset:{F_TAG}\ns_mov_b64 exec, -1")
        A("L_h_nt:")
        if "g2only" in self.opts: A("s_waitcnt lgkmcnt(0)\ns_endpgm")
        self.tabptr()
        srd(A, 72, 50, WS_END)
        A("s_lshr_b32 s59, s2, 3\ns_and_b32 s55, s2, 7")
        A("s_lshl_b32 s10, s59, 16\ns_lshl_b32 s11, s60, 6\ns_add_u32 s10, s10, s11\ns_lshl_b32 s11, s55, 7\ns_add_u32 s10, s10, s11")
        A("v_lshrrev_b32 v12, 3, v0\nv_bfe_u32 v4, v0, 2, 1\nv_lshl_add_u32 v4, v4, 5, v12\nv_and_b32 v11, 3, v0\nv_lshlrev_b32 v5, 4, v11\nv_lshl_add_u32 v4, v4, 10, v5")
        for j in range(1, 4): A(f"v_xor_b32 v{4+j}, {16*j}, v4\nv_add_u32 v{4+j}, {7*1024*j}, v{4+j}")
        A(f"s_lshl_b32 s11, s60, 12\ns_add_u32 s58, s11, {L_ST}\ns_mov_b32 m0, s58")
        srd(A, 4, 16, 2048*1024)
        npre = 0
        if self.opt("upub", 1): self.lds_wait_ge(8, F_PW, self.opt("upub", 1), 10, "L_h_u", sleep=1)
        A("s_setprio 3")
        for j in range(4): A(f"buffer_load_dwordx4 v{4+j}, s[4:7], s10 offen offset:{j*1024} lds")
        A("v_lshrrev_b32 v4, 5, v0\nv_xor_b32 v4, v4, v11\nv_lshlrev_b32 v4, 4, v4\nv_lshl_add_u32 v4, v11, 10, v4")
        A("v_bfe_u32 v5, v0, 2, 1\nv_lshl_add_u32 v4, v5, 6, v4\nv_bfe_u32 v5, v0, 3, 2\nv_lshl_add_u32 v4, v5, 2, v4\nv_add_u32 v24, s58, v4\nv_xor_b32 v25, 32, v24")
        A("v_and_b32 v4, 7, v0\nv_lshlrev_b32 v4, 4, v4\nv_lshl_add_u32 v28, v12, 13, v4")
        A("s_lshl_b32 s10, s55, 18\ns_lshl_b32 s12, s60, 17\ns_add_u32 s10, s10, s12\ns_lshl_b32 s12, s59, 7\ns_add_u32 s10, s10, s12")
        A(f"s_add_u32 s10, s10, {WS_UT:#x}\ns_add_u32 s11, s10, 4096\ns_add_u32 s52, s10, 0x10000\ns_add_u32 s53, s10, 0x11000")
        A("s_lshl_b32 s12, s55, 1\ns_add_u32 s12, s12, s60\ns_lshl_b32 s12, s12, 2\ns_lshr_b32 s13, s59, 3\ns_add_u32 s12, s12, s13\ns_lshl_b32 s12, s12, 7")
        A(f"s_and_b32 s13, s59, 7\ns_lshl_b32 s13, s13, 2\ns_add_u32 s12, s12, s13\ns_add_u32 s54, s12, {WS_FU:#x}")
        A("s_mov_b32 s12, 0x05040100\ns_mov_b32 s13, 0x07060302")
        self.get_tag(8, 2, 62, "L_h_tag")
        A(f"s_lshl_b32 s94, s60, 2\ns_add_u32 s94, s94, {L_FLAG+F_UD}\nv_mov_b32 v9, 4")
        A("s_waitcnt vmcnt(0)")
        self.dstamp()
        for it_ in range(2):
            for e in range(4): A(f"ds_read2_b32 {v(32+8*it_+2*e,2)}, v{24+it_} offset0:{64*e} offset1:{64*e+32}")
        for it_ in range(2):
            A(f"s_waitcnt lgkmcnt({4-4*it_})")
            for c_ in range(2):
                for e in range(4): A(f"v_perm_b32 v{48+8*it_+4*c_+e}, v{33+8*it_+2*e}, v{32+8*it_+2*e}, s{12+c_}")
                A(f"buffer_store_dwordx4 {v(48+8*it_+4*c_,4)}, v28, s[72:75], s{(10, 11, 52, 53)[2*it_+c_]} offen sc1")
        self.dmaflag(9, "s94")
        A("s_setprio 0")
        A("s_mul_i32 s14, s2, 5504\ns_mul_i32 s15, s60, 2752\ns_add_u32 s14, s14, s15\ns_add_u32 s12, s40, s14\ns_addc_u32 s13, s41, 0")
        if "notouch" not in self.opts:
            self.dstamp()
            for i in range(14): A(f"s_load_dword s{76+(i&15)}, s[12:13], {64*i}")
        A("s_waitcnt vmcnt(0)")
        self.flag_set("s54")
        if "notouch" not in self.opts:
            for i in range(14, 43): A(f"s_load_dword s{76+(i&15)}, s[12:13], {64*i}")
        A("s_waitcnt lgkmcnt(0)")
        self.dstamp()
        A("s_lshl_b32 s14, s2, 1\ns_add_u32 s14, s14, s60\ns_cmp_lg_u32 s14, 1\ns_cbranch_scc1 L_h_done")
        if "nopub" in self.opts or "nos" in self.opts: A("s_branch L_h_done")
        self.lds_wait_ge(8, F_PW, 8, 4, "L_h_q", sleep=4)
        A(f"v_lshlrev_b32 v4, 7, v0\nv_add_u32 v4, {WS_FU:#x}, v4")
        A("L_h_bump:")
        A("buffer_load_dwordx4 v[10:13], v4, s[72:75], 0 offen sc1\nbuffer_load_dwordx4 v[14:17], v4, s[72:75], 0 offen offset:16 sc1")
        A("s_waitcnt vmcnt(0)")
        for i in range(4): A(f"v_bitop3_b32 v{10+i}, v{10+2*i}, v{11+2*i}, v2 bitop3:0x7e")
        A("v_or3_b32 v10, v10, v11, v12\nv_or_b32 v10, v10, v13")
        A("v_cmp_ne_u32 vcc, 0, v10")
        A("s_cbranch_vccz L_h_ok")
        self.guard()
        A("s_sleep 16\ns_branch L_h_bump")
        A("L_h_ok:")
        A(f"v_mov_b32 v4, {WS_EPOCH}")
        A("s_mov_b64 exec, 1")
        A("buffer_store_dword v2, v4, s[72:75], 0 offen sc1")
        A("L_h_done:")
        A("s_waitcnt vmcnt(0) lgkmcnt(0)")
        if self.ts: self.lds_wait_ge(8, F_PW, 15, 4, "L_h_z", sleep=8)
        self.end()

    def kg_addr(self):
        A = self.A
        A(f"s_lshl_b32 s12, s52, 8\ns_lshl_b32 s13, s53, 7\ns_add_u32 s12, s12, s13\ns_add_u32 s12, s12, {L_PAR}")
        A("v_lshl_add_u32 v6, v0, 1, s12")
        A(f"s_lshl_b32 s12, s52, 1\ns_add_u32 s12, s12, {L_PAR+3072}\nv_mov_b32 v10, s12\nv_mov_b32 v1, {LOG2E:#x}")
    def kg_common(self, n, dsk=None):
        A = self.A
        A("ds_read_u16 v2, v10")
        for i in range(n): A(f"ds_read_u16 v{16+i}, v6 offset:{512*i}")
        if dsk: A(f"ds_read_u16 v{dsk}, v10 offset:4")
        A(f"s_waitcnt lgkmcnt({n + (1 if dsk else 0)})")
        A("v_lshlrev_b32 v2, 16, v2\nv_mul_f32 v2, v2, v1\nv_exp_f32 v2, v2")
        A("s_waitcnt lgkmcnt(0)")
        A("v_cvt_pk_bf16_f32 v2, v2, v2")
        for i in range(n): A(f"v_lshlrev_b32 v{16+i}, 16, v{16+i}")
        A("v_lshlrev_b32 v2, 16, v2")
    def cmul(self, d, a, b):
        A = self.A
        if "pk" in self.opts:
            A(f"v_pk_mul_f32 {v(d,2)}, {v(a,2)}, {v(b,2)} op_sel:[0,0] op_sel_hi:[1,0]")
            A(f"v_pk_fma_f32 {v(d,2)}, {v(a,2)}, {v(b,2)}, {v(d,2)} op_sel:[1,1,0] op_sel_hi:[0,1,1] neg_lo:[1,0,0]")
        else:
            A(f"v_mul_f32 v{d}, v{a}, v{b}\nv_mul_f32 v{d+1}, v{a+1}, v{b}")
            A(f"v_fma_f32 v{d}, -v{a+1}, v{b+1}, v{d}\nv_fmac_f32 v{d+1}, v{a}, v{b+1}")
    def direct(self, d, L):
        A = self.A
        if L != 1:
            A(f"v_mul_f32 v3, {f2h(float(L)):#x}, v16\nv_mul_f32 v7, {f2h(float(L)):#x}, v17")
            A("v_exp_f32 v3, v3\nv_fract_f32 v7, v7")
        else:
            A("v_exp_f32 v3, v16\nv_fract_f32 v7, v17")
        A(f"v_cos_f32 v{d}, v7\nv_sin_f32 v{d+1}, v7")
        A(f"v_mul_f32 v{d}, v3, v{d}\nv_mul_f32 v{d+1}, v3, v{d+1}")
    PK = 64
    def put(self, row, src, neg=False):
        if row & 1 == 0:
            self.prev = src; return
        p = self.prev; n = '-' if neg else ''; PK = self.PK
        self.A(f"v_cvt_pk_bf16_f32 v{PK+(row>>1)}, v{p}, v{src}")
        self.A(f"v_cvt_pk_bf16_f32 v{PK+8+(row>>1)}, {n}v{p+1}, {n}v{src+1}")
    def flush(self, tb, hh):
        PK = self.PK; a = 4 + hh
        self.A(f"ds_write_b128 v{a}, {v(PK+4*hh,4)} offset:{4096*tb+1024*hh}")
        self.A(f"ds_write_b128 v{a}, {v(PK+8+4*hh,4)} offset:{4096*tb+1024*(2+hh)}")
    def chain(self, va, vb, acc, fr):
        A = self.A
        lg = Cnt(A, "lgkmcnt", 15)
        def rd(q):
            o = (q >> 2)*16384 + (q & 3)*256; b = fr + 8*(q % 3)
            for h in range(2): lg.op(f"ds_read_b64_tr_b16 {v(b+2*h,2)}, v{va} offset:{o+2048*h}", q)
            for h in range(2): lg.op(f"ds_read_b64_tr_b16 {v(b+4+2*h,2)}, v{vb} offset:{o+2048*h}", q)
        for q in range(3): rd(q)
        for q in range(8):
            b = fr + 8*(q % 3)
            lg.need(q)
            A(f"v_mfma_f32_16x16x32_bf16 {v(acc,4)}, {v(b,4)}, {v(b+4,4)}, {v(acc,4) if q else '0'}")
            if q + 3 < 8: rd(q+3)
    def tr_addr(self, d):
        A = self.A
        A(f"v_lshrrev_b32 v{d}, 2, v0\nv_lshlrev_b32 v{d}, 4, v{d}\nv_and_b32 v3, 1, v0\nv_lshl_add_u32 v{d}, v3, 3, v{d}")
        A(f"v_bfe_u32 v3, v0, 1, 1\nv_mul_u32_u24 v3, 1152, v3\nv_xor_b32 v{d}, v{d}, v3")

    def consumer(self):
        A = self.A
        ACC = 16
        FR = [64, 80, 96, 112]
        A(".p2align 8")
        A("L_cons:")
        self.role = "c"
        self.entry()
        A("s_sub_u32 s60, s3, 4")
        A("s_and_b32 s52, s60, 1\ns_lshr_b32 s53, s60, 1")
        A(f"v_mov_b32 v9, {L_FLAG}")
        B0 = FR[3]
        self.map_n(); self.map_m()
        A("v_and_b32 v129, 31, v0\nv_lshrrev_b32 v130, 5, v0")
        A("s_mul_i32 s10, s57, 192")
        A("v_lshlrev_b32 v13, 1, v0")
        A("s_waitcnt lgkmcnt(0)")
        srd(A, 4, 38, 1376*2)
        A(f"buffer_load_ushort v{B0+8}, v13, s[4:7], s10 offen")
        A(f"buffer_load_ushort v{B0+12}, v13, s[4:7], s10 offen offset:128")
        for q in (1, 2, 3, 5, 6, 7, 9, 10, 11, 13, 14, 15): A(f"v_mov_b32 v{B0+q}, 0")
        A(f"v_mul_u32_u24 v{B0+4}, 0x3f80, v130\nv_sub_u32 v{B0}, 0x3f80, v{B0+4}")
        A("v_mov_b32 v1, v129")
        A("v_bfe_u32 v3, v0, 1, 3\nv_xor_b32 v3, v3, v130\nv_lshlrev_b32 v3, 4, v3\nv_lshl_add_u32 v3, v1, 7, v3")
        A("s_lshl_b32 s10, s60, 12")
        A("v_add_u32 v134, s10, v3")
        for st in range(1, 4): A(f"v_xor_b32 v{134+st}, {st*32}, v134")
        A("v_bfe_u32 v3, v0, 2, 2\nv_lshl_add_u32 v3, v130, 3, v3\nv_mul_u32_u24 v3, 192, v3")
        A("v_bfe_u32 v8, v0, 4, 1\nv_lshl_add_u32 v3, v8, 5, v3")
        A("v_and_b32 v8, 3, v0\nv_lshl_add_u32 v138, v8, 3, v3")
        for q in range(4): A(f"v_add_u32 v{4+q}, {XS[0]}, v{134+q}")
        A(f"v_add_u32 v8, {WSL[0]}, v138")
        xs = [XS[s % 5] for s in range(1, 9)]; ws_ = [WSL[s % 4] for s in range(1, 9)]
        A(f"s_mov_b32 s96, {pack8(xs[:4]):#x}\ns_mov_b32 s97, {pack8(xs[4:]):#x}\ns_mov_b32 s98, {pack8(ws_[:4]):#x}\ns_mov_b32 s99, s98")
        A(f"v_and_b32 v11, 1, v0\nv_lshl_add_u32 v11, v11, 2, v9\nv_add_u32 v11, {F_PX}, v11")
        self.tabptr()
        A(f"s_lshl_b32 s94, s60, 2\ns_add_u32 s94, s94, {L_FLAG+F_FREE}\ns_mov_b32 m0, s94\nv_mov_b32 v14, 0")
        srd(A, 72, 50, WS_END)
        A("v_lshlrev_b32 v13, 4, v0")
        if "noc" in self.opts:
            A(f"v_mov_b32 v12, 100\ns_lshl_b32 s10, s60, 2\nv_add_u32 v11, s10, v9\nds_write_b32 v11, v12 offset:{F_FREE}")
            self.end()
        A("s_lshl_b32 s10, s56, 2\ns_add_u32 s58, s10, s60")
        A("s_mul_i32 s10, s58, 86\ns_mul_i32 s11, s57, 6\ns_add_u32 s10, s10, s11\ns_lshl_b32 s10, s10, 10")
        A(f"s_add_u32 s76, s10, {WS_H:#x}\ns_add_u32 s77, s76, 4096")
        A("s_cmp_ge_u32 s57, 7\ns_cselect_b32 s10, 100, 0\ns_lshl_b32 s11, s57, 2\ns_add_u32 s10, s10, s11\ns_lshl_b32 s11, s58, 8\ns_add_u32 s10, s10, s11")
        A(f"s_add_u32 s100, s10, {WS_FH:#x}")
        self.map_tb()
        A(f"s_lshl_b32 s10, s59, 1\ns_add_u32 s10, s10, s52\ns_lshl_b32 s10, s10, 1\ns_add_u32 s10, s10, s53\ns_lshl_b32 s10, s10, 7\ns_add_u32 s101, s10, {WS_FH:#x}")
        A("s_load_dword s16, s[50:51], s101 glc")
        A("s_setprio %d" % self.opt("cprio", 2))
        self.dstamp()
        A("s_barrier")
        A("s_waitcnt vmcnt(0)")
        for fb, (a_, b_) in enumerate(((8, 0), (8, 4), (12, 0))):
            A(f"v_mfma_f32_32x32x16_bf16 {v(ACC+16*fb,16)}, {v(B0+a_,4)}, {v(B0+b_,4)}, 0")
        self.get_tag(9, 2, 61, "L_c_tag")
        def reads(st):
            buf = FR[st]
            out = [f"ds_read_b128 {v(buf,4)}, v{4+st}"]
            for fb in range(3):
                for h in range(2):
                    out.append(f"ds_read_b64_tr_b16 {v(buf+4+4*fb+2*h,2)}, v8 offset:{st*3072+h*768+fb*64}")
            return out
        def mfmas(st):
            buf = FR[st]
            return [f"v_mfma_f32_32x32x16_bf16 {v(ACC+16*fb,16)}, {v(buf+4+4*fb,4)}, {v(buf,4)}, {v(ACC+16*fb,16)}" for fb in range(3)]
        FLAGRD = "ds_read_b32 v10, v11"
        if "g2only" in self.opts:
            A(f"v_mov_b32 v12, 100\nv_lshl_add_u32 v10, v0, 2, v9\ns_mov_b64 exec, 0xff\nds_write_b32 v10, v12 offset:{F_PX}\ns_mov_b64 exec, -1\ns_sleep 64\ns_branch L_c_e1done")
        A("s_mov_b32 s12, 1")
        self.dstamp()
        A("L_c_poll:")
        self.lds_wait_ge(11, 0, "s12", 10, "L_c_p0")
        if "cstamp" in self.opts: self.dstamp()
        A("L_c_rd:")
        for r in reads(0): A(r)
        for r in reads(1): A(r)
        A(".p2align 3")
        A("L_c_loop:")
        ms, rs = mfmas(0), reads(2)
        A("s_waitcnt lgkmcnt(7)")
        A(ms[0]); A(FLAGRD); A(rs[0]); A(rs[1]); A("s_add_u32 s12, s12, 1")
        A(ms[1]); A(rs[2]); A(rs[3]); A(rs[4]); A("s_cmp_eq_u32 s12, 9\ns_cselect_b32 s12, -1, s12")
        A(ms[2]); A(rs[5]); A(rs[6]); A("s_and_b32 s13, s96, 0xff\ns_and_b32 s15, s98, 0xff")
        ms, rs = mfmas(1), reads(3)
        A("s_waitcnt lgkmcnt(7)")
        A(ms[0]); A("s_lshl_b32 s13, s13, 12\ns_lshl_b32 s15, s15, 12"); A(rs[0]); A(rs[1]); A(rs[2])
        A(ms[1]); A("v_cmp_gt_u32 vcc, s12, v10"); A(rs[3]); A(rs[4]); A(rs[5]); A(rs[6])
        A(ms[2])
        A("v_add_u32 v4, s13, v134\nv_add_u32 v5, s13, v135\nv_add_u32 v8, s15, v138")
        A("s_cbranch_vccnz L_c_slow")
        ms, rs = mfmas(2), reads(0)
        A("s_waitcnt lgkmcnt(7)")
        A(ms[0]); A(rs[0]); A(rs[1]); A("v_add_u32 v6, s13, v136\nv_add_u32 v7, s13, v137")
        A(ms[1]); A(rs[2]); A(rs[3]); A(rs[4]); A("v_add_u32 v14, 4, v14")
        A(ms[2]); A(rs[5]); A(rs[6]); A("s_lshr_b64 s[96:97], s[96:97], 8\ns_lshr_b64 s[98:99], s[98:99], 8")
        ms, rs = mfmas(3), reads(1)
        A("s_waitcnt lgkmcnt(7)")
        A(ms[0])
        if "noflag" not in self.opts: self.dmaflag(14)
        A(rs[0]); A(rs[1])
        A(ms[1]); A(rs[2]); A(rs[3]); A(rs[4])
        A(ms[2]); A(rs[5]); A(rs[6])
        A("s_branch L_c_loop")
        A("L_c_slow:")
        A("s_waitcnt lgkmcnt(7)")
        ms = mfmas(2)
        A(ms[0]); A("v_add_u32 v6, s13, v136\nv_add_u32 v7, s13, v137\nv_add_u32 v14, 4, v14")
        A(ms[1])
        A("s_waitcnt lgkmcnt(0)")
        if "noflag" not in self.opts: self.dmaflag(14)
        A(FLAGRD)
        A(ms[2])
        A("s_lshr_b64 s[96:97], s[96:97], 8\ns_lshr_b64 s[98:99], s[98:99], 8")
        ms = mfmas(3)
        A(ms[0]); A(ms[1])
        A("s_waitcnt lgkmcnt(0)\nv_cmp_gt_u32 vcc, s12, v10")
        A(ms[2])
        A("s_cbranch_vccz L_c_rd")
        A("s_cmp_lg_u32 s12, -1\ns_cbranch_scc1 L_c_poll")
        self.dstamp()
        A("s_cmp_eq_u32 s57, 15\ns_cbranch_scc1 L_c_gate")
        A("s_nop 4")
        for fb in range(3):
            if fb == 1: A("s_cmp_eq_u32 s57, 14\ns_cbranch_scc1 L_c_e1done")
            for hs in range(2):
                o = 64 + 8*fb + 4*hs
                for q in range(8):
                    r0 = ACC + 16*fb + 8*hs + q
                    A(f"v_mul_f32 v{r0}, v{r0}, abs(v{r0})")
                for q in range(4):
                    r0 = ACC + 16*fb + 8*hs + 2*q
                    A(f"v_cvt_pk_bf16_f32 v{o+q}, v{r0}, v{r0+1}")
                for q in range(4): A(f"v_pk_max_i16 v{o+q}, v{o+q}, 0")
                idx = 2*fb + hs
                A(f"buffer_store_dwordx4 {v(o,4)}, v13, s[72:75], s{76 if idx < 4 else 77} offen offset:{(idx&3)*1024} sc1")
        A("s_branch L_c_e1done")
        A("L_c_gate:")
        A("s_nop 7")
        A(f"v_add_f32 v64, v{ACC}, v{ACC+5}")
        A(f"v_mul_f32 v64, {LOG2E ^ 0x80000000:#x}, v64")
        A("v_exp_f32 v64, v64")
        A("v_and_b32 v65, 15, v0")
        A("v_add_f32 v64, 1.0, v64")
        A("v_rcp_f32 v64, v64")
        A("s_lshr_b32 s10, s58, 1\ns_and_b32 s11, s58, 1\ns_lshl_b32 s12, s10, 7\ns_lshl_b32 s13, s11, 2\ns_add_u32 s12, s12, s13")
        A(f"s_add_u32 s100, s12, {WS_FG:#x}\ns_lshl_b32 s10, s12, 1\ns_add_u32 s10, s10, {WS_G:#x}")
        A("v_bfe_u32 v66, v0, 4, 1\nv_lshlrev_b32 v66, 2, v66\nv_lshl_add_u32 v66, v65, 4, v66")
        A("s_mov_b32 exec_hi, 0")
        A("buffer_store_dword v64, v66, s[72:75], s10 offen sc1")
        A("s_mov_b64 exec, -1")
        A("L_c_e1done:")
        self.dstamp()
        self.gemm2()

    def gemm2(self):
        A = self.A
        AC2 = 16
        NH = self.opt("nh", 16); HB = 48
        WF = [HB+4*NH+8*i for i in range(4)]
        AX = WF[3] + 8
        assert AX + 12 <= 167
        MI, FRA, FRV, RW, RR, RE, RO, OW, OR_, OG = AX, AX+2, AX+3, AX+4, AX+5, AX+6, AX+7, AX+8, AX+9, AX+10
        A("v_lshrrev_b32 v2, 5, v0\nv_bfe_u32 v3, v0, 2, 2\nv_lshl_add_u32 v2, v2, 2, v3\nv_lshlrev_b32 v2, 7, v2")
        A("v_bfe_u32 v3, v0, 3, 1\nv_xor_b32 v3, s53, v3\nv_lshl_add_u32 v2, v3, 6, v2")
        A("v_bfe_u32 v3, v0, 4, 1\nv_lshl_add_u32 v2, v3, 5, v2")
        A("v_and_b32 v3, 3, v0\nv_lshl_add_u32 v2, v3, 3, v2")
        A("s_mul_i32 s10, s53, 12288")
        A("v_add_u32 v4, s10, v2\nv_xor_b32 v5, 64, v4")
        A(f"v_add_u32 v6, {52*KB}, v4\nv_add_u32 v7, {52*KB}, v5")
        A("s_lshl_b32 s10, s53, 11")
        A(f"v_add_u32 v{MI}, s10, v2\nv_xor_b32 v{MI+1}, 64, v{MI}")
        A("s_lshl_b32 s10, s59, 1\ns_add_u32 s10, s10, s52\ns_mul_i32 s10, s10, 86")
        A("s_add_u32 s11, s10, s53\ns_add_u32 s11, s11, 84\ns_lshl_b32 s11, s11, 10")
        A(f"s_add_u32 s76, s11, {WS_H:#x}")
        A("s_mul_i32 s11, s53, 42\ns_add_u32 s10, s10, s11\ns_lshl_b32 s10, s10, 10")
        A(f"s_add_u32 s77, s10, {WS_H:#x}")
        A(f"v_and_b32 v{FRA}, 3, v0\nv_lshl_add_u32 v{FRA}, v{FRA}, 2, v9")
        A(f"s_lshl_b32 s10, s53, 2\ns_add_u32 s10, s10, {L_FLAG+F_PX}\nv_mov_b32 v11, s10")
        A("v_mov_b32 v8, s94\nv_mov_b32 v12, 8")
        A("s_mov_b32 s10, 0" if "norot" in self.opts else "s_cmp_eq_u32 s55, 7\ns_cselect_b32 s10, 0, s55")
        A(f"s_mul_i32 s10, s10, 6144\ns_add_u32 s10, s10, s77\ns_add_u32 s11, s77, {7*6144}")
        for g in range(7):
            A(f"s_mov_b32 s{78+2*g}, s10\ns_add_u32 s{79+2*g}, s10, 4096")
            if g < 6: A("s_add_u32 s10, s10, 6144\ns_cmp_eq_u32 s10, s11\ns_cselect_b32 s10, s77, s10")
        A("s_lshl_b32 s10, s60, 12")
        A(f"s_add_u32 s11, s10, {L_RED}\nv_add_u32 v{RW}, s11, v13")
        A(f"s_xor_b32 s11, s10, 8192\ns_add_u32 s11, s11, {L_RED}\nv_add_u32 v{RR}, s11, v13")
        A(f"s_xor_b32 s11, s53, 1\ns_lshl_b32 s11, s11, 13\ns_lshl_b32 s12, s52, 11\ns_add_u32 s11, s11, s12\ns_add_u32 s11, s11, {L_KF}\nv_add_u32 v{RE}, s11, v13")
        A(f"s_lshl_b32 s11, s52, 3\ns_add_u32 s11, s11, {L_OMG}\nv_and_b32 v2, 15, v0\nv_lshl_add_u32 v2, v2, 4, s11\nv_bfe_u32 v3, v0, 4, 1\nv_lshl_add_u32 v{RO}, v3, 2, v2")
        A("s_mul_i32 s10, s60, 2560")
        A(f"s_add_u32 s10, s10, {L_OT}")
        A(f"v_mul_u32_u24 v2, 80, v1\nv_lshrrev_b32 v3, 5, v0\nv_lshl_add_u32 v2, v3, 3, v2\nv_add_u32 v{OW}, s10, v2")
        A(f"v_lshrrev_b32 v3, 2, v0\nv_mul_u32_u24 v2, 80, v3\nv_and_b32 v10, 3, v0\nv_lshl_add_u32 v2, v10, 4, v2\nv_add_u32 v{OR_}, s10, v2")
        A(f"v_lshlrev_b32 v3, 10, v3\nv_lshl_add_u32 v{OG}, v10, 4, v3")
        srd(A, 4, 46, 2048*1024)
        A("s_lshl_b32 s10, s59, 1\ns_add_u32 s10, s10, s52\ns_lshl_b32 s10, s10, 15")
        A("s_lshl_b32 s11, s55, 7\ns_add_u32 s10, s10, s11\ns_lshl_b32 s11, s53, 6\ns_add_u32 s96, s10, s11")
        A("s_add_u32 s97, s96, 16384")
        A("s_waitcnt vmcnt(0)")
        self.flag_set("s100")
        A("s_cmp_lg_u32 s57, 14\ns_cbranch_scc1 L_g2_f1\ns_sub_u32 s100, s100, 128\ns_mov_b32 s8, s62\ns_atomic_swap s8, s[50:51], s100\nL_g2_f1:")
        self.dstamp()
        if "g2only" not in self.opts: self.flag_wait(8, "s101", "L_g2_w")
        self.dstamp()
        def hload(q):
            r = HB + 4*(q % NH)
            if q == 42: return f"buffer_load_dwordx4 {v(r,4)}, v13, s[72:75], s76 offen sc1"
            g, s_ = divmod(q, 6)
            return f"buffer_load_dwordx4 {v(r,4)}, v13, s[72:75], s{78+2*g+(s_>>2)} offen offset:{(s_&3)*1024} sc1"
        vm = Cnt(A, "vmcnt", 63); lg = Cnt(A, "lgkmcnt", 15)
        N0 = self.opt("hpre", 10)
        def wreads(q):
            buf = WF[q & 3]; o = []
            for db in range(2):
                for h in range(2):
                    if q == 42: a, off = MI+db, L_MINI + h*1024
                    else:
                        b, s_ = divmod(q, 6); base = BLK[b % 5]
                        hi = base >= 52*KB
                        a = 4 + db + (2 if hi else 0); off = base - (52*KB if hi else 0) + s_*2048 + h*1024
                    o.append(f"ds_read_b64_tr_b16 {v(buf+4*db+2*h,2)}, v{a} offset:{off}")
            return o
        progs = []
        def progcheck(b):
            Lp, Lr = A.lab("L_g2_pp"), A.lab("L_g2_pr")
            A(f"s_cbranch_vccnz {Lp}")
            A(f"{Lr}:")
            progs.append((Lp, Lr, 9+b))
        for q in range(4): vm.op(hload(q), q)
        self.lds_wait_ge(11, 0, 9, 10, "L_g2_p0")
        for q in range(3):
            for r in wreads(q): lg.op(r, ("w", q))
        for q in range(4, N0): vm.op(hload(q), q)
        nxt = N0
        for q in range(43):
            g, s_ = divmod(q, 6)
            buf = WF[q & 3]; hr = HB + 4*(q % NH)
            cin = [v(AC2+16*db,16) if q else "0" for db in range(2)]
            vm.need(q)
            if q == 0: self.dstamp()
            lg.need(("w", q))
            A(f"v_mfma_f32_32x32x16_bf16 {v(AC2+16,16)}, {v(buf+4,4)}, {v(hr,4)}, {cin[1]}")
            if s_ == 5 and g < 4 and "g2only" not in self.opts:
                A("v_add_u32 v12, 1, v12\ns_mov_b64 exec, 1")
                lg.op("ds_write_b32 v8, v12")
                A("s_mov_b64 exec, -1")
            if s_ == 0 and g < 6: lg.op("ds_read_b32 v10, v11", "flag")
            if q == 38: lg.op(f"ds_read_b32 v{FRV}, v{FRA} offset:{F_FREE}", "free")
            if s_ == 2 and g < 6:
                lg.need("flag"); A(f"v_cmp_gt_u32 vcc, {10+g}, v10")
            if s_ == 3 and g < 6: progcheck(g+1)
            rs = wreads(q+3) if q+3 <= 42 else []
            for r in rs[:2]: lg.op(r, ("w", q+3))
            if nxt <= 42 and nxt - q < NH: vm.op(hload(nxt), nxt); nxt += 1
            A(f"v_mfma_f32_32x32x16_bf16 {v(AC2,16)}, {v(buf,4)}, {v(hr,4)}, {cin[0]}")
            for r in rs[2:]: lg.op(r, ("w", q+3))
            if nxt <= 42 and nxt - q < NH and q < NH - N0: vm.op(hload(nxt), nxt); nxt += 1
            if q == 41:
                lg.need("free"); A(f"v_cmp_gt_u32 vcc, 12, v{FRV}")
        self.dstamp()
        A("s_cbranch_vccz L_g2_red")
        self.lds_wait_ge(FRA, F_FREE, 12, FRV, "L_g2_fw")
        A("L_g2_red:")
        A("s_nop 9")
        for q in range(4): A(f"ds_write_b128 v{RW}, {v(AC2+16+4*q,4)} offset:{q*1024}")
        A("s_waitcnt lgkmcnt(0)")
        A("s_barrier")
        self.dstamp()
        A(f"ds_read_b32 v8, v{RO}")
        for q in range(4):
            A(f"ds_read_b128 {v(48+4*q,4)}, v{RR} offset:{q*1024}")
            A(f"ds_read_b128 {v(64+4*q,4)}, v{RE} offset:{(q>>1)*4096+(q&1)*1024}")
        for q in range(4):
            A(f"s_waitcnt lgkmcnt({6-q})")
            for r in range(0, 4, 2):
                A(f"v_pk_add_f32 {v(AC2+4*q+r,2)}, {v(AC2+4*q+r,2)}, {v(48+4*q+r,2)}")
            for r in range(0, 4, 2):
                A(f"v_pk_fma_f32 {v(64+4*q+r,2)}, {v(AC2+4*q+r,2)}, v[8:9], {v(64+4*q+r,2)} op_sel_hi:[1,0,1]")
            A(f"v_cvt_pk_bf16_f32 v{80+2*q}, v{64+4*q}, v{64+4*q+1}")
            A(f"v_cvt_pk_bf16_f32 v{81+2*q}, v{64+4*q+2}, v{64+4*q+3}")
            A(f"ds_write_b64 v{OW}, {v(80+2*q,2)} offset:{16*q}")
        A(f"ds_read_b128 v[88:91], v{OR_}\nds_read_b128 v[92:95], v{OR_} offset:1280")
        A("s_waitcnt lgkmcnt(1)")
        A(f"buffer_store_dwordx4 v[88:91], v{OG}, s[4:7], s96 offen sc1")
        A("s_waitcnt lgkmcnt(0)")
        A(f"buffer_store_dwordx4 v[92:95], v{OG}, s[4:7], s97 offen sc1")
        self.dstamp()
        if self.ts:
            A("s_waitcnt vmcnt(0)")
            self.dstamp()
        if "rt" in self.opts:
            A("s_waitcnt vmcnt(0)\ns_memrealtime s[64:65]\ns_lshl_b32 s8, s2, 2\ns_add_u32 s8, s8, s60\ns_lshl_b32 s8, s8, 3")
            A(f"s_add_u32 s8, s8, {WS_TS:#x}\nv_mov_b32 v4, s8\ns_waitcnt lgkmcnt(0)")
            A("v_mov_b32 v2, s68\nv_mov_b32 v3, s64\ns_mov_b64 exec, 1\nglobal_store_dwordx2 v4, v[2:3], s[50:51]")
        self.end()
        for Lp, Lr, n in progs:
            A(f"{Lp}:")
            self.lds_wait_ge(11, 0, n, 10, "L_g2_pw")
            A(f"s_branch {Lr}")

    def sbar(self, k):
        A = self.A
        A("s_waitcnt lgkmcnt(0)")
        A(f"s_mov_b64 exec, 1\nds_add_u32 v9, v8 offset:{F_SB}\ns_mov_b64 exec, -1")
        self.lds_wait_ge(9, F_SB, 4*k, 10, "L_sb")

    def ssm(self):
        A = self.A
        A(".p2align 8")
        A("L_ssm:")
        self.role = "s"
        self.entry()
        A("s_sub_u32 s60, s3, 8")
        A("s_and_b32 s52, s60, 1\ns_lshr_b32 s53, s60, 1")
        A("s_lshl_b32 s13, s2, 2")
        A("s_lshl_b32 s10, s2, 13\ns_lshl_b32 s11, s60, 11\ns_add_u32 s10, s10, s11")
        A("s_mul_i32 s11, s2, 688\ns_and_b32 s11, s11, 0xffffffc0\ns_mul_i32 s12, s60, 192\ns_add_u32 s11, s11, s12\ns_min_u32 s11, s11, 175936")
        A("s_waitcnt lgkmcnt(0)")
        A("s_load_dword s14, s[30:31], s13\ns_load_dword s15, s[32:33], s13")
        A("s_add_u32 s96, s16, s10\ns_addc_u32 s97, s17, 0\ns_add_u32 s98, s36, s11\ns_addc_u32 s99, s37, 0")
        A("s_add_u32 s98, s98, %d\ns_addc_u32 s99, s99, 0" % (3*176128))
        pfq = []
        if "notouch" not in self.opts:
            for sl in range(3, 8):
                for r in range(2):
                    for h in range(2): pfq.append(f"s[96:97], {1024*r+128*sl+64*h}")
                for k in range(3): pfq.append(f"s[98:99], {176128*(sl-3)+64*k}")
        pfn = [0]
        def pf(n):
            for _ in range(n):
                if pfq:
                    A(f"s_load_dword s{76+(pfn[0]&15)}, {pfq.pop(0)}"); pfn[0] += 1
        pf(12)
        A("s_setprio %d" % self.opt("sprio", 1))
        self.map_tb()
        A(f"s_lshl_b32 s11, s60, 10\ns_add_u32 s58, s11, {L_UL+480}")
        A(f"v_mov_b32 v9, {L_FLAG}\nv_mov_b32 v8, 1")
        srd(A, 72, 50, WS_END)
        A("v_and_b32 v123, 15, v0\nv_lshrrev_b32 v124, 4, v0")
        SEL = 158
        A("v_and_b32 v1, 31, v0\nv_lshrrev_b32 v2, 5, v0\nv_lshlrev_b32 v2, 4, v2\nv_sub_u32 v1, v1, v2")
        A("v_and_b32 v2, 1, v1\nv_lshlrev_b32 v2, 4, v2\nv_mov_b32 v3, 0x3f80\nv_lshlrev_b32 v2, v2, v3\nv_ashrrev_i32 v1, 1, v1")
        for j in range(8):
            A(f"v_cmp_eq_u32 vcc, {j}, v1\ns_nop 1\nv_cndmask_b32 v{SEL+j}, 0, v2, vcc")
        A(f"s_lshl_b32 s12, s52, 8\ns_lshl_b32 s13, s53, 7\ns_add_u32 s12, s12, s13\ns_add_u32 s12, s12, {L_PAR}")
        A("v_lshl_add_u32 v6, v0, 1, s12")
        A(f"s_mul_i32 s12, s52, 4608\ns_add_u32 s12, s12, {L_UL}\nv_lshl_add_u32 v12, v0, 3, s12\nv_mov_b64 v[2:3], 0")
        A("s_mov_b32 exec_hi, 0x0fffffff\nds_write_b64 v12, v[2:3]\ns_mov_b64 exec, -1")
        GA = 100
        A(f"s_mul_i32 s11, s52, 5632\ns_add_u32 s11, s11, {L_KP}")
        A("v_lshlrev_b32 v1, 4, v0\nv_sub_u32 v1, 1023, v1\nv_cvt_f32_i32 v7, v1")
        for i in range(17):
            A(f"v_subrev_u32 v2, {i}, v1")
            A(f"v_subrev_f32 v3, {f2h(float(i)):#x}, v7")
            A("v_cvt_pk_bf16_f32 v3, v3, 0")
            A("v_min_i32 v2, 128, v2")
            A("v_subrev_u32 v3, 0x4280, v3")
            A("v_max_i32 v3, v3, v2")
            if i == 16: A("v_min_u32 v3, 700, v3")
            A(f"v_lshl_add_u32 v{GA+i}, v3, 2, s11")
        A("s_barrier")
        if "stop0" in self.opts or "g2only" in self.opts: A("s_endpgm")
        for i in range(6): A(f"ds_read_u16 v{16+i}, v6 offset:{512*i}")
        A("s_waitcnt lgkmcnt(0)")
        self.dstamp()
        pf(14)
        A("s_lshl_b32 s11, s52, 4\ns_lshr_b32 s14, s14, s11\ns_lshl_b32 s14, s14, 16\ns_lshr_b32 s15, s15, s11\ns_lshl_b32 s15, s15, 16")
        A(f"v_mov_b32 v1, {LOG2E:#x}\nv_mul_f32 v2, s14, v1\nv_exp_f32 v2, v2")
        for i in range(6): A(f"v_lshlrev_b32 v{16+i}, 16, v{16+i}")
        A("v_cvt_pk_bf16_f32 v2, v2, v2\nv_lshlrev_b32 v2, 16, v2")
        A("v_mul_f32 v16, v2, v16\nv_mul_f32 v17, v2, v17\nv_mul_f32 v18, v2, v18\nv_mul_f32 v19, v2, v19")
        A(f"v_mul_f32 v16, v1, v16\nv_mul_f32 v17, {INV2PI:#x}, v17")
        E1, E16, E256, PA, PB, ONE, BS = 22, 24, 26, 28, 30, 4, [46, 48]
        PK, BF, TRE, TIM, KA = self.PK, 80, 126, 142, 50
        def ep(k): return E1 if k == 1 else (32 + k - 2 if k % 2 == 0 else PA)
        def tr(dre, hh):
            for d, p in ((dre, PK), (TIM, PK+8)):
                A(f"v_mfma_f32_32x32x16_bf16 {v(d,16)}, {v(p+4*hh,4)}, {v(SEL+4*hh,4)}, {v(d,16) if hh else '0'}")
        def repack(dre):
            for q in range(4):
                A(f"v_cvt_pk_bf16_f32 v{dre+4*q}, v{dre+4*q}, v{dre+4*q+1}\nv_cvt_pk_bf16_f32 v{dre+4*q+1}, v{dre+4*q+2}, v{dre+4*q+3}")
            for q in range(4):
                A(f"v_cvt_pk_bf16_f32 v{dre+4*q+2}, v{TIM+4*q}, v{TIM+4*q+1}\nv_cvt_pk_bf16_f32 v{dre+4*q+3}, v{TIM+4*q+2}, v{TIM+4*q+3}")
        def kmf(k):
            for q in range(4):
                A(f"v_mfma_f32_16x16x32_bf16 {v(KA+4*k,4)}, {v(TRE+4*q,4)}, {v(BF+4*q,4)}, {v(KA+4*k,4) if q else '0'}")
        self.direct(E16, 16)
        self.cmul(PA, 20, 18)
        cur, nxt = PA, PB
        for b in range(16):
            self.put(b, cur, neg=True)
            if b < 15:
                self.cmul(nxt, cur, E16); cur, nxt = nxt, cur
            if b == 7: tr(BF, 0)
        self.direct(E1, 1)
        tr(BF, 1)
        pf(99)
        A(f"v_mov_b32 v{ONE}, 1.0\nv_mov_b32 v{ONE+1}, 0")
        self.put(0, ONE); self.put(1, E1)
        for k in range(2, 16):
            self.cmul(ep(k), ep(k-1), E1); self.put(k, ep(k))
            if k == 7: repack(BF)
            if k == 8: tr(TRE, 0)
        self.direct(E256, 256)
        tr(TRE, 1)
        self.put(0, E256)
        for r in range(1, 8):
            self.cmul(PA if r & 1 else PB, E256, ep(2*r)); self.put(r, PA if r & 1 else PB)
        repack(TRE)
        self.cmul(BS[0], E256, E256)
        kmf(0)
        tr(TRE, 0)
        for a_ in range(2):
            self.put(8+4*a_, BS[a_])
            for r in range(1, 4):
                self.cmul(PA if r & 1 else PB, BS[a_], ep(4*r)); self.put(8+4*a_+r, PA if r & 1 else PB)
            self.cmul(BS[1-a_], BS[a_], E256)
        tr(TRE, 1)
        cur = 0
        for a_ in range(4):
            self.put(2*a_, BS[cur])
            self.cmul(PA, BS[cur], ep(8)); self.put(2*a_+1, PA)
            self.cmul(BS[1-cur], BS[cur], E256); cur = 1-cur
        repack(TRE)
        self.put(8, BS[cur]); self.put(9, BS[cur])
        kmf(1)
        tr(TRE, 0); tr(TRE, 1)
        A(f"s_mul_i32 s11, s52, 5632\ns_mul_i32 s12, s53, 2816\ns_add_u32 s57, s11, s12\ns_add_u32 s57, s57, {L_KP}\ns_add_u32 s56, s11, {L_KP}")
        A("v_lshlrev_b32 v3, 4, v124\nv_lshl_add_u32 v120, v123, 6, v3\nv_add_u32 v120, s57, v120")
        A("v_lshl_add_u32 v3, v123, 5, v3\nv_lshlrev_b32 v2, 8, v124\nv_lshl_add_u32 v4, v123, 4, v2")
        A("v_cmp_gt_u32 vcc, 2, v124")
        A("v_lshl_add_u32 v122, v123, 3, v2\nv_add_u32 v122, s57, v122")
        A("v_cndmask_b32 v3, v4, v3, vcc\nv_add_u32 v121, s57, v3\nv_mov_b32 v125, s57")
        repack(TRE)
        A("s_cmp_eq_u32 s53, 0\ns_cselect_b32 s15, s15, 0")
        kmf(2)
        A("v_mov_b32 v6, 0\nv_mov_b32 v7, 0")
        A("v_writelane_b32 v6, s15, 0")
        A(f"v_add_f32 v{KA}, v{KA}, v6")
        self.dstamp()
        KX = 32
        GV = 126
        A(f"s_mul_i32 s11, s52, 8320\ns_lshl_b32 s12, s53, 11\ns_add_u32 s12, s12, s11\ns_add_u32 s12, s12, {L_KF}")
        A("v_lshl_add_u32 v4, v0, 5, s12")
        A(f"s_mul_i32 s12, s53, 4160\ns_add_u32 s12, s12, s11\ns_add_u32 s12, s12, {L_KF+4096}")
        A("v_lshl_add_u32 v11, v0, 2, s12")
        self.get_tag(9, 2, 61, "L_s_tag")
        A("v_mov_b32 v1, v123\nv_mov_b32 v2, v124\nv_lshlrev_b32 v13, 4, v0\nv_mov_b32 v6, 0")
        A(f"s_mul_i32 s11, s52, 4608\ns_lshl_b32 s12, s53, 8\ns_sub_u32 s11, s11, s12\ns_add_u32 s11, s11, {L_UL+448-192}")
        A("v_lshlrev_b32 v3, 4, v2\nv_lshl_add_u32 v3, v1, 5, v3\nv_add_u32 v14, s11, v3")
        A("v_sub_u32 v3, 2031, v1\nv_lshrrev_b32 v3, 1, v3\nv_lshl_add_u32 v3, v2, 2, v3\nv_lshlrev_b32 v3, 2, v3")
        A("v_and_b32 v15, 1, v1\nv_xor_b32 v15, 1, v15\nv_mul_u32_u24 v15, 4160, v15\nv_add_u32 v3, v3, v15")
        A(f"s_mul_i32 s11, s52, 8320\ns_sub_u32 s11, s11, s12\ns_add_u32 s11, s11, {L_KF-192-512}")
        A("v_add_u32 v24, s11, v3")
        for sp in range(1, 4): A(f"v_subrev_u32 v{24+sp}, {1024*sp}, v24")
        A(f"v_lshlrev_b32 v16, 3, v0\nv_sub_u32 v16, s56, v16\nv_add_u32 v16, {638*4}, v16\nv_add_u32 v17, 8, v16")
        A(f"v_and_b32 v18, 7, v0\nv_lshl_add_u32 v19, v18, 2, v9")
        A("v_lshlrev_b32 v18, 2, v18\nv_mov_b32 v20, 0x66661188\nv_lshrrev_b32 v20, v18, v20\nv_and_b32 v20, 15, v20")
        A(f"s_lshr_b32 s10, s2, 4\ns_lshl_b32 s10, s10, 2\ns_add_u32 s10, s10, s60\ns_lshl_b32 s10, s10, 7\ns_add_u32 s10, s10, {WS_FU:#x}")
        self.flag_wait(8, "s10", "L_s_uw")
        A(f"s_lshl_b32 s10, s2, 13\ns_lshl_b32 s11, s60, 10\ns_add_u32 s10, s10, s11\ns_add_u32 s10, s10, {WS_UT:#x}\ns_mov_b32 m0, s58\ns_add_u32 s11, s10, 4096")
        A("buffer_load_dwordx4 v13, s[72:75], s10 offen sc1 lds")
        A("s_add_u32 m0, s58, 4608\ns_nop 0")
        A("buffer_load_dwordx4 v13, s[72:75], s11 offen sc1 lds")
        A("s_lshl_b32 s15, s55, 7\ns_lshl_b32 s9, s60, 5\ns_add_u32 s15, s15, s9\nv_lshl_add_u32 v3, v2, 3, s15")
        A("global_load_dwordx2 v[22:23], v3, s[42:43]")
        self.dstamp()
        A("s_setprio %d" % self.opt("slp", 3))
        self.lds_wait_ge(19, F_PX, "v20", 10, "L_s_lp")
        self.dstamp()
        A(f"ds_write_b128 v120, {v(KA,4)}")
        A(f"ds_write_b128 v121, {v(KA+4,4)} offset:1024")
        A(f"s_mov_b32 exec_hi, 1\nds_write_b64 v122, {v(KA+8,2)} offset:2048")
        A(f"s_mov_b32 exec_hi, 0\nds_write_b64 v122, {v(KA+10,2)} offset:2176")
        A(f"s_mov_b64 exec, 1\nds_write_b32 v125, v7 offset:{700*4}\nds_add_u32 v9, v8 offset:{F_KS}")
        A("s_mov_b64 exec, 0xff\nds_write_b32 v11, v7\ns_mov_b64 exec, -1")
        self.lds_wait_ge(9, F_KS, 4, 10, "L_s_ks")
        A("s_cmp_eq_u32 s53, 0\ns_cbranch_scc1 L_s_g0")
        for i in range(17):
            A(f"ds_read2st64_b32 {v(GV+2*i,2)}, v{GA+i} offset0:0 offset1:11")
            if i == 13: A("s_waitcnt lgkmcnt(8)")
        A("s_waitcnt lgkmcnt(8)")
        for i in range(17):
            if i == 9: A("s_waitcnt lgkmcnt(0)")
            A(f"v_add_f32 v{GV+2*i}, v{GV+2*i}, v{GV+2*i+1}")
        for i in range(8): A(f"v_cvt_pk_bf16_f32 v{KX+i}, v{GV+4*i}, v{GV+4*i+2}")
        for i in range(8): A(f"v_cvt_pk_bf16_f32 v{KX+8+i}, v{GV+4*i+2}, v{GV+4*i+4}")
        A("s_branch L_s_gj")
        A("L_s_g0:")
        A(f"ds_read_b64 {v(GV,2)}, v16\nds_read_b64 {v(GV+2,2)}, v16 offset:2816\nds_read2st64_b32 {v(GV+4,2)}, v17 offset0:0 offset1:11")
        A("s_waitcnt lgkmcnt(0)")
        A(f"v_add_f32 v{GV}, v{GV}, v{GV+2}\nv_add_f32 v{GV+1}, v{GV+1}, v{GV+3}\nv_add_f32 v{GV+2}, v{GV+4}, v{GV+5}")
        seq = [GV+2]*4 + [GV+1]*7 + [GV]*6
        for i in range(8): A(f"v_cvt_pk_bf16_f32 v{KX+i}, v{seq[2*i]}, v{seq[2*i+1]}")
        for i in range(8): A(f"v_cvt_pk_bf16_f32 v{KX+8+i}, v{seq[2*i+1]}, v{seq[2*i+2]}")
        A("L_s_gj:")
        A(f"ds_write_b128 v4, {v(KX,4)}\nds_write_b128 v4, {v(KX+4,4)} offset:16")
        A(f"ds_write_b128 v4, {v(KX+8,4)} offset:4160\nds_write_b128 v4, {v(KX+12,4)} offset:4176")
        A("s_waitcnt vmcnt(0)")
        A(f"s_mov_b64 exec, 1\nds_add_u32 v9, v8 offset:{F_SB}\ns_mov_b64 exec, -1")
        self.lds_wait_ge(9, F_SB, 4, 10, "L_sb")
        A("s_setprio %d" % self.opt("scv", 3))
        self.dstamp()
        CA = 28; KR = 60; UB = [92, 124]
        lg = Cnt(A, "lgkmcnt", 15)
        def uread(rr, T):
            lg.op(f"ds_read_b128 {v(UB[rr&1]+4*T,4)}, v14 offset:{64*(3-rr)+512*T}", ("u", rr, T))
        def kread(rr, sg):
            o = 16*(3-rr) + (128 if (sg & 1) == 0 else 0)
            lg.op(f"ds_read2_b32 {v(KR+4*sg,2)}, v{24+(sg>>1)} offset0:{o} offset1:{o+1}", None)
            lg.op(f"ds_read2_b32 {v(KR+4*sg+2,2)}, v{24+(sg>>1)} offset0:{o+2} offset1:{o+3}", ("k", rr, sg))
        kread(0, 0)
        for T in range(8): uread(0, T)
        kread(0, 1); kread(0, 2)
        for rr in range(4):
            pend = []
            for sg in range(8):
                if rr == 0 and sg + 3 < 8: pend.append(("k", 0, sg+3))
                if rr < 3 and sg >= 1: pend.append(("k", rr+1, sg-1))
                if rr > 0 and sg == 0: pend.append(("k", rr, 7))
                if rr < 3 and sg == 1: pend += [("u", rr+1, T) for T in range(4)]
                if rr < 3 and sg == 2: pend += [("u", rr+1, T) for T in range(4, 8)]
                lg.need(("k", rr, sg))
                for T in range(8 - sg):
                    lg.need(("u", rr, T))
                    first = (rr == 0 and sg == 0)
                    acc = v(CA+4*(sg+T), 4)
                    A(f"v_mfma_f32_16x16x32_bf16 {acc}, {v(UB[rr&1]+4*T,4)}, {v(KR+4*sg,4)}, {'0' if first else acc}")
                    if pend:
                        if len(lg.q) > 13:
                            A("s_waitcnt lgkmcnt(8)"); lg.q = lg.q[-8:]
                        x = pend.pop(0)
                        (kread if x[0] == "k" else uread)(x[1], x[2])
                if rr == 3 and sg == 1:
                    A("s_waitcnt lgkmcnt(0)"); lg.q = []
                    A(f"s_mov_b64 exec, 1\nds_add_u32 v9, v8 offset:{F_SB}\ns_mov_b64 exec, -1")
            assert not pend
        self.dstamp()
        A("s_setprio %d" % self.opt("sxp", 3))
        A(f"s_lshl_b32 s11, s60, 12\ns_add_u32 s12, s11, {L_KF}\nv_add_u32 v4, s12, v13")
        A(f"s_xor_b32 s11, s11, 8192\ns_add_u32 s58, s11, {L_KF}\nv_add_u32 v5, s58, v13")
        self.lds_wait_ge(9, F_SB, 8, 10, "L_s_kd")
        A(f"s_lshl_b32 s10, s2, 13\ns_lshl_b32 s11, s52, 12\ns_add_u32 s10, s10, s11\ns_lshl_b32 s11, s53, 11\ns_add_u32 s10, s10, s11\ns_add_u32 s10, s10, {WS_A:#x}")
        A("s_cmp_eq_u32 s53, 0\ns_cbranch_scc1 L_s_x0")
        def xchg(send, keep):
            for q in range(4): A(f"ds_write_b128 v4, {v(send+4*q,4)} offset:{q*1024}")
            A(f"s_mov_b64 exec, 1\nds_add_u32 v9, v8 offset:{F_SB}\ns_mov_b64 exec, -1")
            A("v_and_b32 v3, 7, v0\nv_lshlrev_b32 v3, 4, v3\nv_lshl_add_u32 v3, v2, 7, v3\nv_bfe_u32 v6, v0, 3, 1\nv_lshl_add_u32 v6, v6, 9, v3")
            self.lds_wait_ge(9, F_SB, 12, 10, "L_s_xw")
            for q in range(4): A(f"ds_read_b128 {v(60+4*q,4)}, v5 offset:{q*1024}")
            for q in range(4):
                A(f"s_waitcnt lgkmcnt({3-q})")
                for r in range(4): A(f"v_add_f32 v{60+4*q+r}, v{60+4*q+r}, v{keep+4*q+r}")
        xchg(CA, CA+16)
        A("s_branch L_s_xj")
        A("L_s_x0:")
        xchg(CA+16, CA)
        A("L_s_xj:")
        for i in range(8): A(f"v_cvt_pk_bf16_f32 v{76+i}, v{60+2*i}, v{61+2*i}")
        for p in range(2):
            for i in range(2): A(f"v_mov_b32 v{84+2*p+i}, v{76+4*p+i}")
        for p in range(2):
            for i in range(2): A(f"v_mov_b32_dpp v{76+4*p+i}, v{78+4*p+i} row_ror:8 row_mask:0xf bank_mask:0xc")
            for i in range(2): A(f"v_mov_b32_dpp v{78+4*p+i}, v{84+2*p+i} row_ror:8 row_mask:0xf bank_mask:0x3")
            A(f"buffer_store_dwordx4 {v(76+4*p,4)}, v6, s[72:75], s10 offen offset:{1024*p} sc1")
        self.dstamp()
        A("s_lshl_b32 s10, s2, 1\ns_add_u32 s10, s10, s52\ns_lshr_b32 s11, s10, 6\ns_lshl_b32 s11, s11, 3\ns_lshl_b32 s12, s53, 2\ns_add_u32 s11, s11, s12\ns_bfe_u32 s12, s10, 0x20004\ns_add_u32 s11, s11, s12")
        A(f"s_lshl_b32 s11, s11, 7\ns_and_b32 s10, s10, 15\ns_lshl_b32 s10, s10, 2\ns_add_u32 s10, s10, s11\ns_add_u32 s56, s10, {WS_FA:#x}")
        A("s_lshl_b32 s10, s55, 3\ns_lshr_b32 s11, s59, 4\ns_lshl_b32 s11, s11, 2\ns_add_u32 s10, s10, s11\ns_add_u32 s10, s10, s60\ns_lshl_b32 s10, s10, 7")
        A(f"s_add_u32 s57, s10, {WS_FA:#x}\ns_lshl_b32 s10, s59, 7\ns_add_u32 s54, s10, {WS_FG:#x}")
        A("s_lshl_b32 s10, s55, 18\ns_lshl_b32 s11, s60, 16\ns_add_u32 s10, s10, s11\ns_lshl_b32 s11, s59, 7\ns_add_u32 s10, s10, s11")
        A(f"s_add_u32 s10, s10, {WS_A:#x}")
        for i in range(1, 4): A(f"s_add_u32 s{10+i}, s10, {4096*i}")
        A("v_lshlrev_b32 v3, 14, v2\nv_lshl_add_u32 v4, v1, 3, v3")
        A("v_and_b32 v3, 1, v1\nv_lshrrev_b32 v1, 1, v1\nv_lshl_add_u32 v1, v3, 3, v1")
        A(f"s_lshl_b32 s14, s59, 8\ns_add_u32 s14, s14, {WS_G:#x}")
        A("v_lshlrev_b32 v5, 4, v1")
        A("v_lshrrev_b32 v3, 1, v2\nv_lshlrev_b32 v3, 10, v3\nv_add_u32 v3, v3, v5\nv_and_b32 v6, 1, v2\nv_lshl_add_u32 v3, v6, 9, v3\nv_add_u32 v11, s58, v3")
        A(f"v_add_u32 v12, {L_OMG}, v5")
        A("s_waitcnt vmcnt(0)")
        self.flag_set("s56")
        self.dstamp()
        self.flag_wait(16, "s57", "L_s_aw", extra="s54")
        self.dstamp()
        for i in range(4): A(f"buffer_load_dwordx2 {v(32+2*i,2)}, v4, s[72:75], s{10+i} offen sc1")
        A("buffer_load_dwordx4 v[48:51], v5, s[72:75], s14 offen sc1")
        A("s_waitcnt vmcnt(0)")
        self.dstamp()
        A("v_lshlrev_b32 v60, 16, v22\nv_and_b32 v61, 0xffff0000, v22\nv_lshlrev_b32 v62, 16, v23\nv_and_b32 v63, 0xffff0000, v23")
        for r in range(4):
            for i in range(4):
                src = 32 + 2*i + (r >> 1)
                d = 64 + 4*r + i
                A(f"v_lshlrev_b32 v{d}, 16, v{src}" if (r & 1) == 0 else f"v_and_b32 v{d}, 0xffff0000, v{src}")
                A(f"v_sub_f32 v{d}, v{d}, v{60+i}")
                A(f"v_fma_f32 v{d}, v{48+r}, v{d}, v{60+i}")
            A(f"ds_write_b128 v11, {v(64+4*r,4)} offset:{(r>>1)*2048+(r&1)*256}")
        for r in range(4): A(f"v_sub_f32 v{80+r}, 1.0, v{48+r}")
        A("s_mov_b64 exec, 0xffff\nds_write_b128 v12, v[80:83]")
        A("s_waitcnt lgkmcnt(0)")
        self.dstamp()
        self.end()

    def build(self):
        self.prologue(); self.helper(); self.loader_x(); self.loader_w(); self.helper2(); self.loader_w2(); self.ssm(); self.consumer()
        self.A("L_end:\ns_endpgm\n.p2align 6\nL_tab:")
        self.A(".long " + ", ".join(str(i) for i in range(16)))
        self.A(f"L_codeend:\n.fill (33024-(L_codeend-{NAME}))/4, 4, 0xbf800000")
        return single(self.A.text(), 256, 64*NWAVES, LDS_TOTAL, 168, 102, 168)

if __name__ == "__main__":
    args = sys.argv[2:]
    open(sys.argv[1], "w").write(G(ts="ts" in args, opts=args).build())
```

```python
import sys, struct
from asmgen import *

WS_EPOCH = 0
WS_G     = 0x1000
WS_FH    = 0x8000
WS_FG    = 0xC000
WS_FU    = 0xD000
WS_FA    = 0xF000
WS_H     = 0x80000
WS_UT    = 0x600000
WS_A     = 0x800000
WS_END   = 0xA00000
WS_TS    = 0x2000000
EPC = 0x9E3779B9
TM  = 0x69969669

KB = 1024
XS = [44*KB, 72*KB, 100*KB, 0, 16*KB]
WSL = [32*KB, 60*KB, 88*KB, 116*KB]
L_MINI = 0
BLK = [4*KB, 28*KB, 52*KB, 76*KB, 100*KB]
BLKNEED = [5, 6, 7, 7, 8]
L_TA = 0
L_TB = 116*KB
L_KF = 128*KB
L_OMG = L_KF + 16640
L_UL = 148*KB + 32
L_KP = 52*KB
L_PAR = 128*KB
L_ST  = 132*KB
L_RED = 52*KB
L_OT  = 68*KB
L_FLAG = 163840 - 128
F_SB, F_KS, F_TAG, F_PX, F_PW, F_UD, F_FREE, F_PAR = 0, 4, 8, 16, 20, 24, 32, 48
LDS_TOTAL = 163840
assert L_KP + 4*2816 <= L_FLAG
NWAVES = 12
LOG2E = 0x3fb8aa3b
INV2PI = 0x3e22f983
def f2h(x): return struct.unpack("<I", struct.pack("<f", x))[0]
def pack8(vals): return sum((x//4096) << (8*i) for i, x in enumerate(vals))

EARLY = "early" in sys.argv
if EARLY:
    XS = [16*KB, 44*KB, 72*KB, 100*KB]; L_KP = 0
XD = len(XS)

class Cnt:
    def __init__(self, A, name, mx): self.A = A; self.q = []; self.name = name; self.mx = mx; self.issued = set()
    def op(self, text, tag=None):
        self.A(text); self.q.append(tag); self.issued.add(tag)
        assert len(self.q) <= self.mx, "counter overflow"
    def need(self, tag):
        assert tag in self.issued, tag
        idx = [i for i, t in enumerate(self.q) if t == tag]
        if not idx: return
        n = len(self.q) - 1 - idx[-1]
        self.A(f"s_waitcnt {self.name}({min(n, self.mx)})")
        self.q = self.q[idx[-1]+1:]

class G:
    def __init__(self, ts=False, opts=()):
        self.A = Asm(); self.ts = ts; self.opts = set(opts); self.role = None; self.npt = 0; self.ncm = 0; self.nw2 = 0
        self.amprole = "s" if "amps" in self.opts else "c"
    def opt(self, name, default):
        return int(([o[len(name):] for o in self.opts if o.startswith(name) and o[len(name):].isdigit()] + [default])[0])
    def dstamp(self):
        if self.role == self.amprole:
            self.npt += 1
            if self.npt == self.opt("amp", 0): self.A("s_memrealtime s[70:71]\ns_waitcnt lgkmcnt(0)")
        if not self.ts: return
        self.A(("s_memrealtime s[64:65]\ns_mov_b32 s95, m0\ns_waitcnt lgkmcnt(0)\ns_nop 0\n" if "rts" in self.opts else "s_memtime s[64:65]\ns_mov_b32 s95, m0\ns_waitcnt lgkmcnt(0)\ns_sub_u32 s64, s64, s70\n") + "s_mov_b32 m0, s67\ns_add_u32 s67, s67, 1\nv_writelane_b32 v167, s64, m0\ns_mov_b32 m0, s95\ns_nop 0")
    def dump_ts(self):
        A = self.A
        if not self.ts: return
        A("s_waitcnt lgkmcnt(0) vmcnt(0)")
        A("s_mov_b64 exec, -1")
        A("s_memrealtime s[64:65]\ns_memtime s[10:11]")
        srd(A, 4, 50, 1 << 28)
        A("s_waitcnt lgkmcnt(0)")
        A("v_writelane_b32 v167, s70, 61\ns_sub_u32 s10, s10, s70\nv_writelane_b32 v167, s10, 60")
        A("v_writelane_b32 v167, s68, 63")
        A("v_writelane_b32 v167, s64, 62")
        A("s_lshl_b32 s8, s2, 4\ns_add_u32 s8, s8, s3\ns_lshl_b32 s8, s8, 8")
        A(f"s_add_u32 s8, s8, {WS_TS:#x}")
        A("v_mbcnt_lo_u32_b32 v16, -1, 0\nv_mbcnt_hi_u32_b32 v16, -1, v16\nv_lshlrev_b32 v16, 2, v16")
        A("buffer_store_dword v167, v16, s[4:7], s8 offen")
        A("s_waitcnt vmcnt(0)")
    def end(self):
        if self.opt("amp", 0) and self.role == self.amprole:
            A = self.A; L = A.lab("L_amp")
            A("s_waitcnt vmcnt(0)\ns_memrealtime s[64:65]\ns_waitcnt lgkmcnt(0)")
            if self.opt("amp", 0) == 99: A("s_mov_b32 s70, s64")
            A("s_sub_u32 s70, s70, s68\ns_lshl_b32 s70, s70, %d\ns_min_u32 s70, s70, 20000" % self.opt("mul", 1))
            if self.opt("fix", 0): A("s_mov_b32 s70, %d" % self.opt("fix", 0))
            A(f"{L}:\ns_sleep 1\ns_memrealtime s[10:11]\ns_waitcnt lgkmcnt(0)\ns_sub_u32 s10, s10, s64\ns_cmp_lt_u32 s10, s70\ns_cbranch_scc1 {L}")
        self.dump_ts(); self.A("s_endpgm")

    def guard(self):
        self.A("s_add_u32 s66, s66, 0x1000\ns_cbranch_scc1 L_end")

    def lds_wait_ge(self, vaddr, off, target, vt, name, sleep=0):
        A = self.A; L = A.lab(name); L2 = A.lab(name)
        if sleep:
            A(f"s_branch {L2}\n{L}:\ns_sleep {sleep}\n{L2}:")
        else:
            A(f"{L}:")
        A(f"ds_read_b32 v{vt}, v{vaddr} offset:{off}")
        self.guard()
        A("s_waitcnt lgkmcnt(0)")
        A(f"v_cmp_gt_u32 vcc, {target}, v{vt}")
        A(f"s_cbranch_vccnz {L}")

    def get_tag(self, vaddr, vt, sdst, name):
        A = self.A; L = A.lab(name)
        A(f"{L}:")
        A(f"ds_read_b64 v[{vt}:{vt+1}], v{vaddr} offset:{F_TAG}")
        self.guard()
        A("s_waitcnt lgkmcnt(0)")
        A(f"v_readfirstlane_b32 s9, v{vt+1}")
        A(f"v_readfirstlane_b32 s62, v{vt}")
        A(f"s_cmp_eq_u32 s9, 0\ns_cbranch_scc1 {L}")
        A("s_mov_b32 s63, s62")

    def flag_wait(self, n, soff, name, base=16, extra=None, sleep=0, prewait=True):
        A = self.A; L = A.lab(name)
        if prewait: A("s_waitcnt lgkmcnt(0)")
        if sleep:
            L2 = A.lab(name); A(f"s_branch {L2}\n{L}:\ns_sleep {sleep}\n{L2}:")
        else: A(f"{L}:")
        A(f"s_load_dwordx{n} s[{base}:{base+n-1}], s[50:51], {soff} glc")
        m = n
        if extra:
            A(f"s_load_dwordx2 s[{base+n}:{base+n+1}], s[50:51], {extra} glc"); m = n + 2
        self.guard()
        A("s_waitcnt lgkmcnt(0)")
        for k in range(0, m, 2): A(f"s_xor_b64 s[{base+k}:{base+k+1}], s[{base+k}:{base+k+1}], s[62:63]")
        for k in range(2, m, 2): A(f"s_or_b64 s[{base}:{base+1}], s[{base}:{base+1}], s[{base+k}:{base+k+1}]")
        A(f"s_cbranch_scc1 {L}")
    def flag_set(self, soff):
        self.A(f"s_mov_b32 s9, s62\ns_atomic_swap s9, s[50:51], {soff}")

    def pf_setup(self):
        A = self.A
        if "spf" not in self.opts:
            A("s_waitcnt lgkmcnt(0)"); return
        A("s_lshl_b32 s10, s2, 13\ns_lshl_b32 s11, s60, 11\ns_add_u32 s10, s10, s11")
        A("s_mul_i32 s11, s2, 688\ns_and_b32 s11, s11, 0xffffffc0\ns_mul_i32 s12, s60, 192\ns_add_u32 s11, s11, s12\ns_min_u32 s11, s11, 175936")
        A("s_add_u32 s11, s11, %d" % (3*176128))
        A("s_waitcnt lgkmcnt(0)")
        A("s_add_u32 s34, s16, s10\ns_addc_u32 s35, s17, 0\ns_add_u32 s44, s36, s11\ns_addc_u32 s45, s37, 0")
    def pf(self, slices):
        if "spf" not in self.opts: return
        n = 0
        for sl in slices:
            for r in range(2):
                for h in range(2): self.A(f"s_load_dword s{78+(n%14)}, s[34:35], {1024*r+128*sl+64*h}"); n += 1
            for k in range(3): self.A(f"s_load_dword s{78+(n%14)}, s[44:45], {176128*(sl-3)+64*k}"); n += 1

    def map_m(self):
        if "lmap" in self.opts:
            self.A("s_and_b32 s56, s2, 7\ns_lshl_b32 s56, s56, 1\ns_bfe_u32 s54, s2, 0x10003\ns_add_u32 s56, s56, s54"); return
        self.A("s_bfe_u32 s56, s2, 0x20001\ns_lshl_b32 s56, s56, 2\ns_bfe_u32 s54, s2, 0x20003\ns_add_u32 s56, s56, s54")
    def map_n(self):
        if "lmap" in self.opts:
            self.A("s_lshr_b32 s57, s2, 4"); return
        self.A("s_and_b32 s57, s2, 1\ns_lshl_b32 s57, s57, 3\ns_lshr_b32 s55, s2, 5\ns_add_u32 s57, s57, s55")
    def map_tb(self):
        self.A("s_and_b32 s59, s2, 7\ns_lshl_b32 s59, s59, 2\ns_bfe_u32 s54, s2, 0x20003\ns_add_u32 s59, s59, s54\ns_lshr_b32 s55, s2, 5")
    def rot(self, d):
        A = self.A
        if "norot" in self.opts: A(f"s_mov_b32 s{d}, 0"); return
        if "nod3" in self.opts: A(f"s_mov_b32 s{d}, s55")
        else: A(f"s_bfe_u32 s{d}, s2, 0x20003\ns_lshl_b32 s{d}, s{d}, 1\ns_cmp_eq_u32 s55, 3\ns_cselect_b32 s{d}, s{d}, 0\ns_add_u32 s{d}, s{d}, s55")
        A(f"s_cmp_ge_u32 s{d}, 7\ns_cselect_b32 s9, 7, 0\ns_sub_u32 s{d}, s{d}, s9")
    def tabptr(self):
        A = self.A; L = A.lab("L_tp")
        A(f"s_getpc_b64 s[92:93]\n{L}:")
        A(f"s_add_u32 s92, s92, L_tab-{L}\ns_addc_u32 s93, s93, 0")
    def dmaflag(self, vreg, m0src=None):
        A = self.A
        if m0src is not None: A(f"s_mov_b32 m0, {m0src}")
        A("s_mov_b64 exec, 1")
        A(f"global_load_lds_dword v{vreg}, s[92:93]")
        A("s_mov_b64 exec, -1")

    def prologue(self):
        A = self.A
        if "rt" in self.opts or self.opt("amp", 0): A("s_memrealtime s[68:69]")
        if self.ts: A("s_memrealtime s[70:71]" if "rts" in self.opts else "s_memtime s[70:71]")
        A("s_load_dwordx16 s[16:31], s[0:1], 0")
        A("s_load_dwordx16 s[32:47], s[0:1], 64")
        A("s_load_dwordx4 s[48:51], s[0:1], 128")
        A("v_lshrrev_b32 v2, 6, v0")
        if self.ts or "rt" in self.opts: A("s_nop 0")
        else: A("s_cmpk_ge_u32 s2, 256\ns_cbranch_scc1 L_end")
        A("v_readfirstlane_b32 s3, v2")
        A("s_cmp_ge_u32 s3, 8\ns_cbranch_scc1 L_ssm")
        A("s_cmp_ge_u32 s3, 4\ns_cbranch_scc1 L_cons")
        A("s_cmp_lg_u32 s3, 0\ns_cbranch_scc1 L_disp")
        A("s_getpc_b64 s[8:9]")
        A("s_and_b32 s10, s2, 24\ns_lshl_b32 s10, s10, 10")
        A("v_lshl_add_u32 v1, v0, 7, s10")
        A("global_load_dword v14, v1, s[8:9]")
        A("s_lshl_b32 s10, s2, 9")
        if "spf" in self.opts: A("s_movk_i32 s11, 512")
        A("v_lshl_add_u32 v2, v0, 4, s10")
        if "spf" in self.opts:
            A("s_lshl_b32 s10, s2, 13\nv_lshl_add_u32 v1, v0, 7, s10")
            A(f"s_mov_b32 m0, {L_PAR}")
            A("s_mov_b32 exec_lo, 0x07070707\ns_mov_b32 exec_hi, exec_lo")
            A("s_waitcnt lgkmcnt(0)")
            A("global_load_dword v15, v1, s[16:17]")
            A("s_mov_b32 exec_lo, -1\ns_mov_b32 exec_hi, 0")
            fill = ["s_movk_i32 s12, 2064", "s_mul_i32 s12, s12, s2", "v_lshl_add_u32 v3, v0, 6, s12", "global_load_dword v16, v3, s[36:37]", "s_nop 0", None]
            for i in range(6):
                A(f"global_load_lds_dwordx4 v2, s[{18+2*i}:{19+2*i}]")
                if fill[i]:
                    A("s_add_u32 m0, m0, s11"); A(fill[i])
            A("s_mov_b64 exec, -1")
        else:
            A("s_lshl_b32 s10, s2, 13\nv_lshl_add_u32 v1, v0, 7, s10")
            A(f"s_mov_b32 m0, {L_PAR}")
            A("s_mov_b32 exec_hi, 0")
            A("s_waitcnt lgkmcnt(0)")
            fill = ["s_movk_i32 s12, 5504", "s_mul_i32 s12, s12, s2", "s_movk_i32 s14, 0x7ff", "s_add_u32 s12, s36, s12", "s_addc_u32 s13, s37, 0", None]
            for i in range(6):
                A(f"global_load_lds_dwordx4 v2, s[{18+2*i}:{19+2*i}]")
                if fill[i]:
                    A("s_bitset1_b32 m0, 9" if i % 2 == 0 else "s_addk_i32 m0, 512"); A(fill[i])
            A("s_mov_b32 exec_hi, -1")
            A("global_load_dword v15, v1, s[16:17]")
            A("v_lshlrev_b32 v3, 7, v0\ns_mov_b32 exec_hi, s14")
            A("global_load_dword v16, v3, s[12:13]")
            A("s_mov_b64 exec, -1")
        A("L_disp:")
        A("v_and_b32 v0, 63, v0\ns_mov_b32 s66, 0")
        if self.ts: A("s_mov_b32 s67, 0\nv_mov_b32 v167, 0\ns_memrealtime s[68:69]")
        A("s_cmp_eq_u32 s3, 1\ns_cbranch_scc1 L_ldx")
        A("s_cmp_eq_u32 s3, 2\ns_cbranch_scc1 L_ldw")
    def entry(self):
        A = self.A
        A("v_and_b32 v0, 63, v0\ns_mov_b32 s66, 0")
        if self.ts: A("s_mov_b32 s67, 0\nv_mov_b32 v167, 0\ns_memrealtime s[68:69]")

    def free_issue(self):
        self.A(f"ds_read_b32 v20, v13")
    def free_check(self, target, name):
        A = self.A; L = A.lab(name); L2 = A.lab(name)
        chk = f"s_waitcnt lgkmcnt(0)\nv_cmp_gt_u32 vcc, {target}, v20\n"
        A(chk + f"s_cbranch_vccz {L2}")
        A(f"{L}:")
        if self.opt("zl", 0): A("s_sleep %d" % self.opt("zl", 0))
        self.free_issue()
        self.guard()
        A(chk + f"s_cbranch_vccnz {L}")
        A(f"{L2}:")
    def throttle(self):
        t = self.opt("thr", 0)
        if t: self.A(f"s_waitcnt vmcnt({t})")

    def loop_tail(self, p, depth):
        A = self.A
        A("v_add_u32 v9, 4, v9")
        self.dmaflag(9, "s94")
        if "lstamp" in self.opts: self.dstamp()
        A("s_add_u32 s12, s12, 1\ns_lshr_b64 s[96:97], s[96:97], 8")
        A(f"s_cmp_lt_u32 s12, {depth}\ns_cbranch_scc1 L_{p}_loop")
        A(f"s_cmp_eq_u32 s12, 8\ns_cbranch_scc1 L_w2")
        A(f"s_sub_u32 s15, s12, {depth-1}")
        if "nofree" not in self.opts: self.free_check("s15", f"L_{p}_f")
        A(f"s_branch L_{p}_loop")

    def loader_x(self):
        A = self.A
        A("L_ldx:")
        self.tabptr()
        self.map_m()
        A("v_lshrrev_b32 v1, 3, v0\nv_lshrrev_b32 v2, 4, v0\nv_and_b32 v3, 7, v0\nv_xor_b32 v2, v3, v2\nv_lshlrev_b32 v1, 10, v1")
        A("v_lshl_add_u32 v4, v2, 4, v1")
        A("v_xor_b32 v5, 64, v4")
        A(f"v_add_u32 v5, {7*1024}, v5\nv_add_u32 v6, {14*1024}, v4\nv_add_u32 v7, {14*1024}, v5")
        A("s_lshl_b32 s10, s56, 17")
        xs = [XS[s % XD] for s in range(8)]
        A(f"s_mov_b32 s96, {pack8(xs[:4]):#x}\ns_mov_b32 s97, {pack8(xs[4:]):#x}")
        A(f"s_mov_b32 s94, {L_FLAG+F_PX}\ns_mov_b32 s12, 0\ns_mov_b32 s98, 0")
        A(f"v_mov_b32 v8, {L_FLAG}\nv_mov_b32 v9, 0\nv_and_b32 v13, 3, v0\nv_lshl_add_u32 v13, v13, 2, v8\nv_add_u32 v13, {F_FREE}, v13")
        A("s_mov_b32 s6, 0x200000\ns_mov_b32 s7, 0x20000")
        A("s_waitcnt lgkmcnt(0)")
        A("s_mov_b32 s4, s16\ns_and_b32 s5, s17, 0xffff")
        A("s_barrier")
        if "g2only" in self.opts: A("s_endpgm")
        self.dstamp()
        if self.opt("lprio", 0): A("s_setprio %d" % self.opt("lprio", 0))
        A("L_x_loop:")
        A("s_and_b32 s13, s96, 0xff\ns_lshl_b32 s13, s13, 12\ns_mov_b32 s14, s10")
        for g in range(4):
            A(f"s_add_u32 m0, s13, {g*4096}")
            if g: A(f"s_add_u32 s14, s14, 32768")
            else: A(f"s_add_u32 s10, s10, 128")
            if g == 3: self.free_issue()
            self.throttle()
            for j in range(4):
                A(f"buffer_load_dwordx4 v{4+j}, s[4:7], s14 offen offset:{j*1024} lds")
        self.loop_tail("x", XD)

    def loader_w(self):
        A = self.A
        A("L_ldw:")
        self.tabptr()
        A(f"v_mov_b32 v8, {L_FLAG}\nv_mov_b32 v9, 0\nv_lshl_add_u32 v3, v0, 2, v8")
        A("s_mov_b32 exec_hi, 0\nds_write_b32 v3, v9\ns_mov_b64 exec, -1")
        self.map_n()
        for j in range(3):
            A(f"v_add_u32 v1, {64*j}, v0")
            A(f"v_mul_u32_u24 v2, 0xaaab, v1\nv_lshrrev_b32 v{24+j}, 19, v2")
            A(f"v_mul_u32_u24 v2, {2752-192}, v{24+j}")
            A(f"v_lshl_add_u32 v{4+j}, v0, 4, v2")
        A("s_mul_i32 s10, s57, 192")
        A(f"s_mov_b32 s53, {16*2752}")
        A(f"v_and_b32 v13, 3, v0\nv_lshl_add_u32 v13, v13, 2, v8\nv_add_u32 v13, {F_FREE}, v13")
        ws_ = [WSL[s % 4] for s in range(8)]
        A(f"s_mov_b32 s96, {pack8(ws_[:4]):#x}\ns_mov_b32 s97, s96")
        A(f"s_mov_b32 s94, {L_FLAG+F_PW}\ns_mov_b32 s12, 0\ns_mov_b32 s98, 1")
        A(f"s_mov_b32 s6, {512*2752}\ns_mov_b32 s7, 0x20000")
        A("s_waitcnt lgkmcnt(0)")
        A("s_mov_b32 s4, s36\ns_and_b32 s5, s37, 0xffff")
        A("s_cmp_ge_u32 s57, 14\ns_cbranch_scc1 L_ld_gate")
        A("L_ld_go:")
        A("s_barrier")
        if "g2only" in self.opts: A("s_endpgm")
        self.dstamp()
        if self.opt("lprio", 0): A("s_setprio %d" % self.opt("lprio", 0))
        A("L_w_loop:")
        A("s_and_b32 s13, s96, 0xff\ns_lshl_b32 s13, s13, 12")
        for g in range(4):
            A(f"s_add_u32 m0, s13, {g*3072}")
            if g == 3: self.free_issue()
            else: A("s_nop 0")
            self.throttle()
            for j in range(3):
                A(f"buffer_load_dwordx4 v{4+j}, s[4:7], s10 offen offset:{j*1024} lds")
            A("s_add_u32 s10, s10, s53")
        self.loop_tail("w", 4)
        A("L_ld_gate:")
        A("v_mov_b32 v15, 0x80000000")
        A("s_cmp_eq_u32 s57, 15\ns_cbranch_scc1 L_ld_gate2")
        for j in range(3):
            A(f"v_add_u32 v1, {64*j}, v0")
            A(f"v_mul_u32_u24 v2, 12, v{24+j}\nv_sub_u32 v1, v1, v2")
            A("v_cmp_gt_u32 vcc, 4, v1\ns_nop 1")
            A(f"v_cndmask_b32 v{4+j}, v15, v{4+j}, vcc")
        A("s_branch L_ld_go")
        A("L_ld_gate2:")
        A("s_sub_u32 s4, s44, 2048\ns_subb_u32 s5, s45, 0\ns_and_b32 s5, s5, 0xffff")
        A("s_mov_b32 s6, 3072\ns_mov_b32 s53, 32\ns_mov_b32 s10, 0")
        for j in range(3):
            A(f"v_add_u32 v1, {64*j}, v0")
            A(f"v_mul_u32_u24 v2, 12, v{24+j}\nv_sub_u32 v1, v1, v2")
            A(f"v_and_b32 v2, 1, v{24+j}")
            A("v_cmp_eq_u32 vcc, v1, v2")
            A(f"v_and_b32 v2, 14, v{24+j}\nv_lshlrev_b32 v2, 1, v2\nv_add_u32 v2, {2048-1024*j}, v2")
            A(f"v_cndmask_b32 v{4+j}, v15, v2, vcc")
        A("s_branch L_ld_go")

    def loader_w2(self):
        A = self.A
        A("L_w2:")
        A("v_lshrrev_b32 v1, 3, v0\nv_lshlrev_b32 v1, 10, v1")
        A("v_bfe_u32 v2, v0, 4, 1\nv_lshlrev_b32 v2, 2, v2\nv_and_b32 v3, 7, v0\nv_xor_b32 v2, v2, v3")
        A("v_lshl_add_u32 v16, v2, 4, v1")
        for j in range(1, 4): A(f"v_add_u32 v{16+j}, {7*1024*j}, v16")
        srd(A, 4, 40, 1376*1024)
        A("s_lshr_b32 s55, s2, 5\ns_lshl_b32 s10, s55, 7")
        A(f"s_lshl_b32 s14, s98, 14\ns_add_u32 s14, s14, s10\ns_add_u32 s14, s14, {1344*1024}")
        A(f"s_mul_i32 s11, s98, {7*96*1024}\ns_add_u32 s52, s10, s11\ns_add_u32 s53, s52, {7*96*1024}")
        A("s_mul_i32 s11, s98, 12288")
        self.rot(13)
        A(f"s_add_u32 s10, s13, 5\ns_cmp_ge_u32 s10, 7\ns_cselect_b32 s12, 7, 0\ns_sub_u32 s10, s10, s12\ns_mul_i32 s10, s10, {96*1024}\ns_add_u32 s10, s10, s52")
        RB = 32
        if self.opt("rg", 7): self.lds_wait_ge(8, F_PW, self.opt("rg", 7), 21, "L_w2_rg")
        for k in range(6):
            for j in range(4):
                A(f"buffer_load_dwordx4 {v(RB+16*k+4*j,4)}, v{16+j}, s[4:7], s10 offen offset:{j*1024}")
            A("s_add_u32 s10, s10, 32768")
            if k % 3 == 2: A("s_cmp_eq_u32 s10, s53\ns_cselect_b32 s10, s52, s10")
        if "lstamp" in self.opts: self.dstamp()
        bl = [BLK[b] for b in range(5)] + [0, 0, 0]
        A(f"s_mov_b32 s96, {pack8(bl[:4]):#x}\ns_mov_b32 s97, {pack8(bl[4:]):#x}")
        nd = sum(x << (4*i) for i, x in enumerate(BLKNEED))
        A(f"s_mov_b32 s99, {nd:#x}")
        if EARLY: self.lds_wait_ge(8, F_SB, 4, 21, "L_w2_e")
        self.free_issue()
        self.free_check(self.opt("w2g", 8), "L_w2_m")
        A(f"s_lshl_b32 m0, s98, 11\ns_nop 0")
        for j in range(2):
            A(f"buffer_load_dwordx4 v{16+j}, s[4:7], s14 offen offset:{j*1024} lds")
        A("L_w2_loop:")
        A("s_and_b32 s13, s96, 0xff\ns_lshl_b32 s13, s13, 12\ns_add_u32 s13, s13, s11")
        for g in range(3):
            A(f"s_add_u32 m0, s13, {g*4096}")
            if g == 2: self.free_issue()
            else: A("s_nop 0")
            self.throttle()
            for j in range(4):
                A(f"buffer_load_dwordx4 v{16+j}, s[4:7], s10 offen offset:{j*1024} lds")
            A("s_add_u32 s10, s10, 32768")
        A("s_cmp_eq_u32 s10, s53\ns_cselect_b32 s10, s52, s10")
        A("v_add_u32 v9, 4, v9")
        self.dmaflag(9, "s94")
        if "lstamp" in self.opts: self.dstamp()
        A("s_lshr_b64 s[96:97], s[96:97], 8\ns_lshr_b32 s99, s99, 4")
        A("s_cbranch_scc0 L_w2_done")
        A("s_and_b32 s15, s99, 15")
        self.free_check("s15", "L_w2_f")
        A(f"s_cmp_lg_u32 s99, {nd >> 8:#x}\ns_cbranch_scc1 L_w2_loop")
        self.lds_wait_ge(8, F_SB, 4, 21, "L_w2_s")
        A("s_branch L_w2_loop")
        A("L_w2_done:")
        A("v_lshl_add_u32 v4, v0, 4, s11\nv_mov_b32 v5, s94")
        A("s_waitcnt vmcnt(0)")
        for bb in range(2):
            self.lds_wait_ge(13, 0, 9+bb, 20, "L_w2_r", sleep=1)
            for k in range(12):
                if "nowr" not in self.opts: A(f"ds_write_b128 v4, {v(RB+48*bb+4*k,4)} offset:{BLK[bb]+1024*k}")
                if self.opt("wsp", 0): A("s_nop %d" % self.opt("wsp", 0))
            A(f"v_mov_b32 v6, {14+bb}\ns_mov_b64 exec, 1\nds_write_b32 v5, v6\ns_mov_b64 exec, -1")
            if "lstamp" in self.opts: self.dstamp()
        A("s_waitcnt lgkmcnt(0)")
        self.dstamp()
        self.end()

    def helper(self):
        A = self.A
        A("s_cmp_eq_u32 s3, 0\ns_cbranch_scc1 L_h0")
        A("v_lshlrev_b32 v2, 21, v0\nv_add_u32 v2, 0x40, v2")
        A("s_waitcnt lgkmcnt(0)")
        A(f"s_load_dword s61, s[50:51], {WS_EPOCH}")
        A("s_mov_b64 exec, 0x1f")
        A("global_load_dword v70, v2, s[50:51]")
        A("s_lshr_b32 s10, s2, 5\ns_lshl_b32 s10, s10, 7\nv_mov_b32 v3, s10\ns_mov_b64 exec, 1")
        A("global_load_dword v71, v3, s[42:43]\nglobal_load_dword v72, v3, s[40:41]")
        A("s_mov_b64 exec, -1")
        A("L_h0:")
        A("s_barrier")
        A("s_branch L_help2")
    def helper2(self):
        A = self.A
        A("L_help2:")
        A(f"v_mov_b32 v8, {L_FLAG}\nv_mov_b32 v3, 1")
        A("s_and_b32 s60, s3, 1")
        A("s_cmp_eq_u32 s60, 0\ns_cbranch_scc1 L_h_p0")
        A("s_waitcnt lgkmcnt(0)")
        A(f"s_add_u32 s61, s61, {EPC:#x}")
        A("v_mov_b32 v2, s61")
        A(f"s_mov_b64 exec, 1\nds_write_b64 v8, v[2:3] offset:{F_TAG}\ns_mov_b64 exec, -1")
        A("s_branch L_h_nt")
        A("L_h_p0:")
        self.dstamp()
        A("s_waitcnt vmcnt(%d)" % (0 if "spf" in self.opts else 2))
        A(f"s_mov_b64 exec, 1\nds_write_b32 v8, v3 offset:{F_PAR}\ns_mov_b64 exec, -1")
        self.dstamp()
        A("L_h_nt:")
        if "g2only" in self.opts: A("s_waitcnt lgkmcnt(0)\ns_endpgm")
        self.tabptr()
        srd(A, 72, 50, WS_END)
        A("s_lshr_b32 s59, s2, 3\ns_and_b32 s55, s2, 7")
        A("s_lshl_b32 s10, s59, 16\ns_lshl_b32 s11, s60, 6\ns_add_u32 s10, s10, s11\ns_lshl_b32 s11, s55, 7\ns_add_u32 s10, s10, s11")
        A("v_lshrrev_b32 v12, 3, v0\nv_bfe_u32 v4, v0, 2, 1\nv_lshl_add_u32 v4, v4, 5, v12\nv_and_b32 v11, 3, v0\nv_lshlrev_b32 v5, 4, v11\nv_lshl_add_u32 v4, v4, 10, v5")
        for j in range(1, 4): A(f"v_xor_b32 v{4+j}, {16*j}, v4\nv_add_u32 v{4+j}, {7*1024*j}, v{4+j}")
        A(f"s_mul_i32 s11, s60, 4608\ns_add_u32 s58, s11, {L_UL+480}\ns_mov_b32 m0, s58")
        srd(A, 4, 16, 2048*1024)
        npre = 0
        if self.opt("upub", 0): self.lds_wait_ge(8, F_PW, self.opt("upub", 0), 10, "L_h_u", sleep=1)
        A("s_setprio 3")
        for j in range(4): A(f"buffer_load_dwordx4 v{4+j}, s[4:7], s10 offen offset:{j*1024} lds")
        A("v_lshrrev_b32 v4, 5, v0\nv_xor_b32 v4, v4, v11\nv_lshlrev_b32 v4, 4, v4\nv_lshl_add_u32 v4, v11, 10, v4")
        A("v_bfe_u32 v5, v0, 2, 1\nv_lshl_add_u32 v4, v5, 6, v4\nv_bfe_u32 v5, v0, 3, 2\nv_lshl_add_u32 v4, v5, 2, v4\nv_add_u32 v24, s58, v4\nv_xor_b32 v25, 32, v24")
        A("v_and_b32 v4, 7, v0\nv_lshlrev_b32 v4, 4, v4\nv_lshl_add_u32 v28, v12, 13, v4")
        A("s_lshl_b32 s10, s55, 18\ns_lshl_b32 s12, s60, 17\ns_add_u32 s10, s10, s12\ns_lshl_b32 s12, s59, 7\ns_add_u32 s10, s10, s12")
        A(f"s_add_u32 s10, s10, {WS_UT:#x}\ns_add_u32 s11, s10, 4096\ns_add_u32 s52, s10, 0x10000\ns_add_u32 s53, s10, 0x11000")
        A("s_lshl_b32 s12, s55, 1\ns_add_u32 s12, s12, s60\ns_lshl_b32 s12, s12, 2\ns_lshr_b32 s13, s59, 3\ns_add_u32 s12, s12, s13\ns_lshl_b32 s12, s12, 7")
        A(f"s_and_b32 s13, s59, 7\ns_lshl_b32 s13, s13, 2\ns_add_u32 s12, s12, s13\ns_add_u32 s54, s12, {WS_FU:#x}")
        A("s_mov_b32 s12, 0x05040100\ns_mov_b32 s13, 0x07060302")
        if "nowarm" not in self.opts: A("s_load_dword s56, s[50:51], s54 glc")
        self.get_tag(8, 2, 62, "L_h_tag")
        A(f"s_lshl_b32 s94, s60, 2\ns_add_u32 s94, s94, {L_FLAG+F_UD}\nv_mov_b32 v9, 4")
        A("s_waitcnt vmcnt(0)")
        self.dstamp()
        for it_ in range(2):
            for e in range(4): A(f"ds_read2_b32 {v(32+8*it_+2*e,2)}, v{24+it_} offset0:{64*e} offset1:{64*e+32}")
        for it_ in range(2):
            A(f"s_waitcnt lgkmcnt({4-4*it_})")
            for c_ in range(2):
                for e in range(4): A(f"v_perm_b32 v{48+8*it_+4*c_+e}, v{33+8*it_+2*e}, v{32+8*it_+2*e}, s{12+c_}")
                A(f"buffer_store_dwordx4 {v(48+8*it_+4*c_,4)}, v28, s[72:75], s{(10, 11, 52, 53)[2*it_+c_]} offen sc1")
        if "w2all" in self.opts:
            A("s_mul_i32 s14, s2, 5504\ns_mul_i32 s15, s60, 2816\ns_add_u32 s14, s14, s15\ns_add_u32 s14, s40, s14\ns_addc_u32 s15, s41, 0")
            A("v_lshlrev_b32 v4, 7, v0\ns_lshr_b32 exec_lo, 0x3fffff, s60\ns_mov_b32 exec_hi, 0\nglobal_load_dword v73, v4, s[14:15]")
        self.dmaflag(9, "s94")
        A("s_setprio 0")
        if "w2all" not in self.opts: A("s_cmp_eq_u32 s60, 0\ns_cbranch_scc1 L_h_w2\nL_h_w2r:")
        self.dstamp()
        A("s_waitcnt vmcnt(%d)" % (2 if "w2all" in self.opts else 1))
        self.flag_set("s54")
        A("s_cmp_eq_u32 s60, 0\ns_cbranch_scc1 L_h_done")
        A(f"s_lshr_b32 s10, s2, 4\ns_lshl_b32 s10, s10, 9\ns_add_u32 s52, s10, {WS_FU:#x}\ns_add_u32 s53, s52, 128\ns_add_u32 s54, s52, 256\ns_add_u32 s55, s52, 384")
        A(f"s_lshl_b32 s10, s2, 13\ns_add_u32 s10, s10, {WS_UT:#x}\ns_add_u32 s11, s10, 4096")
        A(f"s_mov_b32 m0, {L_UL+480}\nv_lshlrev_b32 v13, 4, v0\nv_mov_b32 v9, 8")
        A("s_waitcnt lgkmcnt(0)")
        self.dstamp()
        A("L_h_uw:")
        A("s_sleep %d" % self.opt("usl", 6))
        for k_ in range(4): A(f"s_load_dwordx8 s[{16+8*k_}:{23+8*k_}], s[50:51], s{52+k_} glc")
        self.guard()
        A("s_waitcnt lgkmcnt(0)")
        for k_ in range(0, 32, 2): A(f"s_xor_b64 s[{16+k_}:{17+k_}], s[{16+k_}:{17+k_}], s[62:63]")
        for k_ in range(2, 32, 2): A(f"s_or_b64 s[16:17], s[16:17], s[{16+k_}:{17+k_}]")
        A("s_cbranch_scc1 L_h_uw")
        self.lds_wait_ge(8, F_UD, 1, 10, "L_h_ud")
        for j in range(4): A(f"buffer_load_dwordx4 v13, s[72:75], s10 offen offset:{1024*j} sc1 lds")
        A(f"s_mov_b32 m0, {L_UL+480+4608}\ns_nop 0")
        for j in range(4): A(f"buffer_load_dwordx4 v13, s[72:75], s11 offen offset:{1024*j} sc1 lds")
        self.dmaflag(9, "s94")
        self.dstamp()
        A("s_lshl_b32 s14, s2, 1\ns_add_u32 s14, s14, s60\ns_cmp_lg_u32 s14, 1\ns_cbranch_scc1 L_h_done")
        if "nopub" in self.opts or "nos" in self.opts: A("s_branch L_h_done")
        self.lds_wait_ge(8, F_PW, 8, 4, "L_h_q", sleep=4)
        A(f"v_lshlrev_b32 v4, 7, v0\nv_add_u32 v4, {WS_FU:#x}, v4")
        A("L_h_bump:")
        A("buffer_load_dwordx4 v[10:13], v4, s[72:75], 0 offen sc1\nbuffer_load_dwordx4 v[14:17], v4, s[72:75], 0 offen offset:16 sc1")
        A("s_waitcnt vmcnt(0)")
        for i in range(4): A(f"v_bitop3_b32 v{10+i}, v{10+2*i}, v{11+2*i}, v2 bitop3:0x7e")
        A("v_or3_b32 v10, v10, v11, v12\nv_or_b32 v10, v10, v13")
        A("v_cmp_ne_u32 vcc, 0, v10")
        A("s_cbranch_vccz L_h_ok")
        self.guard()
        A("s_sleep 16\ns_branch L_h_bump")
        A("L_h_ok:")
        A(f"v_mov_b32 v4, {WS_EPOCH}")
        A("s_mov_b64 exec, 1")
        A("buffer_store_dword v2, v4, s[72:75], 0 offen sc1")
        A("L_h_done:")
        A("s_waitcnt vmcnt(0) lgkmcnt(0)")
        if self.ts: self.lds_wait_ge(8, F_PW, 15, 4, "L_h_z", sleep=8)
        self.end()
        A("L_h_w2:")
        if "w2all" in self.opts:
            A("s_branch L_h_done"); return
        A("s_mov_b32 s15, s54")
        self.map_n(); self.map_m()
        A("s_mov_b32 s54, s15")
        A("s_cmp_lt_u32 s57, 14\ns_cbranch_scc1 L_h_w2r")
        srd(A, 4, 40, 1376*1024)
        NG = self.opt("gt", 7)
        A(f"s_mul_i32 s10, s56, {88*1024}\ns_sub_u32 s11, 15, s57\ns_mul_i32 s11, s11, {NG*8192}\ns_add_u32 s10, s10, s11\nv_lshlrev_b32 v4, 7, v0")
        for i in range(NG):
            if i == 11-NG: A("s_cmp_eq_u32 s57, 14\ns_cbranch_scc1 L_h_done")
            A(f"buffer_load_dword v{74+i}, v4, s[4:7], s10 offen\ns_add_u32 s10, s10, 8192")
            if i == 2:
                A("s_waitcnt vmcnt(4)"); self.flag_set("s54")
        A("s_mov_b64 exec, -1\ns_branch L_h_done")

    def kg_addr(self):
        A = self.A
        A(f"s_lshl_b32 s12, s52, 8\ns_lshl_b32 s13, s53, 7\ns_add_u32 s12, s12, s13\ns_add_u32 s12, s12, {L_PAR}")
        A("v_lshl_add_u32 v6, v0, 1, s12")
        A(f"s_lshl_b32 s12, s52, 1\ns_add_u32 s12, s12, {L_PAR+3072}\nv_mov_b32 v10, s12\nv_mov_b32 v1, {LOG2E:#x}")
    def kg_common(self, n, dsk=None):
        A = self.A
        A("ds_read_u16 v2, v10")
        for i in range(n): A(f"ds_read_u16 v{16+i}, v6 offset:{512*i}")
        if dsk: A(f"ds_read_u16 v{dsk}, v10 offset:4")
        A(f"s_waitcnt lgkmcnt({n + (1 if dsk else 0)})")
        A("v_lshlrev_b32 v2, 16, v2\nv_mul_f32 v2, v2, v1\nv_exp_f32 v2, v2")
        A("s_waitcnt lgkmcnt(0)")
        A("v_cvt_pk_bf16_f32 v2, v2, v2")
        for i in range(n): A(f"v_lshlrev_b32 v{16+i}, 16, v{16+i}")
        A("v_lshlrev_b32 v2, 16, v2")
    def cmul(self, d, a, b):
        A = self.A
        self.ncm += 1
        if self.ncm >= self.opt("w2s", 4) and self.ncm % 2 == 0 and self.nw2 < 22 and "sw2" in self.opts:
            A(f"s_load_dword s{78+(self.nw2%14)}, s[34:35], {64*self.nw2}"); self.nw2 += 1
        if "pk" in self.opts:
            A(f"v_pk_mul_f32 {v(d,2)}, {v(a,2)}, {v(b,2)} op_sel:[0,0] op_sel_hi:[1,0]")
            A(f"v_pk_fma_f32 {v(d,2)}, {v(a,2)}, {v(b,2)}, {v(d,2)} op_sel:[1,1,0] op_sel_hi:[0,1,1] neg_lo:[1,0,0]")
        else:
            A(f"v_mul_f32 v{d}, v{a}, v{b}\nv_mul_f32 v{d+1}, v{a+1}, v{b}")
            A(f"v_fma_f32 v{d}, -v{a+1}, v{b+1}, v{d}\nv_fmac_f32 v{d+1}, v{a}, v{b+1}")
    def direct(self, d, L):
        A = self.A
        if L != 1:
            A(f"v_mul_f32 v3, {f2h(float(L)):#x}, v16\nv_mul_f32 v7, {f2h(float(L)):#x}, v17")
            A("v_exp_f32 v3, v3\nv_fract_f32 v7, v7")
        else:
            A("v_exp_f32 v3, v16\nv_fract_f32 v7, v17")
        A(f"v_cos_f32 v{d}, v7\nv_sin_f32 v{d+1}, v7")
        A(f"v_mul_f32 v{d}, v3, v{d}\nv_mul_f32 v{d+1}, v3, v{d+1}")
    PK = 64
    def put(self, row, src, neg=False):
        if row & 1 == 0:
            self.prev = src; return
        p = self.prev; n = '-' if neg else ''; PK = self.PK
        self.A(f"v_cvt_pk_bf16_f32 v{PK+(row>>1)}, v{p}, v{src}")
        self.A(f"v_cvt_pk_bf16_f32 v{PK+8+(row>>1)}, {n}v{p+1}, {n}v{src+1}")
    def flush(self, tb, hh):
        PK = self.PK; a = 4 + hh
        self.A(f"ds_write_b128 v{a}, {v(PK+4*hh,4)} offset:{4096*tb+1024*hh}")
        self.A(f"ds_write_b128 v{a}, {v(PK+8+4*hh,4)} offset:{4096*tb+1024*(2+hh)}")
    def chain(self, va, vb, acc, fr):
        A = self.A
        lg = Cnt(A, "lgkmcnt", 15)
        def rd(q):
            o = (q >> 2)*16384 + (q & 3)*256; b = fr + 8*(q % 3)
            for h in range(2): lg.op(f"ds_read_b64_tr_b16 {v(b+2*h,2)}, v{va} offset:{o+2048*h}", q)
            for h in range(2): lg.op(f"ds_read_b64_tr_b16 {v(b+4+2*h,2)}, v{vb} offset:{o+2048*h}", q)
        for q in range(3): rd(q)
        for q in range(8):
            b = fr + 8*(q % 3)
            lg.need(q)
            A(f"v_mfma_f32_16x16x32_bf16 {v(acc,4)}, {v(b,4)}, {v(b+4,4)}, {v(acc,4) if q else '0'}")
            if q + 3 < 8: rd(q+3)
    def tr_addr(self, d):
        A = self.A
        A(f"v_lshrrev_b32 v{d}, 2, v0\nv_lshlrev_b32 v{d}, 4, v{d}\nv_and_b32 v3, 1, v0\nv_lshl_add_u32 v{d}, v3, 3, v{d}")
        A(f"v_bfe_u32 v3, v0, 1, 1\nv_mul_u32_u24 v3, 1152, v3\nv_xor_b32 v{d}, v{d}, v3")

    def consumer(self):
        A = self.A
        ACC = 16
        FR = [64, 80, 96, 112]
        A(".p2align 8")
        A("L_cons:")
        self.role = "c"
        self.entry()
        A("s_sub_u32 s60, s3, 4")
        A("s_and_b32 s52, s60, 1\ns_lshr_b32 s53, s60, 1")
        A(f"v_mov_b32 v9, {L_FLAG}")
        B0 = FR[3]
        self.map_n(); self.map_m()
        A("v_and_b32 v129, 31, v0\nv_lshrrev_b32 v130, 5, v0")
        A("v_lshlrev_b32 v13, 1, v0")
        self.pf_setup()
        A("s_barrier")
        self.pf([3, 5])
        A("s_mul_i32 s10, s57, 192")
        srd(A, 4, 38, 1376*2)
        A(f"buffer_load_ushort v{B0+8}, v13, s[4:7], s10 offen")
        A(f"buffer_load_ushort v{B0+12}, v13, s[4:7], s10 offen offset:128")
        for q in (1, 2, 3, 5, 6, 7, 9, 10, 11, 13, 14, 15): A(f"v_mov_b32 v{B0+q}, 0")
        A(f"v_mul_u32_u24 v{B0+4}, 0x3f80, v130\nv_sub_u32 v{B0}, 0x3f80, v{B0+4}")
        A("v_mov_b32 v1, v129")
        A("v_bfe_u32 v3, v0, 1, 3\nv_xor_b32 v3, v3, v130\nv_lshlrev_b32 v3, 4, v3\nv_lshl_add_u32 v3, v1, 7, v3")
        A("s_lshl_b32 s10, s60, 12")
        A("v_add_u32 v134, s10, v3")
        for st in range(1, 4): A(f"v_xor_b32 v{134+st}, {st*32}, v134")
        A("v_bfe_u32 v3, v0, 2, 2\nv_lshl_add_u32 v3, v130, 3, v3\nv_mul_u32_u24 v3, 192, v3")
        A("v_bfe_u32 v8, v0, 4, 1\nv_lshl_add_u32 v3, v8, 5, v3")
        A("v_and_b32 v8, 3, v0\nv_lshl_add_u32 v138, v8, 3, v3")
        for q in range(4): A(f"v_add_u32 v{4+q}, {XS[0]}, v{134+q}")
        A(f"v_add_u32 v8, {WSL[0]}, v138")
        xs = [XS[s % XD] for s in range(1, 9)]; ws_ = [WSL[s % 4] for s in range(1, 9)]
        A(f"s_mov_b32 s96, {pack8(xs[:4]):#x}\ns_mov_b32 s97, {pack8(xs[4:]):#x}\ns_mov_b32 s98, {pack8(ws_[:4]):#x}\ns_mov_b32 s99, s98")
        A(f"v_and_b32 v11, 1, v0\nv_lshl_add_u32 v11, v11, 2, v9\nv_add_u32 v11, {F_PX}, v11")
        self.tabptr()
        A(f"s_lshl_b32 s94, s60, 2\ns_add_u32 s94, s94, {L_FLAG+F_FREE}\ns_mov_b32 m0, s94\nv_mov_b32 v14, 0")
        srd(A, 72, 50, WS_END)
        A("v_lshlrev_b32 v13, 4, v0")
        if "noc" in self.opts:
            A(f"v_mov_b32 v12, 100\ns_lshl_b32 s10, s60, 2\nv_add_u32 v11, s10, v9\nds_write_b32 v11, v12 offset:{F_FREE}")
            self.end()
        A("s_lshl_b32 s10, s56, 2\ns_add_u32 s58, s10, s60")
        A("s_mul_i32 s10, s58, 86\ns_mul_i32 s11, s57, 6\ns_add_u32 s10, s10, s11\ns_lshl_b32 s10, s10, 10")
        A(f"s_add_u32 s76, s10, {WS_H:#x}\ns_add_u32 s77, s76, 4096")
        A("s_cmp_ge_u32 s57, 7\ns_cselect_b32 s10, 100, 0\ns_lshl_b32 s11, s57, 2\ns_add_u32 s10, s10, s11\ns_lshl_b32 s11, s58, 8\ns_add_u32 s10, s10, s11")
        A(f"s_add_u32 s100, s10, {WS_FH:#x}")
        self.map_tb()
        A(f"s_lshl_b32 s10, s59, 1\ns_add_u32 s10, s10, s52\ns_lshl_b32 s10, s10, 1\ns_add_u32 s10, s10, s53\ns_lshl_b32 s10, s10, 7\ns_add_u32 s101, s10, {WS_FH:#x}")
        A("s_load_dword s16, s[50:51], s101 glc")
        self.pf([6, 7])
        A("s_setprio %d" % self.opt("cprio", 3))
        self.dstamp()
        A("s_waitcnt vmcnt(0)")
        for fb, (a_, b_) in enumerate(((8, 0), (8, 4), (12, 0))):
            A(f"v_mfma_f32_32x32x16_bf16 {v(ACC+16*fb,16)}, {v(B0+a_,4)}, {v(B0+b_,4)}, 0")
        self.get_tag(9, 2, 61, "L_c_tag")
        def reads(st):
            buf = FR[st]
            out = [f"ds_read_b128 {v(buf,4)}, v{4+st}"]
            for fb in range(3):
                for h in range(2):
                    out.append(f"ds_read_b64_tr_b16 {v(buf+4+4*fb+2*h,2)}, v8 offset:{st*3072+h*768+fb*64}")
            return out
        def mfmas(st):
            buf = FR[st]
            return [f"v_mfma_f32_32x32x16_bf16 {v(ACC+16*fb,16)}, {v(buf+4+4*fb,4)}, {v(buf,4)}, {v(ACC+16*fb,16)}" for fb in range(3)]
        FLAGRD = "ds_read_b32 v10, v11"
        if "g2only" in self.opts:
            A(f"v_mov_b32 v12, 100\nv_lshl_add_u32 v10, v0, 2, v9\ns_mov_b64 exec, 0xff\nds_write_b32 v10, v12 offset:{F_PX}\ns_mov_b64 exec, -1\ns_sleep 64\ns_branch L_c_e1done")
        A("s_mov_b32 s12, 1")
        self.dstamp()
        A("L_c_poll:")
        self.lds_wait_ge(11, 0, "s12", 10, "L_c_p0", sleep=self.opt("zc", 0))
        if "cstamp" in self.opts: self.dstamp()
        A("L_c_rd:")
        for r in reads(0): A(r)
        for r in reads(1): A(r)
        A(".p2align 3")
        A("L_c_loop:")
        ms, rs = mfmas(0), reads(2)
        A("s_waitcnt lgkmcnt(7)")
        A(ms[0]); A(FLAGRD); A(rs[0]); A(rs[1]); A("s_add_u32 s12, s12, 1")
        A(ms[1]); A(rs[2]); A(rs[3]); A(rs[4]); A("s_cmp_eq_u32 s12, 9\ns_cselect_b32 s12, -1, s12")
        A(ms[2]); A(rs[5]); A(rs[6]); A("s_and_b32 s13, s96, 0xff\ns_and_b32 s15, s98, 0xff")
        ms, rs = mfmas(1), reads(3)
        A("s_waitcnt lgkmcnt(7)")
        A(ms[0]); A("s_lshl_b32 s13, s13, 12\ns_lshl_b32 s15, s15, 12"); A(rs[0]); A(rs[1]); A(rs[2])
        A(ms[1]); A("v_cmp_gt_u32 vcc, s12, v10"); A(rs[3]); A(rs[4]); A(rs[5]); A(rs[6])
        A(ms[2])
        A("v_add_u32 v4, s13, v134\nv_add_u32 v5, s13, v135\nv_add_u32 v8, s15, v138")
        A("s_cbranch_vccnz L_c_slow")
        ms, rs = mfmas(2), reads(0)
        A("s_waitcnt lgkmcnt(7)")
        A(ms[0]); A(rs[0]); A(rs[1]); A("v_add_u32 v6, s13, v136\nv_add_u32 v7, s13, v137")
        A(ms[1]); A(rs[2]); A(rs[3]); A(rs[4]); A("v_add_u32 v14, 4, v14")
        A(ms[2]); A(rs[5]); A(rs[6]); A("s_lshr_b64 s[96:97], s[96:97], 8\ns_lshr_b64 s[98:99], s[98:99], 8")
        ms, rs = mfmas(3), reads(1)
        A("s_waitcnt lgkmcnt(7)")
        A(ms[0])
        if "noflag" not in self.opts: self.dmaflag(14)
        A(rs[0]); A(rs[1])
        A(ms[1]); A(rs[2]); A(rs[3]); A(rs[4])
        A(ms[2]); A(rs[5]); A(rs[6])
        A("s_branch L_c_loop")
        A("L_c_slow:")
        A("s_waitcnt lgkmcnt(7)")
        ms = mfmas(2)
        A(ms[0]); A("v_add_u32 v6, s13, v136\nv_add_u32 v7, s13, v137\nv_add_u32 v14, 4, v14")
        A(ms[1])
        A("s_waitcnt lgkmcnt(0)")
        if "noflag" not in self.opts: self.dmaflag(14)
        A(FLAGRD)
        A(ms[2])
        A("s_lshr_b64 s[96:97], s[96:97], 8\ns_lshr_b64 s[98:99], s[98:99], 8")
        ms = mfmas(3)
        A(ms[0]); A(ms[1])
        A("s_waitcnt lgkmcnt(0)\nv_cmp_gt_u32 vcc, s12, v10")
        A(ms[2])
        A("s_cbranch_vccz L_c_rd")
        A("s_cmp_lg_u32 s12, -1\ns_cbranch_scc1 L_c_poll")
        self.dstamp()
        A("s_cmp_eq_u32 s57, 15\ns_cbranch_scc1 L_c_gate")
        A("s_nop 4")
        for fb in range(3):
            if fb == 1: A("s_cmp_eq_u32 s57, 14\ns_cbranch_scc1 L_c_e1done")
            for hs in range(2):
                o = 64 + 8*fb + 4*hs
                for q in range(8):
                    r0 = ACC + 16*fb + 8*hs + q
                    A(f"v_mul_f32 v{r0}, v{r0}, abs(v{r0})")
                for q in range(4):
                    r0 = ACC + 16*fb + 8*hs + 2*q
                    A(f"v_cvt_pk_bf16_f32 v{o+q}, v{r0}, v{r0+1}")
                for q in range(4): A(f"v_pk_max_i16 v{o+q}, v{o+q}, 0")
                idx = 2*fb + hs
                A(f"buffer_store_dwordx4 {v(o,4)}, v13, s[72:75], s{76 if idx < 4 else 77} offen offset:{(idx&3)*1024} sc1")
        A("s_branch L_c_e1done")
        A("L_c_gate:")
        A("s_nop 7")
        A(f"v_add_f32 v64, v{ACC}, v{ACC+5}")
        A(f"v_mul_f32 v64, {LOG2E ^ 0x80000000:#x}, v64")
        A("v_exp_f32 v64, v64")
        A("v_and_b32 v65, 15, v0")
        A("v_add_f32 v64, 1.0, v64")
        A("v_rcp_f32 v64, v64")
        A("s_lshr_b32 s10, s58, 1\ns_and_b32 s11, s58, 1\ns_lshl_b32 s12, s10, 7\ns_lshl_b32 s13, s11, 2\ns_add_u32 s12, s12, s13")
        A(f"s_add_u32 s100, s12, {WS_FG:#x}\ns_lshl_b32 s10, s12, 1\ns_add_u32 s10, s10, {WS_G:#x}")
        A("v_bfe_u32 v66, v0, 4, 1\nv_lshlrev_b32 v66, 2, v66\nv_lshl_add_u32 v66, v65, 4, v66")
        A("s_mov_b32 exec_hi, 0")
        A("buffer_store_dword v64, v66, s[72:75], s10 offen sc1")
        A("s_mov_b64 exec, -1")
        A("L_c_e1done:")
        if self.opt("c2p", 1) != 9: A("s_setprio %d" % self.opt("c2p", 1))
        self.dstamp()
        self.gemm2()

    def gemm2(self):
        A = self.A
        AC2 = 16
        NH = self.opt("nh", 16); HB = 48
        WF = [HB+4*NH+8*i for i in range(4)]
        AX = WF[3] + 8
        assert AX + 12 <= 167
        MI, FRA, FRV, RW, RR, RE, RO, OW, OR_, OG = AX, AX+2, AX+3, AX+4, AX+5, AX+6, AX+7, AX+8, AX+9, AX+10
        A("v_lshrrev_b32 v2, 5, v0\nv_bfe_u32 v3, v0, 2, 2\nv_lshl_add_u32 v2, v2, 2, v3\nv_lshlrev_b32 v2, 7, v2")
        A("v_bfe_u32 v3, v0, 3, 1\nv_xor_b32 v3, s53, v3\nv_lshl_add_u32 v2, v3, 6, v2")
        A("v_bfe_u32 v3, v0, 4, 1\nv_lshl_add_u32 v2, v3, 5, v2")
        A("v_and_b32 v3, 3, v0\nv_lshl_add_u32 v2, v3, 3, v2")
        A("s_mul_i32 s10, s53, 12288")
        A("v_add_u32 v4, s10, v2\nv_xor_b32 v5, 64, v4")
        A(f"v_add_u32 v6, {52*KB}, v4\nv_add_u32 v7, {52*KB}, v5")
        A("s_lshl_b32 s10, s53, 11")
        A(f"v_add_u32 v{MI}, s10, v2\nv_xor_b32 v{MI+1}, 64, v{MI}")
        A("s_lshl_b32 s10, s59, 1\ns_add_u32 s10, s10, s52\ns_mul_i32 s10, s10, 86")
        A("s_add_u32 s11, s10, s53\ns_add_u32 s11, s11, 84\ns_lshl_b32 s11, s11, 10")
        A(f"s_add_u32 s76, s11, {WS_H:#x}")
        A("s_mul_i32 s11, s53, 42\ns_add_u32 s10, s10, s11\ns_lshl_b32 s10, s10, 10")
        A(f"s_add_u32 s77, s10, {WS_H:#x}")
        A(f"v_and_b32 v{FRA}, 3, v0\nv_lshl_add_u32 v{FRA}, v{FRA}, 2, v9")
        A(f"s_lshl_b32 s10, s53, 2\ns_add_u32 s10, s10, {L_FLAG+F_PX}\nv_mov_b32 v11, s10")
        A("v_mov_b32 v8, s94\nv_mov_b32 v12, 8")
        self.rot(10)
        A(f"s_mul_i32 s10, s10, 6144\ns_add_u32 s10, s10, s77\ns_add_u32 s11, s77, {7*6144}")
        for g in range(7):
            A(f"s_mov_b32 s{78+2*g}, s10\ns_add_u32 s{79+2*g}, s10, 4096")
            if g < 6: A("s_add_u32 s10, s10, 6144\ns_cmp_eq_u32 s10, s11\ns_cselect_b32 s10, s77, s10")
        A("s_lshl_b32 s10, s60, 12")
        A(f"s_add_u32 s11, s10, {L_RED}\nv_add_u32 v{RW}, s11, v13")
        A(f"s_xor_b32 s11, s10, 8192\ns_add_u32 s11, s11, {L_RED}\nv_add_u32 v{RR}, s11, v13")
        A(f"s_xor_b32 s11, s53, 1\ns_lshl_b32 s11, s11, 13\ns_lshl_b32 s12, s52, 11\ns_add_u32 s11, s11, s12\ns_add_u32 s11, s11, {L_KF}\nv_add_u32 v{RE}, s11, v13")
        A(f"s_lshl_b32 s11, s52, 3\ns_add_u32 s11, s11, {L_OMG}\nv_and_b32 v2, 15, v0\nv_lshl_add_u32 v2, v2, 4, s11\nv_bfe_u32 v3, v0, 4, 1\nv_lshl_add_u32 v{RO}, v3, 2, v2")
        A("s_mul_i32 s10, s60, 2560")
        A(f"s_add_u32 s10, s10, {L_OT}")
        A(f"v_mul_u32_u24 v2, 80, v1\nv_lshrrev_b32 v3, 5, v0\nv_lshl_add_u32 v2, v3, 3, v2\nv_add_u32 v{OW}, s10, v2")
        A(f"v_lshrrev_b32 v3, 2, v0\nv_mul_u32_u24 v2, 80, v3\nv_and_b32 v10, 3, v0\nv_lshl_add_u32 v2, v10, 4, v2\nv_add_u32 v{OR_}, s10, v2")
        A(f"v_lshlrev_b32 v3, 10, v3\nv_lshl_add_u32 v{OG}, v10, 4, v3")
        srd(A, 4, 46, 2048*1024)
        A("s_lshl_b32 s10, s59, 1\ns_add_u32 s10, s10, s52\ns_lshl_b32 s10, s10, 15")
        A("s_lshl_b32 s11, s55, 7\ns_add_u32 s10, s10, s11\ns_lshl_b32 s11, s53, 6\ns_add_u32 s96, s10, s11")
        A("s_add_u32 s97, s96, 16384")
        A("s_waitcnt vmcnt(0)")
        self.flag_set("s100")
        A("s_cmp_lg_u32 s57, 14\ns_cbranch_scc1 L_g2_f1\ns_sub_u32 s100, s100, 128\ns_mov_b32 s8, s62\ns_atomic_swap s8, s[50:51], s100\nL_g2_f1:")
        self.dstamp()
        if "g2only" not in self.opts: self.flag_wait(8, "s101", "L_g2_w", sleep=self.opt("hsl", 0))
        self.dstamp()
        def hload(q):
            r = HB + 4*(q % NH)
            if q == 42: return f"buffer_load_dwordx4 {v(r,4)}, v13, s[72:75], s76 offen sc1"
            g, s_ = divmod(q, 6)
            return f"buffer_load_dwordx4 {v(r,4)}, v13, s[72:75], s{78+2*g+(s_>>2)} offen offset:{(s_&3)*1024} sc1"
        vm = Cnt(A, "vmcnt", 63); lg = Cnt(A, "lgkmcnt", 15)
        N0 = self.opt("hpre", 10)
        def wreads(q):
            buf = WF[q & 3]; o = []
            for db in range(2):
                for h in range(2):
                    if q == 42: a, off = MI+db, L_MINI + h*1024
                    else:
                        b, s_ = divmod(q, 6); base = BLK[b % 5]
                        hi = base >= 52*KB
                        a = 4 + db + (2 if hi else 0); off = base - (52*KB if hi else 0) + s_*2048 + h*1024
                    o.append(f"ds_read_b64_tr_b16 {v(buf+4*db+2*h,2)}, v{a} offset:{off}")
            return o
        progs = []
        def progcheck(b):
            Lp, Lr = A.lab("L_g2_pp"), A.lab("L_g2_pr")
            A(f"s_cbranch_vccnz {Lp}")
            A(f"{Lr}:")
            progs.append((Lp, Lr, 9+b))
        for q in range(4): vm.op(hload(q), q)
        self.lds_wait_ge(11, 0, 9, 10, "L_g2_p0")
        for q in range(3):
            for r in wreads(q): lg.op(r, ("w", q))
        for q in range(4, N0): vm.op(hload(q), q)
        nxt = N0
        for q in range(43):
            g, s_ = divmod(q, 6)
            buf = WF[q & 3]; hr = HB + 4*(q % NH)
            cin = [v(AC2+16*db,16) if q else "0" for db in range(2)]
            vm.need(q)
            if q == 0: self.dstamp()
            lg.need(("w", q))
            A(f"v_mfma_f32_32x32x16_bf16 {v(AC2+16,16)}, {v(buf+4,4)}, {v(hr,4)}, {cin[1]}")
            if s_ == 5 and g < 4 and "g2only" not in self.opts:
                A("v_add_u32 v12, 1, v12\ns_mov_b64 exec, 1")
                lg.op("ds_write_b32 v8, v12")
                A("s_mov_b64 exec, -1")
            if s_ == 0 and g < 6: lg.op("ds_read_b32 v10, v11", "flag")
            if q == 38: lg.op(f"ds_read_b32 v{FRV}, v{FRA} offset:{F_FREE}", "free")
            if s_ == 2 and g < 6:
                lg.need("flag"); A(f"v_cmp_gt_u32 vcc, {10+g}, v10")
            if s_ == 3 and g < 6: progcheck(g+1)
            rs = wreads(q+3) if q+3 <= 42 else []
            for r in rs[:2]: lg.op(r, ("w", q+3))
            if nxt <= 42 and nxt - q < NH: vm.op(hload(nxt), nxt); nxt += 1
            A(f"v_mfma_f32_32x32x16_bf16 {v(AC2,16)}, {v(buf,4)}, {v(hr,4)}, {cin[0]}")
            for r in rs[2:]: lg.op(r, ("w", q+3))
            if nxt <= 42 and nxt - q < NH and q < NH - N0: vm.op(hload(nxt), nxt); nxt += 1
            if q == 41:
                lg.need("free"); A(f"v_cmp_gt_u32 vcc, 12, v{FRV}")
        self.dstamp()
        A("s_cbranch_vccz L_g2_red")
        self.lds_wait_ge(FRA, F_FREE, 12, FRV, "L_g2_fw")
        A("L_g2_red:")
        A("s_nop 9")
        for q in range(4): A(f"ds_write_b128 v{RW}, {v(AC2+16+4*q,4)} offset:{q*1024}")
        A("s_waitcnt lgkmcnt(0)")
        A("s_barrier")
        self.dstamp()
        A(f"ds_read_b32 v8, v{RO}")
        for q in range(4):
            A(f"ds_read_b128 {v(48+4*q,4)}, v{RR} offset:{q*1024}")
            A(f"ds_read_b128 {v(64+4*q,4)}, v{RE} offset:{(q>>1)*4096+(q&1)*1024}")
        for q in range(4):
            A(f"s_waitcnt lgkmcnt({6-q})")
            for r in range(0, 4, 2):
                A(f"v_pk_add_f32 {v(AC2+4*q+r,2)}, {v(AC2+4*q+r,2)}, {v(48+4*q+r,2)}")
            for r in range(0, 4, 2):
                A(f"v_pk_fma_f32 {v(64+4*q+r,2)}, {v(AC2+4*q+r,2)}, v[8:9], {v(64+4*q+r,2)} op_sel_hi:[1,0,1]")
            A(f"v_cvt_pk_bf16_f32 v{80+2*q}, v{64+4*q}, v{64+4*q+1}")
            A(f"v_cvt_pk_bf16_f32 v{81+2*q}, v{64+4*q+2}, v{64+4*q+3}")
            A(f"ds_write_b64 v{OW}, {v(80+2*q,2)} offset:{16*q}")
        A(f"ds_read_b128 v[88:91], v{OR_}\nds_read_b128 v[92:95], v{OR_} offset:1280")
        ofl = "" if "oplain" in self.opts else ("nt" if "ont" in self.opts else ("sc0 sc1" if "osys" in self.opts else "sc1"))
        A("s_waitcnt lgkmcnt(1)")
        A(f"buffer_store_dwordx4 v[88:91], v{OG}, s[4:7], s96 offen {ofl}")
        A("s_waitcnt lgkmcnt(0)")
        A(f"buffer_store_dwordx4 v[92:95], v{OG}, s[4:7], s97 offen {ofl}")
        self.dstamp()
        if self.ts:
            A("s_waitcnt vmcnt(0)")
            self.dstamp()
        if "rt" in self.opts:
            A("s_waitcnt vmcnt(0)\ns_memrealtime s[64:65]\ns_lshl_b32 s8, s2, 2\ns_add_u32 s8, s8, s60\ns_lshl_b32 s8, s8, 3")
            A(f"s_add_u32 s8, s8, {WS_TS:#x}\nv_mov_b32 v4, s8\ns_waitcnt lgkmcnt(0)")
            A("v_mov_b32 v2, s68\nv_mov_b32 v3, s64\ns_mov_b64 exec, 1\nglobal_store_dwordx2 v4, v[2:3], s[50:51]")
        self.end()
        for Lp, Lr, n in progs:
            A(f"{Lp}:")
            self.lds_wait_ge(11, 0, n, 10, "L_g2_pw")
            A(f"s_branch {Lr}")

    def sbar(self, k):
        A = self.A
        A("s_waitcnt lgkmcnt(0)")
        A(f"s_mov_b64 exec, 1\nds_add_u32 v9, v8 offset:{F_SB}\ns_mov_b64 exec, -1")
        self.lds_wait_ge(9, F_SB, 4*k, 10, "L_sb")

    def ssm(self):
        A = self.A
        A(".p2align 8")
        A("L_ssm:")
        self.role = "s"
        self.entry()
        A("s_sub_u32 s60, s3, 8")
        A("s_and_b32 s52, s60, 1\ns_lshr_b32 s53, s60, 1")
        A("s_lshl_b32 s13, s2, 2")
        self.pf_setup()
        A("s_load_dword s14, s[30:31], s13\ns_load_dword s15, s[32:33], s13")
        A("s_barrier")
        self.pf([4])
        if "stop0" in self.opts or "g2only" in self.opts: A("s_endpgm")
        A("s_setprio %d" % self.opt("sprio", 1))
        self.map_tb()
        A(f"v_mov_b32 v9, {L_FLAG}\nv_mov_b32 v8, 1")
        srd(A, 72, 50, WS_END)
        A("v_and_b32 v123, 15, v0\nv_lshrrev_b32 v124, 4, v0\nv_lshlrev_b32 v13, 4, v0")
        A("s_lshl_b32 s10, s55, 7\ns_lshl_b32 s9, s60, 5\ns_add_u32 s10, s10, s9\nv_lshl_add_u32 v3, v124, 3, s10")
        A("global_load_dwordx2 v[98:99], v3, s[42:43]")
        A(f"s_mul_i32 s12, s52, 4608\ns_add_u32 s12, s12, {L_UL}\nv_lshl_add_u32 v12, v0, 3, s12\nv_mov_b64 v[2:3], 0")
        A("s_mov_b32 exec_hi, 0x0fffffff\nds_write_b64 v12, v[2:3]\ns_mov_b64 exec, -1")
        SEL = 158
        A("v_and_b32 v1, 31, v0\nv_lshrrev_b32 v2, 5, v0\nv_lshlrev_b32 v2, 4, v2\nv_sub_u32 v1, v1, v2")
        A("v_and_b32 v2, 1, v1\nv_lshlrev_b32 v2, 4, v2\nv_mov_b32 v3, 0x3f80\nv_lshlrev_b32 v2, v2, v3\nv_ashrrev_i32 v1, 1, v1")
        for j in range(8):
            A(f"v_cmp_eq_u32 vcc, {j}, v1\ns_nop 1\nv_cndmask_b32 v{SEL+j}, 0, v2, vcc")
        A(f"s_lshl_b32 s12, s52, 8\ns_lshl_b32 s13, s53, 7\ns_add_u32 s12, s12, s13\ns_add_u32 s12, s12, {L_PAR}")
        A("v_lshl_add_u32 v6, v0, 1, s12")
        A(f"s_mul_i32 s11, s52, 5632\ns_mul_i32 s12, s53, 2816\ns_add_u32 s57, s11, s12\ns_add_u32 s57, s57, {L_KP}\ns_add_u32 s56, s11, {L_KP}")
        A("v_lshlrev_b32 v3, 2, v124\nv_lshl_add_u32 v120, v123, 4, v3")
        A("v_lshl_add_u32 v3, v123, 3, v3\nv_lshlrev_b32 v2, 6, v124\nv_lshl_add_u32 v4, v123, 2, v2")
        A("v_cmp_gt_u32 vcc, 2, v124")
        A("v_lshl_add_u32 v122, v123, 1, v2\nv_add_u32 v122, 512, v122")
        A("v_cndmask_b32 v121, v4, v3, vcc\nv_add_u32 v121, 256, v121\nv_mov_b32 v125, s57")
        for r_ in (120, 121, 122): A(f"v_lshrrev_b32 v2, 5, v{r_}\nv_add_u32 v{r_}, v{r_}, v2\nv_lshl_add_u32 v{r_}, v{r_}, 2, s57")
        A(f"s_mul_i32 s11, s52, 8320\ns_lshl_b32 s12, s53, 11\ns_add_u32 s12, s12, s11\ns_add_u32 s12, s12, {L_KF}")
        A("v_lshl_add_u32 v12, v0, 5, s12")
        A(f"s_mul_i32 s12, s53, 4160\ns_add_u32 s12, s12, s11\ns_add_u32 s12, s12, {L_KF+4096}")
        A("v_lshl_add_u32 v11, v0, 2, s12")
        A(f"s_mul_i32 s11, s52, 4608\ns_lshl_b32 s12, s53, 8\ns_sub_u32 s11, s11, s12\ns_add_u32 s11, s11, {L_UL+448-192}")
        A("v_lshlrev_b32 v3, 4, v124\nv_lshl_add_u32 v3, v123, 5, v3\nv_add_u32 v14, s11, v3")
        A("v_sub_u32 v3, 2031, v123\nv_lshrrev_b32 v3, 1, v3\nv_lshl_add_u32 v3, v124, 2, v3\nv_lshlrev_b32 v3, 2, v3")
        A("v_and_b32 v15, 1, v123\nv_xor_b32 v15, 1, v15\nv_mul_u32_u24 v15, 4160, v15\nv_add_u32 v3, v3, v15")
        A(f"s_mul_i32 s11, s52, 8320\ns_sub_u32 s11, s11, s12\ns_add_u32 s11, s11, {L_KF-192-512}")
        A("v_add_u32 v15, s11, v3")
        A(f"v_and_b32 v3, 7, v0\nv_lshl_add_u32 v62, v3, 2, v9")
        A("v_lshlrev_b32 v3, 2, v3\nv_mov_b32 v63, %s\nv_lshrrev_b32 v63, v3, v63\nv_and_b32 v63, 15, v63" % (hex(0x11*self.opt("lpa", 0)) if EARLY else "0x66660088"))
        A(f"v_and_b32 v3, 1, v0\nv_mul_u32_u24 v96, {F_UD+4}, v3\nv_add_u32 v96, v96, v9\nv_lshlrev_b32 v3, 1, v3\nv_sub_u32 v97, 4, v3")
        GA = 100
        A("s_cmp_eq_u32 s53, 0\ns_cbranch_scc1 L_s_nga")
        A("v_lshlrev_b32 v1, 4, v0\nv_sub_u32 v1, 1023, v1\nv_cvt_f32_i32 v4, v1")
        for i in range(17):
            A(f"v_subrev_u32 v2, {i}, v1")
            A(f"v_subrev_f32 v3, {f2h(float(i)):#x}, v4")
            A("v_cvt_pk_bf16_f32 v3, v3, 0")
            A("v_min_i32 v2, 128, v2")
            A("v_subrev_u32 v3, 0x4280, v3")
            A("v_max_i32 v3, v3, v2")
            if i == 16: A("v_min_u32 v3, 660, v3")
            A("v_lshrrev_b32 v2, 5, v3\nv_add_u32 v3, v3, v2")
            A(f"v_lshl_add_u32 v{GA+i}, v3, 2, s56")
        A("s_branch L_s_gad")
        A("L_s_nga:")
        A(f"v_lshlrev_b32 v{GA}, 1, v0\nv_sub_u32 v{GA}, 638, v{GA}\nv_add_u32 v{GA+2}, 2, v{GA}")
        for r_ in (GA, GA+2): A(f"v_lshrrev_b32 v3, 5, v{r_}\nv_add_u32 v{r_}, v{r_}, v3\nv_lshl_add_u32 v{r_}, v{r_}, 2, s56")
        A(f"v_add_u32 v{GA+1}, 4, v{GA}")
        A("L_s_gad:")
        self.dstamp()
        A("s_mul_i32 s10, s2, 5504\ns_mul_i32 s11, s60, 1408\ns_min_u32 s11, s11, 4096\ns_add_u32 s10, s10, s11\ns_add_u32 s34, s40, s10\ns_addc_u32 s35, s41, 0")
        A("s_lshl_b32 s10, s55, 3\ns_lshr_b32 s11, s59, 4\ns_lshl_b32 s11, s11, 2\ns_add_u32 s10, s10, s11\ns_add_u32 s10, s10, s60\ns_lshl_b32 s10, s10, 7")
        A(f"s_add_u32 s100, s10, {WS_FA:#x}\ns_lshl_b32 s10, s59, 7\ns_add_u32 s101, s10, {WS_FG:#x}")
        self.lds_wait_ge(9, F_PAR, 1, 10, "L_s_par", sleep=self.opt("zs", 2))
        for i in range(6): A(f"ds_read_u16 v{16+i}, v6 offset:{512*i}")
        A("s_lshl_b32 s11, s52, 4\ns_lshr_b32 s14, s14, s11\ns_lshl_b32 s14, s14, 16\ns_lshr_b32 s15, s15, s11\ns_lshl_b32 s15, s15, 16")
        A(f"v_mov_b32 v1, {LOG2E:#x}\nv_mul_f32 v2, s14, v1\nv_exp_f32 v2, v2")
        A("s_waitcnt lgkmcnt(0)")
        self.dstamp()
        for i in range(6): A(f"v_lshlrev_b32 v{16+i}, 16, v{16+i}")
        A("v_cvt_pk_bf16_f32 v2, v2, v2\nv_lshlrev_b32 v2, 16, v2")
        A("v_mul_f32 v16, v2, v16\nv_mul_f32 v17, v2, v17\nv_mul_f32 v18, v2, v18\nv_mul_f32 v19, v2, v19")
        A(f"v_mul_f32 v16, v1, v16\nv_mul_f32 v17, {INV2PI:#x}, v17")
        E1, E16, E256, PA, PB, ONE, BS = 22, 24, 26, 28, 30, 4, [46, 48]
        PK, BF, TRE, TIM, KA = self.PK, 80, 126, 142, 50
        def ep(k): return E1 if k == 1 else (32 + k - 2 if k % 2 == 0 else PA)
        def tr(dre, hh):
            for d, p in ((dre, PK), (TIM, PK+8)):
                A(f"v_mfma_f32_32x32x16_bf16 {v(d,16)}, {v(p+4*hh,4)}, {v(SEL+4*hh,4)}, {v(d,16) if hh else '0'}")
        def repack(dre):
            for q in range(4):
                A(f"v_cvt_pk_bf16_f32 v{dre+4*q}, v{dre+4*q}, v{dre+4*q+1}\nv_cvt_pk_bf16_f32 v{dre+4*q+1}, v{dre+4*q+2}, v{dre+4*q+3}")
            for q in range(4):
                A(f"v_cvt_pk_bf16_f32 v{dre+4*q+2}, v{TIM+4*q}, v{TIM+4*q+1}\nv_cvt_pk_bf16_f32 v{dre+4*q+3}, v{TIM+4*q+2}, v{TIM+4*q+3}")
        def kmf(k):
            for q in range(4):
                A(f"v_mfma_f32_16x16x32_bf16 {v(KA+4*k,4)}, {v(TRE+4*q,4)}, {v(BF+4*q,4)}, {v(KA+4*k,4) if q else '0'}")
        self.direct(E16, 16)
        self.cmul(PA, 20, 18)
        cur, nxt = PA, PB
        for b in range(16):
            self.put(b, cur, neg=True)
            if b < 15:
                self.cmul(nxt, cur, E16); cur, nxt = nxt, cur
            if b == 7: tr(BF, 0)
        self.direct(E1, 1)
        tr(BF, 1)
        if "nowarm" not in self.opts: A("s_load_dword s16, s[50:51], s100 glc\ns_load_dword s17, s[50:51], s101 glc")
        A(f"v_mov_b32 v{ONE}, 1.0\nv_mov_b32 v{ONE+1}, 0")
        self.put(0, ONE); self.put(1, E1)
        for k in range(2, 16):
            self.cmul(ep(k), ep(k-1), E1); self.put(k, ep(k))
            if k == 7: repack(BF)
            if k == 8: tr(TRE, 0)
        self.direct(E256, 256)
        tr(TRE, 1)
        self.put(0, E256)
        for r in range(1, 8):
            self.cmul(PA if r & 1 else PB, E256, ep(2*r)); self.put(r, PA if r & 1 else PB)
        repack(TRE)
        self.cmul(BS[0], E256, E256)
        kmf(0)
        tr(TRE, 0)
        for a_ in range(2):
            self.put(8+4*a_, BS[a_])
            for r in range(1, 4):
                self.cmul(PA if r & 1 else PB, BS[a_], ep(4*r)); self.put(8+4*a_+r, PA if r & 1 else PB)
            self.cmul(BS[1-a_], BS[a_], E256)
        tr(TRE, 1)
        cur = 0
        for a_ in range(4):
            self.put(2*a_, BS[cur])
            self.cmul(PA, BS[cur], ep(8)); self.put(2*a_+1, PA)
            self.cmul(BS[1-cur], BS[cur], E256); cur = 1-cur
        repack(TRE)
        self.put(8, BS[cur]); self.put(9, BS[cur])
        kmf(1)
        tr(TRE, 0); tr(TRE, 1)
        self.get_tag(9, 2, 61, "L_s_tag")
        A("v_mov_b32 v1, v123\nv_mov_b32 v2, v124\nv_mov_b32 v24, v15")
        for sp in range(1, 4): A(f"v_subrev_u32 v{24+sp}, {1024*sp}, v15")
        repack(TRE)
        A("s_cmp_eq_u32 s53, 0\ns_cselect_b32 s15, s15, 0")
        kmf(2)
        A("v_mov_b32 v6, 0\nv_mov_b32 v7, 0")
        A("v_writelane_b32 v6, s15, 0")
        A(f"v_add_f32 v{KA}, v{KA}, v6")
        A("s_waitcnt vmcnt(0)\nv_mov_b32 v22, v98\nv_mov_b32 v23, v99")
        self.dstamp()
        KX = 32
        GV = 126
        A("s_setprio %d" % self.opt("slp", 2))
        self.lds_wait_ge(62, F_PX, "v63", 10, "L_s_lp", sleep=self.opt("zs", 2))
        self.dstamp()
        for k_ in range(2):
            A(f"ds_write2_b32 v{120+k_}, v{KA+4*k_}, v{KA+4*k_+1} offset0:0 offset1:1\nds_write2_b32 v{120+k_}, v{KA+4*k_+2}, v{KA+4*k_+3} offset0:2 offset1:3")
        A(f"s_mov_b32 exec_hi, 1\nds_write2_b32 v122, v{KA+8}, v{KA+9} offset0:0 offset1:1")
        A(f"s_mov_b32 exec_hi, 0\nds_write2_b32 v122, v{KA+10}, v{KA+11} offset0:33 offset1:34")
        A(f"s_mov_b64 exec, 1\nds_write_b32 v125, v7 offset:{680*4}\nds_add_u32 v9, v8 offset:{F_KS}")
        A("s_mov_b64 exec, 0xff\nds_write_b32 v11, v7\ns_mov_b64 exec, -1")
        if "fine" in self.opts: self.dstamp()
        self.lds_wait_ge(9, F_KS, 4, 10, "L_s_ks")
        if "fine" in self.opts: self.dstamp()
        A("s_cmp_eq_u32 s53, 0\ns_cbranch_scc1 L_s_g0")
        for i in range(17):
            A(f"ds_read2st64_b32 {v(GV+2*i,2)}, v{GA+i} offset0:0 offset1:11")
            if i == 13: A("s_waitcnt lgkmcnt(8)")
        A("s_waitcnt lgkmcnt(8)")
        for i in range(17):
            if i == 9: A("s_waitcnt lgkmcnt(0)")
            A(f"v_add_f32 v{GV+2*i}, v{GV+2*i}, v{GV+2*i+1}")
        for i in range(8): A(f"v_cvt_pk_bf16_f32 v{KX+i}, v{GV+4*i}, v{GV+4*i+2}")
        for i in range(8): A(f"v_cvt_pk_bf16_f32 v{KX+8+i}, v{GV+4*i+2}, v{GV+4*i+4}")
        A("s_branch L_s_gj")
        A("L_s_g0:")
        for k_, r_ in enumerate((GA, GA+1, GA+2)): A(f"ds_read2st64_b32 {v(GV+2*k_,2)}, v{r_} offset0:0 offset1:11")
        A("s_waitcnt lgkmcnt(0)")
        A(f"v_add_f32 v{GV}, v{GV}, v{GV+1}\nv_add_f32 v{GV+1}, v{GV+2}, v{GV+3}\nv_add_f32 v{GV+2}, v{GV+4}, v{GV+5}")
        seq = [GV+2]*4 + [GV+1]*7 + [GV]*6
        for i in range(8): A(f"v_cvt_pk_bf16_f32 v{KX+i}, v{seq[2*i]}, v{seq[2*i+1]}")
        for i in range(8): A(f"v_cvt_pk_bf16_f32 v{KX+8+i}, v{seq[2*i+1]}, v{seq[2*i+2]}")
        A("L_s_gj:")
        if "fine" in self.opts: self.dstamp()
        A(f"ds_write_b128 v12, {v(KX,4)}\nds_write_b128 v12, {v(KX+4,4)} offset:16")
        A(f"ds_write_b128 v12, {v(KX+8,4)} offset:4160\nds_write_b128 v12, {v(KX+12,4)} offset:4176")
        if "fine" in self.opts: self.dstamp()
        A(f"s_mov_b64 exec, 1\nds_add_u32 v9, v8 offset:{F_SB}\ns_mov_b64 exec, -1")
        self.lds_wait_ge(96, F_SB, "v97", 10, "L_sb", sleep=(1 if EARLY else 0))
        A("s_setprio %d" % self.opt("scv", 2))
        self.dstamp()
        CA = 28; KR = 60; UB = [92, 124]
        lg = Cnt(A, "lgkmcnt", 15)
        def uread(rr, T):
            lg.op(f"ds_read_b128 {v(UB[rr&1]+4*T,4)}, v14 offset:{64*(3-rr)+512*T}", ("u", rr, T))
        def kread(rr, sg):
            o = 16*(3-rr) + (128 if (sg & 1) == 0 else 0)
            lg.op(f"ds_read2_b32 {v(KR+4*sg,2)}, v{24+(sg>>1)} offset0:{o} offset1:{o+1}", None)
            lg.op(f"ds_read2_b32 {v(KR+4*sg+2,2)}, v{24+(sg>>1)} offset0:{o+2} offset1:{o+3}", ("k", rr, sg))
        kread(0, 0)
        for T in range(8): uread(0, T)
        kread(0, 1); kread(0, 2)
        for rr in range(4):
            pend = []
            for sg in range(8):
                if rr == 0 and sg + 3 < 8: pend.append(("k", 0, sg+3))
                if rr < 3 and sg >= 1: pend.append(("k", rr+1, sg-1))
                if rr > 0 and sg == 0: pend.append(("k", rr, 7))
                if rr < 3 and sg == 1: pend += [("u", rr+1, T) for T in range(4)]
                if rr < 3 and sg == 2: pend += [("u", rr+1, T) for T in range(4, 8)]
                lg.need(("k", rr, sg))
                for T in range(8 - sg):
                    lg.need(("u", rr, T))
                    first = (rr == 0 and sg == 0)
                    acc = v(CA+4*(sg+T), 4)
                    A(f"v_mfma_f32_16x16x32_bf16 {acc}, {v(UB[rr&1]+4*T,4)}, {v(KR+4*sg,4)}, {'0' if first else acc}")
                    if pend:
                        if len(lg.q) > 13:
                            A("s_waitcnt lgkmcnt(8)"); lg.q = lg.q[-8:]
                        x = pend.pop(0)
                        (kread if x[0] == "k" else uread)(x[1], x[2])
                if rr == 3 and sg == 1:
                    A("s_waitcnt lgkmcnt(0)"); lg.q = []
                    A(f"s_mov_b64 exec, 1\nds_add_u32 v9, v8 offset:{F_SB}\ns_mov_b64 exec, -1")
            assert not pend
        self.dstamp()
        A("s_setprio %d" % self.opt("sxp", 2))
        A(f"s_lshl_b32 s11, s60, 12\ns_add_u32 s12, s11, {L_KF}\nv_add_u32 v4, s12, v13")
        A(f"s_xor_b32 s11, s11, 8192\ns_add_u32 s58, s11, {L_KF}\nv_add_u32 v5, s58, v13")
        self.lds_wait_ge(9, F_SB, 8, 10, "L_s_kd")
        if "fine" in self.opts: self.dstamp()
        A(f"s_lshl_b32 s10, s2, 13\ns_lshl_b32 s11, s52, 12\ns_add_u32 s10, s10, s11\ns_lshl_b32 s11, s53, 11\ns_add_u32 s10, s10, s11\ns_add_u32 s10, s10, {WS_A:#x}")
        A("s_cmp_eq_u32 s53, 0\ns_cbranch_scc1 L_s_x0")
        def xchg(send, keep):
            for q in range(4): A(f"ds_write_b128 v4, {v(send+4*q,4)} offset:{q*1024}")
            A(f"s_mov_b64 exec, 1\nds_add_u32 v9, v8 offset:{F_SB}\ns_mov_b64 exec, -1")
            A("v_and_b32 v3, 7, v0\nv_lshlrev_b32 v3, 4, v3\nv_lshl_add_u32 v3, v2, 7, v3\nv_bfe_u32 v6, v0, 3, 1\nv_lshl_add_u32 v6, v6, 9, v3")
            if "fine" in self.opts: self.dstamp()
            self.lds_wait_ge(9, F_SB, 12, 10, "L_s_xw")
            if "fine" in self.opts: self.dstamp()
            for q in range(4): A(f"ds_read_b128 {v(60+4*q,4)}, v5 offset:{q*1024}")
            for q in range(4):
                A(f"s_waitcnt lgkmcnt({3-q})")
                for r in range(4): A(f"v_add_f32 v{60+4*q+r}, v{60+4*q+r}, v{keep+4*q+r}")
        xchg(CA, CA+16)
        A("s_branch L_s_xj")
        A("L_s_x0:")
        xchg(CA+16, CA)
        A("L_s_xj:")
        for i in range(8): A(f"v_cvt_pk_bf16_f32 v{76+i}, v{60+2*i}, v{61+2*i}")
        for p in range(2):
            for i in range(2): A(f"v_mov_b32 v{84+2*p+i}, v{76+4*p+i}")
        for p in range(2):
            for i in range(2): A(f"v_mov_b32_dpp v{76+4*p+i}, v{78+4*p+i} row_ror:8 row_mask:0xf bank_mask:0xc")
            for i in range(2): A(f"v_mov_b32_dpp v{78+4*p+i}, v{84+2*p+i} row_ror:8 row_mask:0xf bank_mask:0x3")
            A(f"buffer_store_dwordx4 {v(76+4*p,4)}, v6, s[72:75], s10 offen offset:{1024*p} sc1")
        self.dstamp()
        A("s_lshl_b32 s10, s2, 1\ns_add_u32 s10, s10, s52\ns_lshr_b32 s11, s10, 6\ns_lshl_b32 s11, s11, 3\ns_lshl_b32 s12, s53, 2\ns_add_u32 s11, s11, s12\ns_bfe_u32 s12, s10, 0x20004\ns_add_u32 s11, s11, s12")
        A(f"s_lshl_b32 s11, s11, 7\ns_and_b32 s10, s10, 15\ns_lshl_b32 s10, s10, 2\ns_add_u32 s10, s10, s11\ns_add_u32 s56, s10, {WS_FA:#x}")
        A("s_lshl_b32 s10, s55, 18\ns_lshl_b32 s11, s60, 16\ns_add_u32 s10, s10, s11\ns_lshl_b32 s11, s59, 7\ns_add_u32 s10, s10, s11")
        A(f"s_add_u32 s10, s10, {WS_A:#x}")
        for i in range(1, 4): A(f"s_add_u32 s{10+i}, s10, {4096*i}")
        A("v_lshlrev_b32 v3, 14, v2\nv_lshl_add_u32 v4, v1, 3, v3")
        A("v_and_b32 v3, 1, v1\nv_lshrrev_b32 v1, 1, v1\nv_lshl_add_u32 v1, v3, 3, v1")
        A(f"s_lshl_b32 s14, s59, 8\ns_add_u32 s14, s14, {WS_G:#x}")
        A("v_lshlrev_b32 v5, 4, v1")
        A("v_lshrrev_b32 v3, 1, v2\nv_lshlrev_b32 v3, 10, v3\nv_add_u32 v3, v3, v5\nv_and_b32 v6, 1, v2\nv_lshl_add_u32 v3, v6, 9, v3\nv_add_u32 v11, s58, v3")
        A(f"v_add_u32 v12, {L_OMG}, v5")
        A("s_waitcnt vmcnt(0)")
        self.flag_set("s56")

        self.dstamp()
        self.flag_wait(16, "s100", "L_s_aw", sleep=self.opt("asl", 0), extra="s101")
        self.dstamp()
        for i in range(4): A(f"buffer_load_dwordx2 {v(32+2*i,2)}, v4, s[72:75], s{10+i} offen sc1")
        A("buffer_load_dwordx4 v[48:51], v5, s[72:75], s14 offen sc1")
        A("s_waitcnt vmcnt(0)")
        self.dstamp()
        A("v_lshlrev_b32 v60, 16, v22\nv_and_b32 v61, 0xffff0000, v22\nv_lshlrev_b32 v62, 16, v23\nv_and_b32 v63, 0xffff0000, v23")
        for r in range(4):
            for i in range(4):
                src = 32 + 2*i + (r >> 1)
                d = 64 + 4*r + i
                A(f"v_lshlrev_b32 v{d}, 16, v{src}" if (r & 1) == 0 else f"v_and_b32 v{d}, 0xffff0000, v{src}")
                A(f"v_sub_f32 v{d}, v{d}, v{60+i}")
                A(f"v_fma_f32 v{d}, v{48+r}, v{d}, v{60+i}")
            A(f"ds_write_b128 v11, {v(64+4*r,4)} offset:{(r>>1)*2048+(r&1)*256}")
        for r in range(4): A(f"v_sub_f32 v{80+r}, 1.0, v{48+r}")
        A("s_mov_b64 exec, 0xffff\nds_write_b128 v12, v[80:83]")
        A("s_waitcnt lgkmcnt(0)")
        self.dstamp()
        self.end()

    def build(self):
        self.prologue(); self.helper(); self.loader_x(); self.loader_w(); self.helper2(); self.loader_w2(); self.ssm(); self.consumer()
        self.A("L_end:\ns_endpgm\n.p2align 6\nL_tab:")
        self.A(".long " + ", ".join(str(i) for i in range(16)))
        self.A(f"L_codeend:\n.fill (33024-(L_codeend-{NAME}))/4, 4, 0xbf800000")
        return single(self.A.text(), 256, 64*NWAVES, LDS_TOTAL, 168, 102, 168)

if __name__ == "__main__":
    args = sys.argv[2:]
    open(sys.argv[1], "w").write(G(ts="ts" in args, opts=args).build())
```

```python
import sys, struct
from asmgen import *

WS_EPOCH = 0
WS_G     = 0x1000
WS_FH    = 0x8000
WS_FG    = 0xC000
WS_FU    = 0xD000
WS_FA    = 0xF000
WS_H     = 0x80000
WS_UT    = 0x600000
WS_A     = 0x800000
WS_END   = 0xA00000
WS_TS    = 0x2000000
EPC = 0x9E3779B9
TM  = 0x69969669

KB = 1024
XS = [44*KB, 72*KB, 100*KB, 0, 16*KB]
WSL = [32*KB, 60*KB, 88*KB, 116*KB]
L_MINI = 0
BLK = [4*KB, 28*KB, 52*KB, 76*KB, 100*KB]
BLKNEED = [5, 6, 7, 7, 8]
L_TA = 0
L_TB = 116*KB
L_KF = 128*KB
L_OMG = L_KF + 16640
L_UL = 148*KB + 32
L_KP = 52*KB
L_PAR = 128*KB
L_ST  = 132*KB
L_RED = 52*KB
L_OT  = 68*KB
L_FLAG = 163840 - 128
F_SB, F_KS, F_TAG, F_PX, F_PW, F_UD, F_FREE, F_PAR, F_XC = 0, 4, 8, 16, 20, 24, 32, 48, 56
LDS_TOTAL = 163840
assert L_KP + 4*2816 <= L_FLAG
NWAVES = 12
LOG2E = 0x3fb8aa3b
INV2PI = 0x3e22f983
def f2h(x): return struct.unpack("<I", struct.pack("<f", x))[0]
def pack8(vals): return sum((x//4096) << (8*i) for i, x in enumerate(vals))

EARLY = "early" in sys.argv
if EARLY:
    XS = [16*KB, 44*KB, 72*KB, 100*KB]; L_KP = 0
XD = len(XS)

class Cnt:
    def __init__(self, A, name, mx): self.A = A; self.q = []; self.name = name; self.mx = mx; self.issued = set()
    def op(self, text, tag=None):
        self.A(text); self.q.append(tag); self.issued.add(tag)
        assert len(self.q) <= self.mx, "counter overflow"
    def need(self, tag):
        assert tag in self.issued, tag
        idx = [i for i, t in enumerate(self.q) if t == tag]
        if not idx: return
        n = len(self.q) - 1 - idx[-1]
        self.A(f"s_waitcnt {self.name}({min(n, self.mx)})")
        self.q = self.q[idx[-1]+1:]

class G:
    def __init__(self, ts=False, opts=()):
        self.A = Asm(); self.ts = ts; self.opts = set(opts); self.role = None; self.npt = 0; self.ncm = 0; self.nw2 = 0
        self.amprole = "s" if "amps" in self.opts else "c"
    def opt(self, name, default):
        return int(([o[len(name):] for o in self.opts if o.startswith(name) and o[len(name):].isdigit()] + [default])[0])
    def dstamp(self):
        if self.role == self.amprole:
            self.npt += 1
            if self.npt == self.opt("amp", 0): self.A("s_memrealtime s[70:71]\ns_waitcnt lgkmcnt(0)")
        if not self.ts: return
        self.A(("s_memrealtime s[64:65]\ns_mov_b32 s95, m0\ns_waitcnt lgkmcnt(0)\ns_nop 0\n" if "rts" in self.opts else "s_memtime s[64:65]\ns_mov_b32 s95, m0\ns_waitcnt lgkmcnt(0)\ns_sub_u32 s64, s64, s70\n") + "s_mov_b32 m0, s67\ns_add_u32 s67, s67, 1\nv_writelane_b32 v167, s64, m0\ns_mov_b32 m0, s95\ns_nop 0")
    def dump_ts(self):
        A = self.A
        if not self.ts: return
        A("s_waitcnt lgkmcnt(0) vmcnt(0)")
        A("s_mov_b64 exec, -1")
        A("s_memrealtime s[64:65]\ns_memtime s[10:11]")
        srd(A, 4, 50, 1 << 28)
        A("s_waitcnt lgkmcnt(0)")
        A("v_writelane_b32 v167, s70, 61\ns_sub_u32 s10, s10, s70\nv_writelane_b32 v167, s10, 60")
        A("v_writelane_b32 v167, s68, 63")
        A("v_writelane_b32 v167, s64, 62")
        A("s_lshl_b32 s8, s2, 4\ns_add_u32 s8, s8, s3\ns_lshl_b32 s8, s8, 8")
        A(f"s_add_u32 s8, s8, {WS_TS:#x}")
        A("v_mbcnt_lo_u32_b32 v16, -1, 0\nv_mbcnt_hi_u32_b32 v16, -1, v16\nv_lshlrev_b32 v16, 2, v16")
        A("buffer_store_dword v167, v16, s[4:7], s8 offen")
        A("s_waitcnt vmcnt(0)")
    def end(self):
        if self.opt("amp", 0) and self.role == self.amprole:
            A = self.A; L = A.lab("L_amp")
            A("s_waitcnt vmcnt(0)\ns_memrealtime s[64:65]\ns_waitcnt lgkmcnt(0)")
            if self.opt("amp", 0) == 99: A("s_mov_b32 s70, s64")
            A("s_sub_u32 s70, s70, s68\ns_lshl_b32 s70, s70, %d\ns_min_u32 s70, s70, 20000" % self.opt("mul", 1))
            A(f"{L}:\ns_sleep 1\ns_memrealtime s[10:11]\ns_waitcnt lgkmcnt(0)\ns_sub_u32 s10, s10, s64\ns_cmp_lt_u32 s10, s70\ns_cbranch_scc1 {L}")
        self.dump_ts(); self.A("s_endpgm")

    def guard(self):
        self.A("s_add_u32 s66, s66, 0x1000\ns_cbranch_scc1 L_end")

    def lds_wait_ge(self, vaddr, off, target, vt, name, sleep=0):
        A = self.A; L = A.lab(name); L2 = A.lab(name)
        if sleep:
            A(f"s_branch {L2}\n{L}:\ns_sleep {sleep}\n{L2}:")
        else:
            A(f"{L}:")
        A(f"ds_read_b32 v{vt}, v{vaddr} offset:{off}")
        self.guard()
        A("s_waitcnt lgkmcnt(0)")
        A(f"v_cmp_gt_u32 vcc, {target}, v{vt}")
        A(f"s_cbranch_vccnz {L}")

    def get_tag(self, vaddr, vt, sdst, name):
        A = self.A; L = A.lab(name)
        A(f"{L}:")
        A(f"ds_read_b64 v[{vt}:{vt+1}], v{vaddr} offset:{F_TAG}")
        self.guard()
        A("s_waitcnt lgkmcnt(0)")
        A(f"v_readfirstlane_b32 s9, v{vt+1}")
        A(f"v_readfirstlane_b32 s62, v{vt}")
        A(f"s_cmp_eq_u32 s9, 0\ns_cbranch_scc1 {L}")
        A("s_mov_b32 s63, s62")

    def flag_wait(self, n, soff, name, base=16, extra=None, sleep=0, prewait=True):
        A = self.A; L = A.lab(name)
        if prewait: A("s_waitcnt lgkmcnt(0)")
        if sleep:
            L2 = A.lab(name); A(f"s_branch {L2}\n{L}:\ns_sleep {sleep}\n{L2}:")
        else: A(f"{L}:")
        A(f"s_load_dwordx{n} s[{base}:{base+n-1}], s[50:51], {soff} glc")
        m = n
        if extra:
            A(f"s_load_dwordx2 s[{base+n}:{base+n+1}], s[50:51], {extra} glc"); m = n + 2
        self.guard()
        A("s_waitcnt lgkmcnt(0)")
        for k in range(0, m, 2): A(f"s_xor_b64 s[{base+k}:{base+k+1}], s[{base+k}:{base+k+1}], s[62:63]")
        for k in range(2, m, 2): A(f"s_or_b64 s[{base}:{base+1}], s[{base}:{base+1}], s[{base+k}:{base+k+1}]")
        A(f"s_cbranch_scc1 {L}")
    def flag_set(self, soff):
        self.A(f"s_mov_b32 s9, s62\ns_atomic_swap s9, s[50:51], {soff}")

    def pf_setup(self):
        A = self.A
        if "spf" not in self.opts:
            A("s_waitcnt lgkmcnt(0)"); return
        A("s_lshl_b32 s10, s2, 13\ns_lshl_b32 s11, s60, 11\ns_add_u32 s10, s10, s11")
        A("s_mul_i32 s11, s2, 688\ns_and_b32 s11, s11, 0xffffffc0\ns_mul_i32 s12, s60, 192\ns_add_u32 s11, s11, s12\ns_min_u32 s11, s11, 175936")
        A("s_add_u32 s11, s11, %d" % (3*176128))
        A("s_waitcnt lgkmcnt(0)")
        A("s_add_u32 s34, s16, s10\ns_addc_u32 s35, s17, 0\ns_add_u32 s44, s36, s11\ns_addc_u32 s45, s37, 0")
    def pf(self, slices):
        if "spf" not in self.opts: return
        n = 0
        for sl in slices:
            for r in range(2):
                for h in range(2): self.A(f"s_load_dword s{78+(n%14)}, s[34:35], {1024*r+128*sl+64*h}"); n += 1
            for k in range(3): self.A(f"s_load_dword s{78+(n%14)}, s[44:45], {176128*(sl-3)+64*k}"); n += 1

    def map_m(self):
        if "lmap" in self.opts:
            self.A("s_and_b32 s56, s2, 7\ns_lshl_b32 s56, s56, 1\ns_bfe_u32 s54, s2, 0x10003\ns_add_u32 s56, s56, s54"); return
        self.A("s_bfe_u32 s56, s2, 0x20001\ns_lshl_b32 s56, s56, 2\ns_bfe_u32 s54, s2, 0x20003\ns_add_u32 s56, s56, s54")
    def map_n(self):
        if "lmap" in self.opts:
            self.A("s_lshr_b32 s57, s2, 4"); return
        self.A("s_and_b32 s57, s2, 1\ns_lshl_b32 s57, s57, 3\ns_lshr_b32 s55, s2, 5\ns_add_u32 s57, s57, s55")
    def map_tb(self):
        self.A("s_and_b32 s59, s2, 7\ns_lshl_b32 s59, s59, 2\ns_bfe_u32 s54, s2, 0x20003\ns_add_u32 s59, s59, s54\ns_lshr_b32 s55, s2, 5")
    def rot(self, d):
        A = self.A
        if "norot" in self.opts: A(f"s_mov_b32 s{d}, 0"); return
        if "rot2" in self.opts:
            A(f"s_and_b32 s{d}, s55, 1\ns_lshl_b32 s{d}, s{d}, 2"); return
        if "nod3" in self.opts: A(f"s_mov_b32 s{d}, s55")
        else: A(f"s_bfe_u32 s{d}, s2, 0x20003\ns_lshl_b32 s{d}, s{d}, 1\ns_cmp_eq_u32 s55, 3\ns_cselect_b32 s{d}, s{d}, 0\ns_add_u32 s{d}, s{d}, s55")
        if "xrot" in self.opts:
            A(f"s_and_b32 s9, s2, 7\ns_add_u32 s{d}, s{d}, s9\ns_cmp_ge_u32 s{d}, 14\ns_cselect_b32 s9, 14, 0\ns_sub_u32 s{d}, s{d}, s9")
        A(f"s_cmp_ge_u32 s{d}, 7\ns_cselect_b32 s9, 7, 0\ns_sub_u32 s{d}, s{d}, s9")
    def tabptr(self):
        A = self.A; L = A.lab("L_tp")
        A(f"s_getpc_b64 s[92:93]\n{L}:")
        A(f"s_add_u32 s92, s92, L_tab-{L}\ns_addc_u32 s93, s93, 0")
    def dmaflag(self, vreg, m0src=None):
        A = self.A
        if m0src is not None: A(f"s_mov_b32 m0, {m0src}")
        A("s_mov_b64 exec, 1")
        A(f"global_load_lds_dword v{vreg}, s[92:93]")
        A("s_mov_b64 exec, -1")

    def prologue(self):
        A = self.A
        if "rt" in self.opts or self.opt("amp", 0): A("s_memrealtime s[68:69]")
        if self.ts: A("s_memrealtime s[70:71]" if "rts" in self.opts else "s_memtime s[70:71]")
        A("s_load_dwordx16 s[16:31], s[0:1], 0")
        A("s_load_dwordx16 s[32:47], s[0:1], 64")
        A("s_load_dwordx4 s[48:51], s[0:1], 128")
        A("v_lshrrev_b32 v2, 6, v0")
        if self.ts or "rt" in self.opts: A("s_nop 0")
        else: A("s_cmpk_ge_u32 s2, 256\ns_cbranch_scc1 L_end")
        A("v_readfirstlane_b32 s3, v2")
        A("s_cmp_ge_u32 s3, 8\ns_cbranch_scc1 L_ssm")
        A("s_cmp_ge_u32 s3, 4\ns_cbranch_scc1 L_cons")
        A("s_cmp_lg_u32 s3, 0\ns_cbranch_scc1 L_disp")
        A("s_getpc_b64 s[8:9]")
        A("s_and_b32 s10, s2, 24\ns_lshl_b32 s10, s10, 10")
        A("v_lshl_add_u32 v1, v0, 7, s10")
        A("global_load_dword v14, v1, s[8:9]")
        A("s_lshl_b32 s10, s2, 9")
        A("v_lshl_add_u32 v2, v0, 4, s10")
        A(f"s_mov_b32 m0, {L_PAR}")
        A("s_mov_b32 exec_hi, 0")
        A("v_lshlrev_b32 v3, 21, v0")
        A("s_waitcnt lgkmcnt(0)")
        fill = ["s_and_b32 s10, s2, 7", "s_lshl_b32 s10, s10, 7", "s_lshr_b32 s12, s2, 3", "s_lshl_b32 s12, s12, 16", "s_add_u32 s10, s10, s12", None]
        if "lazy" in self.opts:
            fill = ["s_lshl_b32 s10, s2, 13", "s_movk_i32 s12, %d" % (688*self.opt("ns", 2)), "s_mul_i32 s12, s12, s2", "v_lshl_add_u32 v4, v0, 6, s12", "global_load_dword v17, v4, s[36:37]", None]
        for i in range(6):
            A(f"global_load_lds_dwordx4 v2, s[{18+2*i}:{19+2*i}]")
            if fill[i]:
                A("s_addk_i32 m0, 512"); A(fill[i])
        if "lazy" in self.opts:
            A("s_mov_b32 exec_lo, 0x%x\ns_mov_b32 exec_hi, exec_lo" % (0x01010101*((1 << self.opt("ns", 2))-1)))
            A("v_lshl_add_u32 v1, v0, 7, s10")
        else:
            A("s_mov_b32 exec_hi, -1")
            A("v_lshl_add_u32 v1, v0, 10, s10")
        A("global_load_dword v15, v1, s[16:17]")
        A("s_mov_b64 exec, 31")
        A("global_load_dword v16, v3, s[50:51] offset:64")
        A("s_mov_b64 exec, -1")
        A("L_disp:")
        A("v_and_b32 v0, 63, v0\ns_mov_b32 s66, 0")
        if self.ts: A("s_mov_b32 s67, 0\nv_mov_b32 v167, 0\ns_memrealtime s[68:69]")
        A("s_cmp_eq_u32 s3, 1\ns_cbranch_scc1 L_ldx")
        A("s_cmp_eq_u32 s3, 2\ns_cbranch_scc1 L_ldw")
    def entry(self):
        A = self.A
        A("v_and_b32 v0, 63, v0\ns_mov_b32 s66, 0")
        if self.ts: A("s_mov_b32 s67, 0\nv_mov_b32 v167, 0\ns_memrealtime s[68:69]")

    def free_issue(self):
        self.A(f"ds_read_b32 v20, v13")
    def free_check(self, target, name):
        A = self.A; L = A.lab(name); L2 = A.lab(name)
        chk = f"s_waitcnt lgkmcnt(0)\nv_cmp_gt_u32 vcc, {target}, v20\n"
        A(chk + f"s_cbranch_vccz {L2}")
        A(f"{L}:")
        if self.opt("zl", 0): A("s_sleep %d" % self.opt("zl", 0))
        self.free_issue()
        self.guard()
        A(chk + f"s_cbranch_vccnz {L}")
        A(f"{L2}:")
    def throttle(self):
        t = self.opt("thr", 0)
        if t: self.A(f"s_waitcnt vmcnt({t})")

    def loop_tail(self, p, depth):
        A = self.A
        A("v_add_u32 v9, 4, v9")
        self.dmaflag(9, "s94")
        if "lstamp" in self.opts: self.dstamp()
        A("s_add_u32 s12, s12, 1\ns_lshr_b64 s[96:97], s[96:97], 8")
        if "nohold" not in self.opts and "lazy" not in self.opts:
            A(f"s_cmp_lg_u32 s12, 1\ns_cbranch_scc1 L_{p}_nh\nv_and_b32 v22, 1, v0\nv_lshl_add_u32 v22, v22, 2, v8")
            self.lds_wait_ge(22, F_UD, 1, 21, f"L_{p}_h")
            A(f"L_{p}_nh:")
        A(f"s_cmp_lt_u32 s12, {depth}\ns_cbranch_scc1 L_{p}_loop")
        A(f"s_cmp_eq_u32 s12, 8\ns_cbranch_scc1 L_w2")
        A(f"s_sub_u32 s15, s12, {depth-1}")
        if "nofree" not in self.opts: self.free_check("s15", f"L_{p}_f")
        A(f"s_branch L_{p}_loop")

    def loader_x(self):
        A = self.A
        A("L_ldx:")
        self.tabptr()
        self.map_m()
        A("v_lshrrev_b32 v1, 3, v0\nv_lshrrev_b32 v2, 4, v0\nv_and_b32 v3, 7, v0\nv_xor_b32 v2, v3, v2\nv_lshlrev_b32 v1, 10, v1")
        A("v_lshl_add_u32 v4, v2, 4, v1")
        A("v_xor_b32 v5, 64, v4")
        A(f"v_add_u32 v5, {7*1024}, v5\nv_add_u32 v6, {14*1024}, v4\nv_add_u32 v7, {14*1024}, v5")
        A("s_lshl_b32 s10, s56, 17")
        xs = [XS[s % XD] for s in range(8)]
        A(f"s_mov_b32 s96, {pack8(xs[:4]):#x}\ns_mov_b32 s97, {pack8(xs[4:]):#x}")
        A(f"s_mov_b32 s94, {L_FLAG+F_PX}\ns_mov_b32 s12, 0\ns_mov_b32 s98, 0")
        A(f"v_mov_b32 v8, {L_FLAG}\nv_mov_b32 v9, 0\nv_and_b32 v13, 3, v0\nv_lshl_add_u32 v13, v13, 2, v8\nv_add_u32 v13, {F_FREE}, v13")
        A("s_mov_b32 s6, 0x200000\ns_mov_b32 s7, 0x20000")
        A("s_waitcnt lgkmcnt(0)")
        A("s_mov_b32 s4, s16\ns_and_b32 s5, s17, 0xffff")
        A("s_barrier")
        if "g2only" in self.opts: A("s_endpgm")
        self.dstamp()
        if self.opt("lprio", 0): A("s_setprio %d" % self.opt("lprio", 0))
        A("s_lshr_b32 s13, s2, 5\ns_lshl_b32 s13, s13, 7\nv_mov_b32 v3, s13\ns_mov_b64 exec, 1")
        A("global_load_dword v140, v3, s[42:43]\nglobal_load_dword v141, v3, s[40:41]\ns_mov_b64 exec, -1")
        if "w2f" in self.opts:
            A("s_mul_i32 s13, s2, 5504\ns_add_u32 s14, s40, s13\ns_addc_u32 s15, s41, 0\nv_lshlrev_b32 v3, 7, v0\ns_movk_i32 exec_hi, 0x7ff")
            A("global_load_dword v142, v3, s[14:15]\ns_mov_b64 exec, -1")
        A("L_x_loop:")
        A("s_and_b32 s13, s96, 0xff\ns_lshl_b32 s13, s13, 12\ns_mov_b32 s14, s10")
        for g in range(4):
            A(f"s_add_u32 m0, s13, {g*4096}")
            if g: A(f"s_add_u32 s14, s14, 32768")
            else: A(f"s_add_u32 s10, s10, 128")
            if g == 3: self.free_issue()
            self.throttle()
            for j in range(4):
                A(f"buffer_load_dwordx4 v{4+j}, s[4:7], s14 offen offset:{j*1024} lds")
        self.loop_tail("x", XD)

    def loader_w(self):
        A = self.A
        A("L_ldw:")
        self.tabptr()
        A(f"v_mov_b32 v8, {L_FLAG}\nv_mov_b32 v9, 0\nv_lshl_add_u32 v3, v0, 2, v8")
        A("s_mov_b32 exec_hi, 0\nds_write_b32 v3, v9\ns_mov_b64 exec, -1")
        self.map_n()
        for j in range(3):
            A(f"v_add_u32 v1, {64*j}, v0")
            A(f"v_mul_u32_u24 v2, 0xaaab, v1\nv_lshrrev_b32 v{24+j}, 19, v2")
            A(f"v_mul_u32_u24 v2, {2752-192}, v{24+j}")
            A(f"v_lshl_add_u32 v{4+j}, v0, 4, v2")
        A("s_mul_i32 s10, s57, 192")
        A(f"s_mov_b32 s53, {16*2752}")
        A(f"v_and_b32 v13, 3, v0\nv_lshl_add_u32 v13, v13, 2, v8\nv_add_u32 v13, {F_FREE}, v13")
        ws_ = [WSL[s % 4] for s in range(8)]
        A(f"s_mov_b32 s96, {pack8(ws_[:4]):#x}\ns_mov_b32 s97, s96")
        A(f"s_mov_b32 s94, {L_FLAG+F_PW}\ns_mov_b32 s12, 0\ns_mov_b32 s98, 1")
        A(f"s_mov_b32 s6, {512*2752}\ns_mov_b32 s7, 0x20000")
        A("s_waitcnt lgkmcnt(0)")
        A("s_mov_b32 s4, s36\ns_and_b32 s5, s37, 0xffff")
        A("s_cmp_ge_u32 s57, 14\ns_cbranch_scc1 L_ld_gate")
        A("L_ld_go:")
        A("s_barrier")
        if "g2only" in self.opts: A("s_endpgm")
        self.dstamp()
        if self.opt("lprio", 0): A("s_setprio %d" % self.opt("lprio", 0))
        A("s_mul_i32 s13, s2, 5504\ns_add_u32 s14, s36, s13\ns_addc_u32 s15, s37, 0\nv_lshlrev_b32 v3, 7, v0\ns_movk_i32 exec_hi, 0x7ff")
        A(("" if "lazy" in self.opts else "global_load_dword v140, v3, s[14:15]\n") + "s_mov_b64 exec, -1")
        A("L_w_loop:")
        A("s_and_b32 s13, s96, 0xff\ns_lshl_b32 s13, s13, 12")
        for g in range(4):
            A(f"s_add_u32 m0, s13, {g*3072}")
            if g == 3: self.free_issue()
            else: A("s_nop 0")
            self.throttle()
            for j in range(3):
                A(f"buffer_load_dwordx4 v{4+j}, s[4:7], s10 offen offset:{j*1024} lds")
            A("s_add_u32 s10, s10, s53")
        self.loop_tail("w", 4)
        A("L_ld_gate:")
        A("v_mov_b32 v15, 0x80000000")
        A("s_cmp_eq_u32 s57, 15\ns_cbranch_scc1 L_ld_gate2")
        for j in range(3):
            A(f"v_add_u32 v1, {64*j}, v0")
            A(f"v_mul_u32_u24 v2, 12, v{24+j}\nv_sub_u32 v1, v1, v2")
            A("v_cmp_gt_u32 vcc, 4, v1\ns_nop 1")
            A(f"v_cndmask_b32 v{4+j}, v15, v{4+j}, vcc")
        A("s_branch L_ld_go")
        A("L_ld_gate2:")
        A("s_sub_u32 s4, s44, 2048\ns_subb_u32 s5, s45, 0\ns_and_b32 s5, s5, 0xffff")
        A("s_mov_b32 s6, 3072\ns_mov_b32 s53, 32\ns_mov_b32 s10, 0")
        for j in range(3):
            A(f"v_add_u32 v1, {64*j}, v0")
            A(f"v_mul_u32_u24 v2, 12, v{24+j}\nv_sub_u32 v1, v1, v2")
            A(f"v_and_b32 v2, 1, v{24+j}")
            A("v_cmp_eq_u32 vcc, v1, v2")
            A(f"v_and_b32 v2, 14, v{24+j}\nv_lshlrev_b32 v2, 1, v2\nv_add_u32 v2, {2048-1024*j}, v2")
            A(f"v_cndmask_b32 v{4+j}, v15, v2, vcc")
        A("s_branch L_ld_go")

    def loader_w2(self):
        A = self.A
        A("L_w2:")
        A("v_lshrrev_b32 v1, 3, v0\nv_lshlrev_b32 v1, 10, v1")
        A("v_bfe_u32 v2, v0, 4, 1\nv_lshlrev_b32 v2, 2, v2\nv_and_b32 v3, 7, v0\nv_xor_b32 v2, v2, v3")
        A("v_lshl_add_u32 v16, v2, 4, v1")
        for j in range(1, 4): A(f"v_add_u32 v{16+j}, {7*1024*j}, v16")
        srd(A, 4, 40, 1376*1024)
        A("s_lshr_b32 s55, s2, 5\ns_lshl_b32 s10, s55, 7")
        A(f"s_lshl_b32 s14, s98, 14\ns_add_u32 s14, s14, s10\ns_add_u32 s14, s14, {1344*1024}")
        A(f"s_mul_i32 s11, s98, {7*96*1024}\ns_add_u32 s52, s10, s11\ns_add_u32 s53, s52, {7*96*1024}")
        A("s_mul_i32 s11, s98, 12288")
        self.rot(13)
        A(f"s_add_u32 s10, s13, 5\ns_cmp_ge_u32 s10, 7\ns_cselect_b32 s12, 7, 0\ns_sub_u32 s10, s10, s12\ns_mul_i32 s10, s10, {96*1024}\ns_add_u32 s10, s10, s52")
        RB = 32
        if self.opt("rg", 7): self.lds_wait_ge(8, F_PW, self.opt("rg", 7), 21, "L_w2_rg")
        for k in range(6):
            for j in range(4):
                A(f"buffer_load_dwordx4 {v(RB+16*k+4*j,4)}, v{16+j}, s[4:7], s10 offen offset:{j*1024}")
            A("s_add_u32 s10, s10, 32768")
            if k % 3 == 2: A("s_cmp_eq_u32 s10, s53\ns_cselect_b32 s10, s52, s10")
        if "lstamp" in self.opts: self.dstamp()
        bl = [BLK[b] for b in range(5)] + [0, 0, 0]
        A(f"s_mov_b32 s96, {pack8(bl[:4]):#x}\ns_mov_b32 s97, {pack8(bl[4:]):#x}")
        nd = sum(x << (4*i) for i, x in enumerate(BLKNEED))
        A(f"s_mov_b32 s99, {nd:#x}")
        if EARLY: self.lds_wait_ge(8, F_SB, 4, 21, "L_w2_e")
        self.free_issue()
        self.free_check(self.opt("w2g", 8), "L_w2_m")
        A(f"s_lshl_b32 m0, s98, 11\ns_nop 0")
        for j in range(2):
            A(f"buffer_load_dwordx4 v{16+j}, s[4:7], s14 offen offset:{j*1024} lds")
        A("L_w2_loop:")
        A("s_and_b32 s13, s96, 0xff\ns_lshl_b32 s13, s13, 12\ns_add_u32 s13, s13, s11")
        for g in range(3):
            A(f"s_add_u32 m0, s13, {g*4096}")
            if g == 2: self.free_issue()
            else: A("s_nop 0")
            self.throttle()
            for j in range(4):
                A(f"buffer_load_dwordx4 v{16+j}, s[4:7], s10 offen offset:{j*1024} lds")
            A("s_add_u32 s10, s10, 32768")
        A("s_cmp_eq_u32 s10, s53\ns_cselect_b32 s10, s52, s10")
        A("v_add_u32 v9, 4, v9")
        self.dmaflag(9, "s94")
        if "lstamp" in self.opts: self.dstamp()
        A("s_lshr_b64 s[96:97], s[96:97], 8\ns_lshr_b32 s99, s99, 4")
        A("s_cbranch_scc0 L_w2_done")
        A("s_and_b32 s15, s99, 15")
        self.free_check("s15", "L_w2_f")
        A(f"s_cmp_lg_u32 s99, {nd >> 8:#x}\ns_cbranch_scc1 L_w2_loop")
        self.lds_wait_ge(8, F_SB, 4, 21, "L_w2_s")
        A("s_branch L_w2_loop")
        A("L_w2_done:")
        A("v_lshl_add_u32 v4, v0, 4, s11\nv_mov_b32 v5, s94")
        A("s_waitcnt vmcnt(0)")
        for bb in range(2):
            self.lds_wait_ge(13, 0, 9+bb, 20, "L_w2_r", sleep=1)
            for k in range(12):
                if "nowr" not in self.opts: A(f"ds_write_b128 v4, {v(RB+48*bb+4*k,4)} offset:{BLK[bb]+1024*k}")
                if self.opt("wsp", 0): A("s_nop %d" % self.opt("wsp", 0))
            A(f"v_mov_b32 v6, {14+bb}\ns_mov_b64 exec, 1\nds_write_b32 v5, v6\ns_mov_b64 exec, -1")
            if "lstamp" in self.opts: self.dstamp()
        A("s_waitcnt lgkmcnt(0)")
        self.dstamp()
        self.end()

    def helper(self):
        A = self.A
        A("s_and_b32 s60, s3, 1")
        A("s_lshr_b32 s59, s2, 3\ns_and_b32 s55, s2, 7")
        A("s_lshl_b32 s10, s59, 16\ns_lshl_b32 s11, s60, 6\ns_add_u32 s10, s10, s11\ns_lshl_b32 s11, s55, 7\ns_add_u32 s10, s10, s11")
        A("v_lshrrev_b32 v12, 3, v0\nv_bfe_u32 v4, v0, 2, 1\nv_lshl_add_u32 v4, v4, 5, v12\nv_and_b32 v11, 3, v0\nv_lshlrev_b32 v5, 4, v11\nv_lshl_add_u32 v4, v4, 10, v5")
        for j in range(1, 4): A(f"v_xor_b32 v{4+j}, {16*j}, v4\nv_add_u32 v{4+j}, {7*1024*j}, v{4+j}")
        A(f"s_mul_i32 s11, s60, 4608\ns_add_u32 s58, s11, {L_UL+480}\ns_mov_b32 m0, s58")
        A("s_waitcnt lgkmcnt(0)")
        A(f"s_load_dword s62, s[50:51], {WS_EPOCH}")
        srd(A, 4, 16, 2048*1024)
        if "lazy" not in self.opts:
            for j in range(4): A(f"buffer_load_dwordx4 v{4+j}, s[4:7], s10 offen offset:{j*1024} lds")
        A("s_barrier")
        A("s_branch L_help2")
    def helper2(self):
        A = self.A
        A("L_help2:")
        A("s_setprio 3")
        A(f"v_mov_b32 v8, {L_FLAG}\nv_mov_b32 v3, 1")
        if "lazy" in self.opts:
            A("s_cmp_lg_u32 s60, 0\ns_cbranch_scc1 L_h_lz")
            A("s_waitcnt vmcnt(2)")
            A(f"s_mov_b64 exec, 1\nds_write_b32 v8, v3 offset:{F_PAR}\ns_mov_b64 exec, -1")
            A("L_h_lz:")
            A("s_waitcnt lgkmcnt(0)")
            A(f"s_add_u32 s62, s62, {EPC:#x}\ns_mov_b32 s63, s62\nv_mov_b32 v2, s62")
            A(f"s_mov_b64 exec, 1\nds_write_b64 v8, v[2:3] offset:{F_TAG}\ns_mov_b64 exec, -1")
            self.lds_wait_ge(8, F_PAR if self.opt("upub", 0) == 0 else F_PW, max(1, self.opt("upub", 0)), 10, "L_h_lw")
            for j in range(4): A(f"buffer_load_dwordx4 v{4+j}, s[4:7], s10 offen offset:{j*1024} lds")
            A("s_mul_i32 s14, s2, 5504\ns_mul_i32 s15, s60, 2816\ns_add_u32 s14, s14, s15\ns_add_u32 s14, s36, s14\ns_addc_u32 s15, s37, 0")
            A("v_lshlrev_b32 v4, 7, v0\ns_lshr_b32 exec_lo, 0x3fffff, s60\ns_mov_b32 exec_hi, 0\nglobal_load_dword v74, v4, s[14:15]\ns_mov_b64 exec, -1")
        self.tabptr()
        srd(A, 72, 50, WS_END)
        A("v_lshrrev_b32 v4, 5, v0\nv_xor_b32 v4, v4, v11\nv_lshlrev_b32 v4, 4, v4\nv_lshl_add_u32 v4, v11, 10, v4")
        A("v_bfe_u32 v5, v0, 2, 1\nv_lshl_add_u32 v4, v5, 6, v4\nv_bfe_u32 v5, v0, 3, 2\nv_lshl_add_u32 v4, v5, 2, v4\nv_add_u32 v24, s58, v4\nv_xor_b32 v25, 32, v24")
        A("v_and_b32 v4, 7, v0\nv_lshlrev_b32 v4, 4, v4\nv_lshl_add_u32 v28, v12, 13, v4")
        A("s_lshl_b32 s10, s55, 18\ns_lshl_b32 s12, s60, 17\ns_add_u32 s10, s10, s12\ns_lshl_b32 s12, s59, 7\ns_add_u32 s10, s10, s12")
        A(f"s_add_u32 s10, s10, {WS_UT:#x}\ns_add_u32 s11, s10, 4096\ns_add_u32 s52, s10, 0x10000\ns_add_u32 s53, s10, 0x11000")
        A("s_lshl_b32 s12, s55, 1\ns_add_u32 s12, s12, s60\ns_lshl_b32 s12, s12, 2\ns_lshr_b32 s13, s59, 3\ns_add_u32 s12, s12, s13\ns_lshl_b32 s12, s12, 7")
        A(f"s_and_b32 s13, s59, 7\ns_lshl_b32 s13, s13, 2\ns_add_u32 s12, s12, s13\ns_add_u32 s54, s12, {WS_FU:#x}")
        A("s_mov_b32 s12, 0x05040100\ns_mov_b32 s13, 0x07060302")
        A("s_load_dword s56, s[50:51], s54 glc")
        A(f"s_lshl_b32 s94, s60, 2\ns_add_u32 s94, s94, {L_FLAG+F_UD}\nv_mov_b32 v9, s94")
        if "lazy" not in self.opts:
            A("s_cmp_lg_u32 s60, 0\ns_cbranch_scc1 L_h_np")
            A("s_waitcnt vmcnt(6)")
            A(f"s_mov_b64 exec, 1\nds_write_b32 v8, v3 offset:{F_PAR}\ns_mov_b64 exec, -1")
            A("L_h_np:")
            A("s_waitcnt lgkmcnt(0)")
            A(f"s_add_u32 s62, s62, {EPC:#x}\ns_mov_b32 s63, s62\nv_mov_b32 v2, s62")
            A(f"s_mov_b64 exec, 1\nds_write_b64 v8, v[2:3] offset:{F_TAG}\ns_mov_b64 exec, -1")
        if "g2only" in self.opts: A("s_waitcnt lgkmcnt(0)\ns_endpgm")
        A("s_waitcnt vmcnt(1) lgkmcnt(0)" if "lazy" in self.opts else "s_waitcnt vmcnt(0)")
        self.dstamp()
        for it_ in range(2):
            for e in range(4): A(f"ds_read2_b32 {v(32+8*it_+2*e,2)}, v{24+it_} offset0:{64*e} offset1:{64*e+32}")
        for it_ in range(2):
            A(f"s_waitcnt lgkmcnt({4-4*it_})")
            for c_ in range(2):
                for e in range(4): A(f"v_perm_b32 v{48+8*it_+4*c_+e}, v{33+8*it_+2*e}, v{32+8*it_+2*e}, s{12+c_}")
                A(f"buffer_store_dwordx4 {v(48+8*it_+4*c_,4)}, v28, s[72:75], s{(10, 11, 52, 53)[2*it_+c_]} offen sc1")
        if "w2all" in self.opts:
            A("s_mul_i32 s14, s2, 5504\ns_mul_i32 s15, s60, 2816\ns_add_u32 s14, s14, s15\ns_add_u32 s14, s40, s14\ns_addc_u32 s15, s41, 0")
            A("v_lshlrev_b32 v4, 7, v0\ns_lshr_b32 exec_lo, 0x3fffff, s60\ns_mov_b32 exec_hi, 0\nglobal_load_dword v73, v4, s[14:15]")
        A("s_mov_b64 exec, 1\nds_write_b32 v9, v3\ns_mov_b64 exec, -1")
        A("s_setprio 0")
        if "w2all" not in self.opts and "now2" not in self.opts: A("s_cmp_eq_u32 s60, 0\ns_cbranch_scc1 L_h_w2\nL_h_w2r:")
        self.dstamp()
        A("s_waitcnt vmcnt(%d)" % (1 if "w2all" in self.opts else 0))
        self.flag_set("s54")
        A("s_cmp_eq_u32 s60, 0\ns_cbranch_scc1 %s" % ("L_h_st" if "w2st" in self.opts else "L_h_done"))
        A(f"s_lshr_b32 s10, s2, 4\ns_lshl_b32 s10, s10, 9\ns_add_u32 s52, s10, {WS_FU:#x}\ns_add_u32 s53, s52, 128\ns_add_u32 s54, s52, 256\ns_add_u32 s55, s52, 384")
        A(f"s_lshl_b32 s10, s2, 13\ns_add_u32 s10, s10, {WS_UT:#x}\ns_add_u32 s11, s10, 4096")
        A(f"s_mov_b32 m0, {L_UL+480}\nv_lshlrev_b32 v13, 4, v0\nv_mov_b32 v9, 8")
        A("s_waitcnt lgkmcnt(0)")
        self.dstamp()
        A("L_h_uw:")
        A("s_sleep %d" % self.opt("usl", 6))
        for k_ in range(4): A(f"s_load_dwordx8 s[{16+8*k_}:{23+8*k_}], s[50:51], s{52+k_} glc")
        self.guard()
        A("s_waitcnt lgkmcnt(0)")
        for k_ in range(0, 32, 2): A(f"s_xor_b64 s[{16+k_}:{17+k_}], s[{16+k_}:{17+k_}], s[62:63]")
        for k_ in range(2, 32, 2): A(f"s_or_b64 s[16:17], s[16:17], s[{16+k_}:{17+k_}]")
        A("s_cbranch_scc1 L_h_uw")
        self.lds_wait_ge(8, F_UD, 1, 10, "L_h_ud")
        for j in range(4): A(f"buffer_load_dwordx4 v13, s[72:75], s10 offen offset:{1024*j} sc1 lds")
        A(f"s_mov_b32 m0, {L_UL+480+4608}\ns_nop 0")
        for j in range(4): A(f"buffer_load_dwordx4 v13, s[72:75], s11 offen offset:{1024*j} sc1 lds")
        self.dmaflag(9, "s94")
        self.dstamp()
        A("s_lshl_b32 s14, s2, 1\ns_add_u32 s14, s14, s60\ns_cmp_lg_u32 s14, 1\ns_cbranch_scc1 L_h_done")
        if "nopub" in self.opts or "nos" in self.opts: A("s_branch L_h_done")
        self.lds_wait_ge(8, F_PW, 8, 4, "L_h_q", sleep=4)
        A(f"v_lshlrev_b32 v4, 7, v0\nv_add_u32 v4, {WS_FU:#x}, v4")
        A("L_h_bump:")
        A("buffer_load_dwordx4 v[10:13], v4, s[72:75], 0 offen sc1\nbuffer_load_dwordx4 v[14:17], v4, s[72:75], 0 offen offset:16 sc1")
        A("s_waitcnt vmcnt(0)")
        for i in range(4): A(f"v_bitop3_b32 v{10+i}, v{10+2*i}, v{11+2*i}, v2 bitop3:0x7e")
        A("v_or3_b32 v10, v10, v11, v12\nv_or_b32 v10, v10, v13")
        A("v_cmp_ne_u32 vcc, 0, v10")
        A("s_cbranch_vccz L_h_ok")
        self.guard()
        A("s_sleep 16\ns_branch L_h_bump")
        A("L_h_ok:")
        A(f"v_mov_b32 v4, {WS_EPOCH}")
        A("s_mov_b64 exec, 1")
        A("buffer_store_dword v2, v4, s[72:75], 0 offen sc1")
        A("L_h_done:")
        A("s_waitcnt vmcnt(0) lgkmcnt(0)")
        if self.ts: self.lds_wait_ge(8, F_PW, 15, 4, "L_h_z", sleep=8)
        self.end()
        if "w2st" in self.opts:
            A("L_h_st:")
            A("s_bfe_u32 s13, s2, 0x%x\ns_add_u32 s13, s13, %d" % (0x10000*self.opt("stb", 2)+3, self.opt("sto", 1)))
            A("s_mul_i32 s14, s2, 5504\ns_add_u32 s14, s40, s14\ns_addc_u32 s15, s41, 0\nv_lshlrev_b32 v4, 7, v0")
            self.lds_wait_ge(8, F_PW, "s13", 10, "L_h_sw", sleep=1)
            A("s_movk_i32 exec_hi, 0x7ff\nglobal_load_dword v73, v4, s[14:15]\ns_mov_b64 exec, -1\ns_branch L_h_done")
        A("L_h_w2:")
        if "w2all" in self.opts or "now2" in self.opts:
            A("s_branch L_h_done"); return
        A("s_mov_b32 s15, s54")
        self.map_n(); self.map_m()
        A("s_mov_b32 s54, s15")
        A("s_cmp_lt_u32 s57, 14\ns_cbranch_scc1 L_h_w2r")
        srd(A, 4, 40, 1376*1024)
        NG = self.opt("gt", 7)
        A(f"s_mul_i32 s10, s56, {88*1024}\ns_sub_u32 s11, 15, s57\ns_mul_i32 s11, s11, {NG*8192}\ns_add_u32 s10, s10, s11\nv_lshlrev_b32 v4, 7, v0")
        for i in range(NG):
            if i == 11-NG: A("s_cmp_eq_u32 s57, 14\ns_cbranch_scc1 L_h_done")
            A(f"buffer_load_dword v{74+i}, v4, s[4:7], s10 offen\ns_add_u32 s10, s10, 8192")
            if i == 2:
                A("s_waitcnt vmcnt(3)"); self.flag_set("s54")
        A("s_mov_b64 exec, -1\ns_branch L_h_done")

    def kg_addr(self):
        A = self.A
        A(f"s_lshl_b32 s12, s52, 8\ns_lshl_b32 s13, s53, 7\ns_add_u32 s12, s12, s13\ns_add_u32 s12, s12, {L_PAR}")
        A("v_lshl_add_u32 v6, v0, 1, s12")
        A(f"s_lshl_b32 s12, s52, 1\ns_add_u32 s12, s12, {L_PAR+3072}\nv_mov_b32 v10, s12\nv_mov_b32 v1, {LOG2E:#x}")
    def kg_common(self, n, dsk=None):
        A = self.A
        A("ds_read_u16 v2, v10")
        for i in range(n): A(f"ds_read_u16 v{16+i}, v6 offset:{512*i}")
        if dsk: A(f"ds_read_u16 v{dsk}, v10 offset:4")
        A(f"s_waitcnt lgkmcnt({n + (1 if dsk else 0)})")
        A("v_lshlrev_b32 v2, 16, v2\nv_mul_f32 v2, v2, v1\nv_exp_f32 v2, v2")
        A("s_waitcnt lgkmcnt(0)")
        A("v_cvt_pk_bf16_f32 v2, v2, v2")
        for i in range(n): A(f"v_lshlrev_b32 v{16+i}, 16, v{16+i}")
        A("v_lshlrev_b32 v2, 16, v2")
    def cmul(self, d, a, b):
        A = self.A
        self.ncm += 1
        if self.ncm >= self.opt("w2s", 4) and self.ncm % 2 == 0 and self.nw2 < 22 and "sw2" in self.opts:
            A(f"s_load_dword s{78+(self.nw2%14)}, s[34:35], {64*self.nw2}"); self.nw2 += 1
        if "pk" in self.opts:
            A(f"v_pk_mul_f32 {v(d,2)}, {v(a,2)}, {v(b,2)} op_sel:[0,0] op_sel_hi:[1,0]")
            A(f"v_pk_fma_f32 {v(d,2)}, {v(a,2)}, {v(b,2)}, {v(d,2)} op_sel:[1,1,0] op_sel_hi:[0,1,1] neg_lo:[1,0,0]")
        else:
            A(f"v_mul_f32 v{d}, v{a}, v{b}\nv_mul_f32 v{d+1}, v{a+1}, v{b}")
            A(f"v_fma_f32 v{d}, -v{a+1}, v{b+1}, v{d}\nv_fmac_f32 v{d+1}, v{a}, v{b+1}")
    def direct(self, d, L):
        A = self.A
        if L != 1:
            A(f"v_mul_f32 v3, {f2h(float(L)):#x}, v16\nv_mul_f32 v7, {f2h(float(L)):#x}, v17")
            A("v_exp_f32 v3, v3\nv_fract_f32 v7, v7")
        else:
            A("v_exp_f32 v3, v16\nv_fract_f32 v7, v17")
        A(f"v_cos_f32 v{d}, v7\nv_sin_f32 v{d+1}, v7")
        A(f"v_mul_f32 v{d}, v3, v{d}\nv_mul_f32 v{d+1}, v3, v{d+1}")
    PK = 64
    def put(self, row, src, neg=False):
        if row & 1 == 0:
            self.prev = src; return
        p = self.prev; n = '-' if neg else ''; PK = self.PK
        self.A(f"v_cvt_pk_bf16_f32 v{PK+(row>>1)}, v{p}, v{src}")
        self.A(f"v_cvt_pk_bf16_f32 v{PK+8+(row>>1)}, {n}v{p+1}, {n}v{src+1}")
    def flush(self, tb, hh):
        PK = self.PK; a = 4 + hh
        self.A(f"ds_write_b128 v{a}, {v(PK+4*hh,4)} offset:{4096*tb+1024*hh}")
        self.A(f"ds_write_b128 v{a}, {v(PK+8+4*hh,4)} offset:{4096*tb+1024*(2+hh)}")
    def chain(self, va, vb, acc, fr):
        A = self.A
        lg = Cnt(A, "lgkmcnt", 15)
        def rd(q):
            o = (q >> 2)*16384 + (q & 3)*256; b = fr + 8*(q % 3)
            for h in range(2): lg.op(f"ds_read_b64_tr_b16 {v(b+2*h,2)}, v{va} offset:{o+2048*h}", q)
            for h in range(2): lg.op(f"ds_read_b64_tr_b16 {v(b+4+2*h,2)}, v{vb} offset:{o+2048*h}", q)
        for q in range(3): rd(q)
        for q in range(8):
            b = fr + 8*(q % 3)
            lg.need(q)
            A(f"v_mfma_f32_16x16x32_bf16 {v(acc,4)}, {v(b,4)}, {v(b+4,4)}, {v(acc,4) if q else '0'}")
            if q + 3 < 8: rd(q+3)
    def tr_addr(self, d):
        A = self.A
        A(f"v_lshrrev_b32 v{d}, 2, v0\nv_lshlrev_b32 v{d}, 4, v{d}\nv_and_b32 v3, 1, v0\nv_lshl_add_u32 v{d}, v3, 3, v{d}")
        A(f"v_bfe_u32 v3, v0, 1, 1\nv_mul_u32_u24 v3, 1152, v3\nv_xor_b32 v{d}, v{d}, v3")

    def consumer(self):
        A = self.A
        ACC = 16
        FR = [64, 80, 96, 112]
        A(".p2align 8")
        A("L_cons:")
        self.role = "c"
        self.entry()
        A("s_sub_u32 s60, s3, 4")
        A("s_and_b32 s52, s60, 1\ns_lshr_b32 s53, s60, 1")
        A(f"v_mov_b32 v9, {L_FLAG}")
        B0 = FR[3]
        self.map_n(); self.map_m()
        A("v_and_b32 v129, 31, v0\nv_lshrrev_b32 v130, 5, v0")
        A("v_lshlrev_b32 v13, 1, v0")
        self.pf_setup()
        A("s_barrier")
        self.pf([3, 5])
        A("s_mul_i32 s10, s57, 192")
        srd(A, 4, 38, 1376*2)
        A(f"buffer_load_ushort v{B0+8}, v13, s[4:7], s10 offen")
        A(f"buffer_load_ushort v{B0+12}, v13, s[4:7], s10 offen offset:128")
        for q in (1, 2, 3, 5, 6, 7, 9, 10, 11, 13, 14, 15): A(f"v_mov_b32 v{B0+q}, 0")
        A(f"v_mul_u32_u24 v{B0+4}, 0x3f80, v130\nv_sub_u32 v{B0}, 0x3f80, v{B0+4}")
        A("v_mov_b32 v1, v129")
        A("v_bfe_u32 v3, v0, 1, 3\nv_xor_b32 v3, v3, v130\nv_lshlrev_b32 v3, 4, v3\nv_lshl_add_u32 v3, v1, 7, v3")
        A("s_lshl_b32 s10, s60, 12")
        A("v_add_u32 v134, s10, v3")
        for st in range(1, 4): A(f"v_xor_b32 v{134+st}, {st*32}, v134")
        A("v_bfe_u32 v3, v0, 2, 2\nv_lshl_add_u32 v3, v130, 3, v3\nv_mul_u32_u24 v3, 192, v3")
        A("v_bfe_u32 v8, v0, 4, 1\nv_lshl_add_u32 v3, v8, 5, v3")
        A("v_and_b32 v8, 3, v0\nv_lshl_add_u32 v138, v8, 3, v3")
        for q in range(4): A(f"v_add_u32 v{4+q}, {XS[0]}, v{134+q}")
        A(f"v_add_u32 v8, {WSL[0]}, v138")
        xs = [XS[s % XD] for s in range(1, 9)]; ws_ = [WSL[s % 4] for s in range(1, 9)]
        A(f"s_mov_b32 s96, {pack8(xs[:4]):#x}\ns_mov_b32 s97, {pack8(xs[4:]):#x}\ns_mov_b32 s98, {pack8(ws_[:4]):#x}\ns_mov_b32 s99, s98")
        A(f"v_and_b32 v11, 1, v0\nv_lshl_add_u32 v11, v11, 2, v9\nv_add_u32 v11, {F_PX}, v11")
        self.tabptr()
        A(f"s_lshl_b32 s94, s60, 2\ns_add_u32 s94, s94, {L_FLAG+F_FREE}\ns_mov_b32 m0, s94\nv_mov_b32 v14, 0")
        srd(A, 72, 50, WS_END)
        A("v_lshlrev_b32 v13, 4, v0")
        if "noc" in self.opts:
            A(f"v_mov_b32 v12, 100\ns_lshl_b32 s10, s60, 2\nv_add_u32 v11, s10, v9\nds_write_b32 v11, v12 offset:{F_FREE}")
            self.end()
        A("s_lshl_b32 s10, s56, 2\ns_add_u32 s58, s10, s60")
        A("s_mul_i32 s10, s58, 86\ns_mul_i32 s11, s57, 6\ns_add_u32 s10, s10, s11\ns_lshl_b32 s10, s10, 10")
        A(f"s_add_u32 s76, s10, {WS_H:#x}\ns_add_u32 s77, s76, 4096")
        A("s_cmp_ge_u32 s57, 7\ns_cselect_b32 s10, 100, 0\ns_lshl_b32 s11, s57, 2\ns_add_u32 s10, s10, s11\ns_lshl_b32 s11, s58, 8\ns_add_u32 s10, s10, s11")
        A(f"s_add_u32 s100, s10, {WS_FH:#x}")
        self.map_tb()
        A(f"s_lshl_b32 s10, s59, 1\ns_add_u32 s10, s10, s52\ns_lshl_b32 s10, s10, 1\ns_add_u32 s10, s10, s53\ns_lshl_b32 s10, s10, 7\ns_add_u32 s101, s10, {WS_FH:#x}")
        A("s_load_dword s16, s[50:51], s101 glc")
        self.pf([6, 7])
        A("s_setprio %d" % self.opt("cprio", 3))
        self.dstamp()
        A("s_waitcnt vmcnt(0)")
        for fb, (a_, b_) in enumerate(((8, 0), (8, 4), (12, 0))):
            A(f"v_mfma_f32_32x32x16_bf16 {v(ACC+16*fb,16)}, {v(B0+a_,4)}, {v(B0+b_,4)}, 0")
        self.get_tag(9, 2, 61, "L_c_tag")
        def reads(st):
            buf = FR[st]
            out = [f"ds_read_b128 {v(buf,4)}, v{4+st}"]
            for fb in range(3):
                for h in range(2):
                    out.append(f"ds_read_b64_tr_b16 {v(buf+4+4*fb+2*h,2)}, v8 offset:{st*3072+h*768+fb*64}")
            return out
        def mfmas(st):
            buf = FR[st]
            return [f"v_mfma_f32_32x32x16_bf16 {v(ACC+16*fb,16)}, {v(buf+4+4*fb,4)}, {v(buf,4)}, {v(ACC+16*fb,16)}" for fb in range(3)]
        FLAGRD = "ds_read_b32 v10, v11"
        if "g2only" in self.opts:
            A(f"v_mov_b32 v12, 100\nv_lshl_add_u32 v10, v0, 2, v9\ns_mov_b64 exec, 0xff\nds_write_b32 v10, v12 offset:{F_PX}\ns_mov_b64 exec, -1\ns_sleep 64\ns_branch L_c_e1done")
        A("s_mov_b32 s12, 1")
        self.dstamp()
        A("L_c_poll:")
        self.lds_wait_ge(11, 0, "s12", 10, "L_c_p0", sleep=self.opt("zc", 0))
        if "cstamp" in self.opts: self.dstamp()
        A("L_c_rd:")
        for r in reads(0): A(r)
        for r in reads(1): A(r)
        A(".p2align 3")
        A("L_c_loop:")
        ms, rs = mfmas(0), reads(2)
        A("s_waitcnt lgkmcnt(7)")
        A(ms[0]); A(FLAGRD); A(rs[0]); A(rs[1]); A("s_add_u32 s12, s12, 1")
        A(ms[1]); A(rs[2]); A(rs[3]); A(rs[4]); A("s_cmp_eq_u32 s12, 9\ns_cselect_b32 s12, -1, s12")
        A(ms[2]); A(rs[5]); A(rs[6]); A("s_and_b32 s13, s96, 0xff\ns_and_b32 s15, s98, 0xff")
        ms, rs = mfmas(1), reads(3)
        A("s_waitcnt lgkmcnt(7)")
        A(ms[0]); A("s_lshl_b32 s13, s13, 12\ns_lshl_b32 s15, s15, 12"); A(rs[0]); A(rs[1]); A(rs[2])
        A(ms[1]); A("v_cmp_gt_u32 vcc, s12, v10"); A(rs[3]); A(rs[4]); A(rs[5]); A(rs[6])
        A(ms[2])
        A("v_add_u32 v4, s13, v134\nv_add_u32 v5, s13, v135\nv_add_u32 v8, s15, v138")
        A("s_cbranch_vccnz L_c_slow")
        ms, rs = mfmas(2), reads(0)
        A("s_waitcnt lgkmcnt(7)")
        A(ms[0]); A(rs[0]); A(rs[1]); A("v_add_u32 v6, s13, v136\nv_add_u32 v7, s13, v137")
        A(ms[1]); A(rs[2]); A(rs[3]); A(rs[4]); A("v_add_u32 v14, 4, v14")
        A(ms[2]); A(rs[5]); A(rs[6]); A("s_lshr_b64 s[96:97], s[96:97], 8\ns_lshr_b64 s[98:99], s[98:99], 8")
        ms, rs = mfmas(3), reads(1)
        A("s_waitcnt lgkmcnt(7)")
        A(ms[0])
        if "noflag" not in self.opts: self.dmaflag(14)
        A(rs[0]); A(rs[1])
        A(ms[1]); A(rs[2]); A(rs[3]); A(rs[4])
        A(ms[2]); A(rs[5]); A(rs[6])
        A("s_branch L_c_loop")
        A("L_c_slow:")
        A("s_waitcnt lgkmcnt(7)")
        ms = mfmas(2)
        A(ms[0]); A("v_add_u32 v6, s13, v136\nv_add_u32 v7, s13, v137\nv_add_u32 v14, 4, v14")
        A(ms[1])
        A("s_waitcnt lgkmcnt(0)")
        if "noflag" not in self.opts: self.dmaflag(14)
        A(FLAGRD)
        A(ms[2])
        A("s_lshr_b64 s[96:97], s[96:97], 8\ns_lshr_b64 s[98:99], s[98:99], 8")
        ms = mfmas(3)
        A(ms[0]); A(ms[1])
        A("s_waitcnt lgkmcnt(0)\nv_cmp_gt_u32 vcc, s12, v10")
        A(ms[2])
        A("s_cbranch_vccz L_c_rd")
        A("s_cmp_lg_u32 s12, -1\ns_cbranch_scc1 L_c_poll")
        self.dstamp()
        A("s_cmp_eq_u32 s57, 15\ns_cbranch_scc1 L_c_gate")
        A("s_nop 4")
        for fb in range(3):
            if fb == 1: A("s_cmp_eq_u32 s57, 14\ns_cbranch_scc1 L_c_e1done")
            for hs in range(2):
                o = 64 + 8*fb + 4*hs
                for q in range(8):
                    r0 = ACC + 16*fb + 8*hs + q
                    A(f"v_mul_f32 v{r0}, v{r0}, abs(v{r0})")
                for q in range(4):
                    r0 = ACC + 16*fb + 8*hs + 2*q
                    A(f"v_cvt_pk_bf16_f32 v{o+q}, v{r0}, v{r0+1}")
                for q in range(4): A(f"v_pk_max_i16 v{o+q}, v{o+q}, 0")
                idx = 2*fb + hs
                A(f"buffer_store_dwordx4 {v(o,4)}, v13, s[72:75], s{76 if idx < 4 else 77} offen offset:{(idx&3)*1024} sc1")
        A("s_branch L_c_e1done")
        A("L_c_gate:")
        A("s_nop 7")
        A(f"v_add_f32 v64, v{ACC}, v{ACC+5}")
        A(f"v_mul_f32 v64, {LOG2E ^ 0x80000000:#x}, v64")
        A("v_exp_f32 v64, v64")
        A("v_and_b32 v65, 15, v0")
        A("v_add_f32 v64, 1.0, v64")
        A("v_rcp_f32 v64, v64")
        A("s_lshr_b32 s10, s58, 1\ns_and_b32 s11, s58, 1\ns_lshl_b32 s12, s10, 7\ns_lshl_b32 s13, s11, 2\ns_add_u32 s12, s12, s13")
        A(f"s_add_u32 s100, s12, {WS_FG:#x}\ns_lshl_b32 s10, s12, 1\ns_add_u32 s10, s10, {WS_G:#x}")
        A("v_bfe_u32 v66, v0, 4, 1\nv_lshlrev_b32 v66, 2, v66\nv_lshl_add_u32 v66, v65, 4, v66")
        A("s_mov_b32 exec_hi, 0")
        A("buffer_store_dword v64, v66, s[72:75], s10 offen sc1")
        A("s_mov_b64 exec, -1")
        A("L_c_e1done:")
        if self.opt("c2p", 1) != 9: A("s_setprio %d" % self.opt("c2p", 1))
        self.dstamp()
        self.gemm2()

    def gemm2(self):
        A = self.A
        AC2 = 16
        NH = self.opt("nh", 16); HB = 48
        WF = [HB+4*NH+8*i for i in range(4)]
        AX = WF[3] + 8
        assert AX + 12 <= 167
        MI, FRA, FRV, RW, RR, RE, RO, OW, OR_, OG = AX, AX+2, AX+3, AX+4, AX+5, AX+6, AX+7, AX+8, AX+9, AX+10
        A("v_lshrrev_b32 v2, 5, v0\nv_bfe_u32 v3, v0, 2, 2\nv_lshl_add_u32 v2, v2, 2, v3\nv_lshlrev_b32 v2, 7, v2")
        A("v_bfe_u32 v3, v0, 3, 1\nv_xor_b32 v3, s53, v3\nv_lshl_add_u32 v2, v3, 6, v2")
        A("v_bfe_u32 v3, v0, 4, 1\nv_lshl_add_u32 v2, v3, 5, v2")
        A("v_and_b32 v3, 3, v0\nv_lshl_add_u32 v2, v3, 3, v2")
        A("s_mul_i32 s10, s53, 12288")
        A("v_add_u32 v4, s10, v2\nv_xor_b32 v5, 64, v4")
        A(f"v_add_u32 v6, {52*KB}, v4\nv_add_u32 v7, {52*KB}, v5")
        A("s_lshl_b32 s10, s53, 11")
        A(f"v_add_u32 v{MI}, s10, v2\nv_xor_b32 v{MI+1}, 64, v{MI}")
        A("s_lshl_b32 s10, s59, 1\ns_add_u32 s10, s10, s52\ns_mul_i32 s10, s10, 86")
        A("s_add_u32 s11, s10, s53\ns_add_u32 s11, s11, 84\ns_lshl_b32 s11, s11, 10")
        A(f"s_add_u32 s76, s11, {WS_H:#x}")
        A("s_mul_i32 s11, s53, 42\ns_add_u32 s10, s10, s11\ns_lshl_b32 s10, s10, 10")
        A(f"s_add_u32 s77, s10, {WS_H:#x}")
        A(f"v_and_b32 v{FRA}, 3, v0\nv_lshl_add_u32 v{FRA}, v{FRA}, 2, v9")
        A(f"s_lshl_b32 s10, s53, 2\ns_add_u32 s10, s10, {L_FLAG+F_PX}\nv_mov_b32 v11, s10")
        A("v_mov_b32 v8, s94\nv_mov_b32 v12, 8")
        self.rot(10)
        A(f"s_mul_i32 s10, s10, 6144\ns_add_u32 s10, s10, s77\ns_add_u32 s11, s77, {7*6144}")
        for g in range(7):
            A(f"s_mov_b32 s{78+2*g}, s10\ns_add_u32 s{79+2*g}, s10, 4096")
            if g < 6: A("s_add_u32 s10, s10, 6144\ns_cmp_eq_u32 s10, s11\ns_cselect_b32 s10, s77, s10")
        A("s_lshl_b32 s10, s60, 12")
        A(f"s_add_u32 s11, s10, {L_RED}\nv_add_u32 v{RW}, s11, v13")
        A(f"s_xor_b32 s11, s10, 8192\ns_add_u32 s11, s11, {L_RED}\nv_add_u32 v{RR}, s11, v13")
        A(f"s_xor_b32 s11, s53, 1\ns_lshl_b32 s11, s11, 12\ns_lshl_b32 s12, s52, 11\ns_add_u32 s11, s11, s12\ns_add_u32 s11, s11, {L_KF}\nv_add_u32 v{RE}, s11, v13")
        A(f"s_lshl_b32 s11, s52, 3\ns_add_u32 s11, s11, {L_OMG}\nv_and_b32 v2, 15, v0\nv_lshl_add_u32 v2, v2, 4, s11\nv_bfe_u32 v3, v0, 4, 1\nv_lshl_add_u32 v{RO}, v3, 2, v2")
        A("s_mul_i32 s10, s60, 2560")
        A(f"s_add_u32 s10, s10, {L_OT}")
        A(f"v_mul_u32_u24 v2, 80, v1\nv_lshrrev_b32 v3, 5, v0\nv_lshl_add_u32 v2, v3, 3, v2\nv_add_u32 v{OW}, s10, v2")
        A(f"v_lshrrev_b32 v3, 2, v0\nv_mul_u32_u24 v2, 80, v3\nv_and_b32 v10, 3, v0\nv_lshl_add_u32 v2, v10, 4, v2\nv_add_u32 v{OR_}, s10, v2")
        A(f"v_lshlrev_b32 v3, 10, v3\nv_lshl_add_u32 v{OG}, v10, 4, v3")
        srd(A, 4, 46, 2048*1024)
        A("s_lshl_b32 s10, s59, 1\ns_add_u32 s10, s10, s52\ns_lshl_b32 s10, s10, 15")
        A("s_lshl_b32 s11, s55, 7\ns_add_u32 s10, s10, s11\ns_lshl_b32 s11, s53, 6\ns_add_u32 s96, s10, s11")
        A("s_add_u32 s97, s96, 16384")
        A("s_waitcnt vmcnt(0)")
        self.flag_set("s100")
        A("s_cmp_lg_u32 s57, 14\ns_cbranch_scc1 L_g2_f1\ns_sub_u32 s100, s100, 128\ns_mov_b32 s8, s62\ns_atomic_swap s8, s[50:51], s100\nL_g2_f1:")
        self.dstamp()
        if "g2only" not in self.opts: self.flag_wait(8, "s101", "L_g2_w", sleep=self.opt("hsl", 0))
        self.dstamp()
        def hload(q):
            r = HB + 4*(q % NH)
            if q == 42: return f"buffer_load_dwordx4 {v(r,4)}, v13, s[72:75], s76 offen sc1"
            g, s_ = divmod(q, 6)
            return f"buffer_load_dwordx4 {v(r,4)}, v13, s[72:75], s{78+2*g+(s_>>2)} offen offset:{(s_&3)*1024} sc1"
        vm = Cnt(A, "vmcnt", 63); lg = Cnt(A, "lgkmcnt", 15)
        N0 = self.opt("hpre", 10)
        def wreads(q):
            buf = WF[q & 3]; o = []
            for db in range(2):
                for h in range(2):
                    if q == 42: a, off = MI+db, L_MINI + h*1024
                    else:
                        b, s_ = divmod(q, 6); base = BLK[b % 5]
                        hi = base >= 52*KB
                        a = 4 + db + (2 if hi else 0); off = base - (52*KB if hi else 0) + s_*2048 + h*1024
                    o.append(f"ds_read_b64_tr_b16 {v(buf+4*db+2*h,2)}, v{a} offset:{off}")
            return o
        progs = []
        def progcheck(b):
            Lp, Lr = A.lab("L_g2_pp"), A.lab("L_g2_pr")
            A(f"s_cbranch_vccnz {Lp}")
            A(f"{Lr}:")
            progs.append((Lp, Lr, 9+b))
        for q in range(4): vm.op(hload(q), q)
        self.lds_wait_ge(11, 0, 9, 10, "L_g2_p0")
        for q in range(3):
            for r in wreads(q): lg.op(r, ("w", q))
        for q in range(4, N0): vm.op(hload(q), q)
        nxt = N0
        for q in range(43):
            g, s_ = divmod(q, 6)
            buf = WF[q & 3]; hr = HB + 4*(q % NH)
            cin = [v(AC2+16*db,16) if q else "0" for db in range(2)]
            vm.need(q)
            if q == 0 or ("gfine" in self.opts and q % 6 == 0): self.dstamp()
            lg.need(("w", q))
            A(f"v_mfma_f32_32x32x16_bf16 {v(AC2+16,16)}, {v(buf+4,4)}, {v(hr,4)}, {cin[1]}")
            if s_ == 5 and g < 4 and "g2only" not in self.opts:
                A("v_add_u32 v12, 1, v12\ns_mov_b64 exec, 1")
                lg.op("ds_write_b32 v8, v12")
                A("s_mov_b64 exec, -1")
            if s_ == 0 and g < 6: lg.op("ds_read_b32 v10, v11", "flag")
            if q == 38: lg.op(f"ds_read_b32 v{FRV}, v{FRA} offset:{F_FREE}", "free")
            if s_ == 2 and g < 6:
                lg.need("flag"); A(f"v_cmp_gt_u32 vcc, {10+g}, v10")
            if s_ == 3 and g < 6: progcheck(g+1)
            rs = wreads(q+3) if q+3 <= 42 else []
            for r in rs[:2]: lg.op(r, ("w", q+3))
            if nxt <= 42 and nxt - q < NH: vm.op(hload(nxt), nxt); nxt += 1
            A(f"v_mfma_f32_32x32x16_bf16 {v(AC2,16)}, {v(buf,4)}, {v(hr,4)}, {cin[0]}")
            for r in rs[2:]: lg.op(r, ("w", q+3))
            if nxt <= 42 and nxt - q < NH and q < NH - N0: vm.op(hload(nxt), nxt); nxt += 1
            if q == 41:
                lg.need("free"); A(f"v_cmp_gt_u32 vcc, 12, v{FRV}")
        self.dstamp()
        A("s_cbranch_vccz L_g2_red")
        self.lds_wait_ge(FRA, F_FREE, 12, FRV, "L_g2_fw")
        A("L_g2_red:")
        A("s_nop 9")
        for q in range(4): A(f"ds_write_b128 v{RW}, {v(AC2+16+4*q,4)} offset:{q*1024}")
        A("s_waitcnt lgkmcnt(0)")
        A("s_barrier")
        self.dstamp()
        A(f"ds_read_b32 v8, v{RO}")
        for q in range(4):
            A(f"ds_read_b128 {v(48+4*q,4)}, v{RR} offset:{q*1024}")
            A(f"ds_read_b128 {v(64+4*q,4)}, v{RE} offset:{(q>>1)*8320+(q&1)*1024}")
        for q in range(4):
            A(f"s_waitcnt lgkmcnt({6-q})")
            for r in range(0, 4, 2):
                A(f"v_pk_add_f32 {v(AC2+4*q+r,2)}, {v(AC2+4*q+r,2)}, {v(48+4*q+r,2)}")
            for r in range(0, 4, 2):
                A(f"v_pk_fma_f32 {v(64+4*q+r,2)}, {v(AC2+4*q+r,2)}, v[8:9], {v(64+4*q+r,2)} op_sel_hi:[1,0,1]")
            A(f"v_cvt_pk_bf16_f32 v{80+2*q}, v{64+4*q}, v{64+4*q+1}")
            A(f"v_cvt_pk_bf16_f32 v{81+2*q}, v{64+4*q+2}, v{64+4*q+3}")
            A(f"ds_write_b64 v{OW}, {v(80+2*q,2)} offset:{16*q}")
        A(f"ds_read_b128 v[88:91], v{OR_}\nds_read_b128 v[92:95], v{OR_} offset:1280")
        ofl = "" if "oplain" in self.opts else ("nt" if "ont" in self.opts else ("sc0 sc1" if "osys" in self.opts else "sc1"))
        A("s_waitcnt lgkmcnt(1)")
        A(f"buffer_store_dwordx4 v[88:91], v{OG}, s[4:7], s96 offen {ofl}")
        A("s_waitcnt lgkmcnt(0)")
        A(f"buffer_store_dwordx4 v[92:95], v{OG}, s[4:7], s97 offen {ofl}")
        self.dstamp()
        if self.ts:
            A("s_waitcnt vmcnt(0)")
            self.dstamp()
        if "rt" in self.opts:
            A("s_waitcnt vmcnt(0)\ns_memrealtime s[64:65]\ns_lshl_b32 s8, s2, 2\ns_add_u32 s8, s8, s60\ns_lshl_b32 s8, s8, 3")
            A(f"s_add_u32 s8, s8, {WS_TS:#x}\nv_mov_b32 v4, s8\ns_waitcnt lgkmcnt(0)")
            A("v_mov_b32 v2, s68\nv_mov_b32 v3, s64\ns_mov_b64 exec, 1\nglobal_store_dwordx2 v4, v[2:3], s[50:51]")
        self.end()
        for Lp, Lr, n in progs:
            A(f"{Lp}:")
            self.lds_wait_ge(11, 0, n, 10, "L_g2_pw")
            A(f"s_branch {Lr}")

    def sbar(self, k):
        A = self.A
        A("s_waitcnt lgkmcnt(0)")
        A(f"s_mov_b64 exec, 1\nds_add_u32 v9, v8 offset:{F_SB}\ns_mov_b64 exec, -1")
        self.lds_wait_ge(9, F_SB, 4*k, 10, "L_sb")

    def ssm(self):
        A = self.A
        A(".p2align 8")
        A("L_ssm:")
        self.role = "s"
        self.entry()
        A("s_sub_u32 s60, s3, 8")
        A("s_and_b32 s52, s60, 1\ns_lshr_b32 s53, s60, 1")
        A("s_lshl_b32 s13, s2, 2")
        self.pf_setup()
        A("s_load_dword s14, s[30:31], s13\ns_load_dword s15, s[32:33], s13")
        A("s_barrier")
        self.pf([4])
        if "stop0" in self.opts or "g2only" in self.opts: A("s_endpgm")
        A("s_setprio %d" % self.opt("sprio", 1))
        self.map_tb()
        A(f"v_mov_b32 v9, {L_FLAG}\nv_mov_b32 v8, 1")
        srd(A, 72, 50, WS_END)
        A("v_and_b32 v123, 15, v0\nv_lshrrev_b32 v124, 4, v0\nv_lshlrev_b32 v13, 4, v0")
        A("s_lshl_b32 s10, s55, 7\ns_lshl_b32 s9, s60, 5\ns_add_u32 s10, s10, s9\nv_lshl_add_u32 v3, v124, 3, s10")
        A("global_load_dwordx2 v[98:99], v3, s[42:43]")
        A(f"s_mul_i32 s12, s52, 4608\ns_add_u32 s12, s12, {L_UL}\nv_lshl_add_u32 v12, v0, 3, s12\nv_mov_b64 v[2:3], 0")
        A("s_mov_b32 exec_hi, 0x0fffffff\nds_write_b64 v12, v[2:3]\ns_mov_b64 exec, -1")
        SEL = 158
        A("v_and_b32 v1, 31, v0\nv_lshrrev_b32 v2, 5, v0\nv_lshlrev_b32 v2, 4, v2\nv_sub_u32 v1, v1, v2")
        A("v_and_b32 v2, 1, v1\nv_lshlrev_b32 v2, 4, v2\nv_mov_b32 v3, 0x3f80\nv_lshlrev_b32 v2, v2, v3\nv_ashrrev_i32 v1, 1, v1")
        for j in range(8):
            A(f"v_cmp_eq_u32 vcc, {j}, v1\ns_nop 1\nv_cndmask_b32 v{SEL+j}, 0, v2, vcc")
        A(f"s_lshl_b32 s12, s52, 8\ns_lshl_b32 s13, s53, 7\ns_add_u32 s12, s12, s13\ns_add_u32 s12, s12, {L_PAR}")
        A("v_lshl_add_u32 v6, v0, 1, s12")
        A(f"s_mul_i32 s11, s52, 5632\ns_mul_i32 s12, s53, 2816\ns_add_u32 s57, s11, s12\ns_add_u32 s57, s57, {L_KP}\ns_add_u32 s56, s11, {L_KP}")
        A("v_lshlrev_b32 v3, 2, v124\nv_lshl_add_u32 v120, v123, 4, v3")
        A("v_lshl_add_u32 v3, v123, 3, v3\nv_lshlrev_b32 v2, 6, v124\nv_lshl_add_u32 v4, v123, 2, v2")
        A("v_cmp_gt_u32 vcc, 2, v124")
        A("v_lshl_add_u32 v122, v123, 1, v2\nv_add_u32 v122, 512, v122")
        A("v_cndmask_b32 v121, v4, v3, vcc\nv_add_u32 v121, 256, v121\nv_mov_b32 v125, s57")
        for r_ in (120, 121, 122): A(f"v_lshrrev_b32 v2, 5, v{r_}\nv_add_u32 v{r_}, v{r_}, v2\nv_lshl_add_u32 v{r_}, v{r_}, 2, s57")
        A(f"s_mul_i32 s11, s52, 8320\ns_lshl_b32 s12, s53, 11\ns_add_u32 s12, s12, s11\ns_add_u32 s12, s12, {L_KF}")
        A("v_lshl_add_u32 v12, v0, 5, s12")
        A(f"s_mul_i32 s12, s53, 4160\ns_add_u32 s12, s12, s11\ns_add_u32 s12, s12, {L_KF+4096}")
        A("v_lshl_add_u32 v11, v0, 2, s12")
        A(f"s_mul_i32 s11, s52, 4608\ns_lshl_b32 s12, s53, 8\ns_sub_u32 s11, s11, s12\ns_add_u32 s11, s11, {L_UL+448-192}")
        A("v_lshlrev_b32 v3, 4, v124\nv_lshl_add_u32 v3, v123, 5, v3\nv_add_u32 v14, s11, v3")
        A("v_sub_u32 v3, 2031, v123\nv_lshrrev_b32 v3, 1, v3\nv_lshl_add_u32 v3, v124, 2, v3\nv_lshlrev_b32 v3, 2, v3")
        A("v_and_b32 v15, 1, v123\nv_xor_b32 v15, 1, v15\nv_mul_u32_u24 v15, 4160, v15\nv_add_u32 v3, v3, v15")
        A(f"s_mul_i32 s11, s52, 8320\ns_sub_u32 s11, s11, s12\ns_add_u32 s11, s11, {L_KF-192-512}")
        A("v_add_u32 v15, s11, v3")
        A(f"v_and_b32 v3, 7, v0\nv_lshl_add_u32 v62, v3, 2, v9")
        A("v_lshlrev_b32 v3, 2, v3\nv_mov_b32 v63, %s\nv_lshrrev_b32 v63, v3, v63\nv_and_b32 v63, 15, v63" % (hex(0x11*self.opt("lpa", 0)) if EARLY else "0x66660088"))
        A(f"v_and_b32 v3, 1, v0\nv_mul_u32_u24 v96, {F_UD+4}, v3\nv_add_u32 v96, v96, v9\nv_lshlrev_b32 v3, 1, v3\nv_sub_u32 v97, 4, v3")
        GA = 100
        A("s_cmp_eq_u32 s53, 0\ns_cbranch_scc1 L_s_nga")
        A("v_lshlrev_b32 v1, 4, v0\nv_sub_u32 v1, 1023, v1\nv_cvt_f32_i32 v4, v1")
        for i in range(17):
            A(f"v_subrev_u32 v2, {i}, v1")
            A(f"v_subrev_f32 v3, {f2h(float(i)):#x}, v4")
            A("v_cvt_pk_bf16_f32 v3, v3, 0")
            A("v_min_i32 v2, 128, v2")
            A("v_subrev_u32 v3, 0x4280, v3")
            A("v_max_i32 v3, v3, v2")
            if i == 16: A("v_min_u32 v3, 660, v3")
            A("v_lshrrev_b32 v2, 5, v3\nv_add_u32 v3, v3, v2")
            A(f"v_lshl_add_u32 v{GA+i}, v3, 2, s56")
        A("s_branch L_s_gad")
        A("L_s_nga:")
        A(f"v_lshlrev_b32 v{GA}, 1, v0\nv_sub_u32 v{GA}, 638, v{GA}\nv_add_u32 v{GA+2}, 2, v{GA}")
        for r_ in (GA, GA+2): A(f"v_lshrrev_b32 v3, 5, v{r_}\nv_add_u32 v{r_}, v{r_}, v3\nv_lshl_add_u32 v{r_}, v{r_}, 2, s56")
        A(f"v_add_u32 v{GA+1}, 4, v{GA}")
        A("L_s_gad:")
        self.dstamp()
        A("s_mul_i32 s10, s2, 5504\ns_mul_i32 s11, s60, 1408\ns_min_u32 s11, s11, 4096\ns_add_u32 s10, s10, s11\ns_add_u32 s34, s40, s10\ns_addc_u32 s35, s41, 0")
        A("s_lshl_b32 s10, s55, 3\ns_lshr_b32 s11, s59, 1\ns_xor_b32 s11, s11, s59\ns_and_b32 s11, s11, 4\ns_add_u32 s10, s10, s11\ns_add_u32 s10, s10, s60\ns_lshl_b32 s10, s10, 7")
        A(f"s_add_u32 s100, s10, {WS_FA:#x}\ns_lshl_b32 s10, s59, 7\ns_add_u32 s101, s10, {WS_FG:#x}")
        self.lds_wait_ge(9, F_PAR, 1, 10, "L_s_par", sleep=self.opt("zs", 2))
        for i in range(6): A(f"ds_read_u16 v{16+i}, v6 offset:{512*i}")
        A("s_lshl_b32 s11, s52, 4\ns_lshr_b32 s14, s14, s11\ns_lshl_b32 s14, s14, 16\ns_lshr_b32 s15, s15, s11\ns_lshl_b32 s15, s15, 16")
        A(f"v_mov_b32 v1, {LOG2E:#x}\nv_mul_f32 v2, s14, v1\nv_exp_f32 v2, v2")
        A("s_waitcnt lgkmcnt(0)")
        self.dstamp()
        for i in range(6): A(f"v_lshlrev_b32 v{16+i}, 16, v{16+i}")
        A("v_cvt_pk_bf16_f32 v2, v2, v2\nv_lshlrev_b32 v2, 16, v2")
        A("v_mul_f32 v16, v2, v16\nv_mul_f32 v17, v2, v17\nv_mul_f32 v18, v2, v18\nv_mul_f32 v19, v2, v19")
        A(f"v_mul_f32 v16, v1, v16\nv_mul_f32 v17, {INV2PI:#x}, v17")
        A("v_mul_f32 v20, 0x1f800000, v20\nv_mul_f32 v21, 0x1f800000, v21")
        E1, E16, E256, PA, PB, ONE, BS = 22, 24, 26, 28, 30, 4, [46, 48]
        PK, BF, TRE, TIM, KA = self.PK, 80, 126, 142, 50
        def ep(k): return E1 if k == 1 else (32 + k - 2 if k % 2 == 0 else PA)
        def tr(dre, hh):
            for d, p in ((dre, PK), (TIM, PK+8)):
                A(f"v_mfma_f32_32x32x16_bf16 {v(d,16)}, {v(p+4*hh,4)}, {v(SEL+4*hh,4)}, {v(d,16) if hh else '0'}")
        def repack(dre):
            for q in range(4):
                A(f"v_cvt_pk_bf16_f32 v{dre+4*q}, v{dre+4*q}, v{dre+4*q+1}\nv_cvt_pk_bf16_f32 v{dre+4*q+1}, v{dre+4*q+2}, v{dre+4*q+3}")
            for q in range(4):
                A(f"v_cvt_pk_bf16_f32 v{dre+4*q+2}, v{TIM+4*q}, v{TIM+4*q+1}\nv_cvt_pk_bf16_f32 v{dre+4*q+3}, v{TIM+4*q+2}, v{TIM+4*q+3}")
        def kmf(k):
            for q in range(4):
                A(f"v_mfma_f32_16x16x32_bf16 {v(KA+4*k,4)}, {v(TRE+4*q,4)}, {v(BF+4*q,4)}, {v(KA+4*k,4) if q else '0'}")
        self.direct(E16, 16)
        self.cmul(PA, 20, 18)
        cur, nxt = PA, PB
        for b in range(16):
            self.put(b, cur, neg=True)
            if b < 15:
                self.cmul(nxt, cur, E16); cur, nxt = nxt, cur
            if b == 7: tr(BF, 0)
        self.direct(E1, 1)
        tr(BF, 1)
        if "nowarm" not in self.opts: A("s_load_dword s17, s[50:51], s101 glc")
        A(f"v_mov_b32 v{ONE}, 1.0\nv_mov_b32 v{ONE+1}, 0")
        self.put(0, ONE); self.put(1, E1)
        for k in range(2, 16):
            self.cmul(ep(k), ep(k-1), E1); self.put(k, ep(k))
            if k == 7: repack(BF)
            if k == 8: tr(TRE, 0)
        self.direct(E256, 256)
        tr(TRE, 1)
        self.put(0, E256)
        for r in range(1, 8):
            self.cmul(PA if r & 1 else PB, E256, ep(2*r)); self.put(r, PA if r & 1 else PB)
        repack(TRE)
        self.cmul(BS[0], E256, E256)
        kmf(0)
        tr(TRE, 0)
        for a_ in range(2):
            self.put(8+4*a_, BS[a_])
            for r in range(1, 4):
                self.cmul(PA if r & 1 else PB, BS[a_], ep(4*r)); self.put(8+4*a_+r, PA if r & 1 else PB)
            self.cmul(BS[1-a_], BS[a_], E256)
        tr(TRE, 1)
        cur = 0
        for a_ in range(4):
            self.put(2*a_, BS[cur])
            self.cmul(PA, BS[cur], ep(8)); self.put(2*a_+1, PA)
            self.cmul(BS[1-cur], BS[cur], E256); cur = 1-cur
        repack(TRE)
        self.put(8, BS[cur]); self.put(9, BS[cur])
        kmf(1)
        tr(TRE, 0); tr(TRE, 1)
        self.get_tag(9, 2, 61, "L_s_tag")
        A("v_mov_b32 v1, v123\nv_mov_b32 v2, v124\nv_mov_b32 v24, v15")
        for sp in range(1, 4): A(f"v_subrev_u32 v{24+sp}, {1024*sp}, v15")
        repack(TRE)
        A("s_cmp_eq_u32 s53, 0\ns_cselect_b32 s15, s15, 0")
        kmf(2)
        A("v_mov_b32 v6, 0\nv_mov_b32 v7, 0")
        A("v_writelane_b32 v6, s15, 0")
        A(f"v_fmac_f32 v{KA}, 0x1f800000, v6")
        A("s_waitcnt vmcnt(0)\nv_mov_b32 v22, v98\nv_mov_b32 v23, v99")
        self.dstamp()
        KX = 32
        GV = 126
        A("s_setprio %d" % self.opt("slp", 2))
        self.lds_wait_ge(62, F_PX, "v63", 10, "L_s_lp", sleep=self.opt("zs", 2))
        self.dstamp()
        for k_ in range(2):
            A(f"ds_write2_b32 v{120+k_}, v{KA+4*k_}, v{KA+4*k_+1} offset0:0 offset1:1\nds_write2_b32 v{120+k_}, v{KA+4*k_+2}, v{KA+4*k_+3} offset0:2 offset1:3")
        A(f"s_mov_b32 exec_hi, 1\nds_write2_b32 v122, v{KA+8}, v{KA+9} offset0:0 offset1:1")
        A(f"s_mov_b32 exec_hi, 0\nds_write2_b32 v122, v{KA+10}, v{KA+11} offset0:33 offset1:34")
        A(f"s_mov_b64 exec, 1\nds_write_b32 v125, v7 offset:{680*4}\nds_add_u32 v9, v8 offset:{F_KS}")
        A("s_mov_b64 exec, 0xff\nds_write_b32 v11, v7\ns_mov_b64 exec, -1")
        if "fine" in self.opts: self.dstamp()
        self.lds_wait_ge(9, F_KS, 4, 10, "L_s_ks")
        if "fine" in self.opts: self.dstamp()
        A("s_cmp_eq_u32 s53, 0\ns_cbranch_scc1 L_s_g0")
        for i in range(17):
            A(f"ds_read2st64_b32 {v(GV+2*i,2)}, v{GA+i} offset0:0 offset1:11")
            if i == 13: A("s_waitcnt lgkmcnt(8)")
        A("s_waitcnt lgkmcnt(8)")
        for i in range(17):
            if i == 9: A("s_waitcnt lgkmcnt(0)")
            A(f"v_add_f32 v{GV+2*i}, v{GV+2*i}, v{GV+2*i+1}")
        for i in range(8): A(f"v_cvt_pk_bf16_f32 v{KX+i}, v{GV+4*i}, v{GV+4*i+2}")
        for i in range(8): A(f"v_cvt_pk_bf16_f32 v{KX+8+i}, v{GV+4*i+2}, v{GV+4*i+4}")
        A("s_branch L_s_gj")
        A("L_s_g0:")
        for k_, r_ in enumerate((GA, GA+1, GA+2)): A(f"ds_read2st64_b32 {v(GV+2*k_,2)}, v{r_} offset0:0 offset1:11")
        A("s_waitcnt lgkmcnt(0)")
        A(f"v_add_f32 v{GV}, v{GV}, v{GV+1}\nv_add_f32 v{GV+1}, v{GV+2}, v{GV+3}\nv_add_f32 v{GV+2}, v{GV+4}, v{GV+5}")
        seq = [GV+2]*4 + [GV+1]*7 + [GV]*6
        for i in range(8): A(f"v_cvt_pk_bf16_f32 v{KX+i}, v{seq[2*i]}, v{seq[2*i+1]}")
        for i in range(8): A(f"v_cvt_pk_bf16_f32 v{KX+8+i}, v{seq[2*i+1]}, v{seq[2*i+2]}")
        A("L_s_gj:")
        if "fine" in self.opts: self.dstamp()
        A(f"ds_write_b128 v12, {v(KX,4)}\nds_write_b128 v12, {v(KX+4,4)} offset:16")
        A(f"ds_write_b128 v12, {v(KX+8,4)} offset:4160\nds_write_b128 v12, {v(KX+12,4)} offset:4176")
        if "fine" in self.opts: self.dstamp()
        A(f"s_mov_b64 exec, 1\nds_add_u32 v9, v8 offset:{F_SB}\ns_mov_b64 exec, -1")
        self.lds_wait_ge(96, F_SB, "v97", 10, "L_sb", sleep=(1 if EARLY else 0))
        if self.opt("cvg", 0): self.lds_wait_ge(9, F_PW, self.opt("cvg", 0), 10, "L_s_cg", sleep=1)
        A("s_setprio %d" % self.opt("scv", 2))
        self.dstamp()
        CA = 28; KR = 60; UB = [92, 124]
        lg = Cnt(A, "lgkmcnt", 15)
        def uread(rr, T):
            lg.op(f"ds_read_b128 {v(UB[rr&1]+4*T,4)}, v14 offset:{64*(3-rr)+512*T}", ("u", rr, T))
        def kread(rr, sg):
            o = 16*(3-rr) + (128 if (sg & 1) == 0 else 0)
            lg.op(f"ds_read2_b32 {v(KR+4*sg,2)}, v{24+(sg>>1)} offset0:{o} offset1:{o+1}", None)
            lg.op(f"ds_read2_b32 {v(KR+4*sg+2,2)}, v{24+(sg>>1)} offset0:{o+2} offset1:{o+3}", ("k", rr, sg))
        kread(0, 0)
        for T in range(8): uread(0, T)
        kread(0, 1); kread(0, 2)
        A(f"s_mul_i32 s11, s52, 8320\ns_add_u32 s11, s11, {L_KF}\ns_lshl_b32 s12, s53, 12\ns_add_u32 s13, s11, s12\nv_add_u32 v4, s13, v13")
        A(f"s_xor_b32 s12, s12, 4096\ns_add_u32 s58, s11, s12\nv_add_u32 v5, s58, v13")
        A(f"s_lshl_b32 s11, s52, 2\nv_add_u32 v7, s11, v9")
        A(f"s_lshl_b32 s10, s2, 13\ns_lshl_b32 s11, s52, 12\ns_add_u32 s10, s10, s11\ns_lshl_b32 s11, s53, 9\ns_add_u32 s10, s10, s11\ns_add_u32 s10, s10, {WS_A:#x}")
        A("s_lshl_b32 s11, s53, 10\ns_sub_u32 s11, 1536, s11")
        A("v_and_b32 v3, 7, v0\nv_lshlrev_b32 v3, 4, v3\nv_lshl_add_u32 v3, v2, 7, v3\nv_bfe_u32 v6, v0, 3, 1\nv_mad_u32_u24 v6, v6, s11, v3")
        A(f"s_and_b32 s11, s62, 1\ns_sub_u32 s11, 0, s11\ns_xor_b32 s57, s11, {TM:#x}\ns_mov_b32 s56, 0xbfffbfff")
        A("v_and_b32 v3, 7, v0\nv_lshrrev_b32 v3, v3, s57\nv_and_b32 v3, 1, v3\nv_mul_u32_u24 v3, 0x4000, v3\nv_lshl_or_b32 v15, v3, 16, v3")
        def mf(rr, sg, T):
            acc = v(CA+4*(sg+T), 4)
            A(f"v_mfma_f32_16x16x32_bf16 {acc}, {v(UB[rr&1]+4*T,4)}, {v(KR+4*sg,4)}, {'0' if (rr == 0 and sg == 0) else acc}")
        for rr in range(3):
            pend = []
            for sg in range(8):
                if rr == 0 and sg + 3 < 8: pend.append(("k", 0, sg+3))
                if sg >= 1: pend.append(("k", rr+1, sg-1))
                if rr > 0 and sg == 0: pend.append(("k", rr, 7))
                if sg == 1: pend += [("u", rr+1, T) for T in range(4)]
                if sg == 2: pend += [("u", rr+1, T) for T in range(4, 8)]
                lg.need(("k", rr, sg))
                for T in range(8 - sg):
                    lg.need(("u", rr, T))
                    mf(rr, sg, T)
                    if pend:
                        if len(lg.q) > 13:
                            A("s_waitcnt lgkmcnt(8)"); lg.q = lg.q[-8:]
                        x = pend.pop(0)
                        (kread if x[0] == "k" else uread)(x[1], x[2])
            assert not pend
        lg.need(("k", 3, 2))
        kread(3, 7)
        XADD = f"s_mov_b64 exec, 1\nds_add_u32 v7, v8 offset:{F_XC}\ns_mov_b64 exec, -1"
        RX = UB[0]
        def last(keep, send):
            ls = [(sg, T-sg) for sg in range(8) for T in send if T >= sg]
            lk = [(sg, T-sg) for sg in range(8) for T in keep if T >= sg]
            Lp, Lr = A.lab("L_s_xp"), A.lab("L_s_xr")
            for i, (sg, Tp) in enumerate(ls):
                assert i >= 7 or sg <= 2
                mf(3, sg, Tp)
                if i == 6: A("s_waitcnt lgkmcnt(0)"); A(XADD)
                if i == 14: A(f"ds_read_b32 v10, v7 offset:{F_XC}")
            for i, (sg, Tp) in enumerate(lk):
                mf(3, sg, Tp)
                if i == 3: A(f"s_waitcnt lgkmcnt(0)\nv_cmp_gt_u32 vcc, 2, v10\ns_cbranch_vccnz {Lp}\n{Lr}:")
                if 4 <= i < 8: A(f"ds_write_b128 v4, {v(CA+4*send[i-4],4)} offset:{(i-4)*1024}")
                if i == 8: A(XADD)
            self.dstamp()
            self.lds_wait_ge(7, F_XC, 4, 10, "L_s_xw")
            for q in range(4): A(f"ds_read_b128 {v(RX+4*q,4)}, v5 offset:{q*1024}")
            for q in range(4):
                A(f"s_waitcnt lgkmcnt({3-q})")
                for r in range(4): A(f"v_add_f32 v{60+4*q+r}, v{RX+4*q+r}, v{CA+4*keep[q]+r}")
            A("s_branch L_s_xj")
            A(f"{Lp}:")
            self.lds_wait_ge(7, F_XC, 2, 10, "L_s_xq")
            A(f"s_branch {Lr}")
        A("s_cmp_eq_u32 s53, 0\ns_cbranch_scc1 L_s_x0")
        last([1, 2, 5, 6], [0, 3, 4, 7])
        A("L_s_x0:")
        self.npt -= 1
        last([0, 3, 4, 7], [1, 2, 5, 6])
        A("L_s_xj:")
        for i in range(8): A(f"v_cvt_pk_bf16_f32 v{76+i}, v{60+2*i}, v{61+2*i}")
        for p in range(2):
            for i in range(2): A(f"v_mov_b32 v{84+2*p+i}, v{76+4*p+i}")
        for p in range(2):
            for i in range(2): A(f"v_mov_b32_dpp v{76+4*p+i}, v{78+4*p+i} row_ror:8 row_mask:0xf bank_mask:0xc")
            for i in range(2): A(f"v_mov_b32_dpp v{78+4*p+i}, v{84+2*p+i} row_ror:8 row_mask:0xf bank_mask:0x3")
            for i in range(4): A(f"v_and_or_b32 v{76+4*p+i}, v{76+4*p+i}, s56, v15")
            if "noast" not in self.opts: A(f"buffer_store_dwordx4 {v(76+4*p,4)}, v6, s[72:75], s10 offen offset:{2048*p} sc1")
        self.dstamp()
        A("s_lshl_b32 s10, s55, 18\ns_lshl_b32 s11, s60, 16\ns_add_u32 s10, s10, s11\ns_lshl_b32 s11, s59, 7\ns_add_u32 s10, s10, s11")
        A(f"s_add_u32 s10, s10, {WS_A:#x}")
        for i in range(1, 4): A(f"s_add_u32 s{10+i}, s10, {4096*i}")
        A("v_lshlrev_b32 v3, 14, v2\nv_lshl_add_u32 v4, v1, 3, v3")
        A("v_and_b32 v3, 1, v1\nv_lshrrev_b32 v1, 1, v1")
        A("v_lshrrev_b32 v6, v1, s57\nv_and_b32 v6, 1, v6\nv_mul_u32_u24 v6, 0x4000, v6\nv_lshl_or_b32 v15, v6, 16, v6")
        A("v_lshl_add_u32 v1, v3, 3, v1")
        A(f"s_lshl_b32 s14, s59, 8\ns_add_u32 s14, s14, {WS_G:#x}")
        A("v_lshlrev_b32 v5, 4, v1")
        A("v_lshrrev_b32 v3, 1, v2\nv_lshlrev_b32 v3, 10, v3\nv_add_u32 v3, v3, v5\nv_and_b32 v6, 1, v2\nv_lshl_add_u32 v3, v6, 9, v3\nv_add_u32 v11, s58, v3")
        A(f"v_add_u32 v12, {L_OMG}, v5")
        A(f"v_and_b32 v3, 3, v0\nv_lshl_add_u32 v3, v3, 2, v9")
        self.flag_wait(2, "s101", "L_s_gw", sleep=4)
        A("buffer_load_dwordx4 v[48:51], v5, s[72:75], s14 offen sc1")
        A("v_lshlrev_b32 v60, 16, v22\nv_and_b32 v61, 0xffff0000, v22\nv_lshlrev_b32 v62, 16, v23\nv_and_b32 v63, 0xffff0000, v23")
        A("s_waitcnt vmcnt(0)")
        self.dstamp()
        for r in range(4): A(f"v_sub_f32 v{80+r}, 1.0, v{48+r}\nv_mul_f32 v{48+r}, 0x5f800000, v{48+r}")
        for r in range(4):
            for i in range(4): A(f"v_mul_f32 v{64+4*r+i}, v{80+r}, v{60+i}")
        self.lds_wait_ge(3, F_FREE, self.opt("aat", 11), 10, "L_s_aw", sleep=1)
        self.dstamp()
        A("L_s_aget:")
        for i in range(4): A(f"buffer_load_dwordx2 {v(32+2*i,2)}, v4, s[72:75], s{10+i} offen sc1")
        A("s_waitcnt vmcnt(0)")
        for i in range(8): A(f"v_xor_b32 v{32+i}, v{32+i}, v15")
        A("v_or3_b32 v40, v32, v33, v34\nv_or3_b32 v41, v35, v36, v37\nv_or3_b32 v40, v40, v38, v39\nv_or_b32 v40, v40, v41\nv_and_b32 v40, 0x40004000, v40\nv_cmp_ne_u32 vcc, 0, v40")
        A("s_cbranch_vccz L_s_aok")
        if "noast" in self.opts: A("s_branch L_s_aok")
        self.guard()
        A("s_sleep %d\ns_branch L_s_aget" % self.opt("asl", 5))
        A("L_s_aok:")
        self.dstamp()
        for r in range(4):
            for i in range(4):
                src = 32 + 2*i + (r >> 1)
                A(f"v_lshlrev_b32 v{44+i}, 16, v{src}" if (r & 1) == 0 else f"v_and_b32 v{44+i}, 0xffff0000, v{src}")
            for i in range(4): A(f"v_fmac_f32 v{64+4*r+i}, v{48+r}, v{44+i}")
            A(f"ds_write_b128 v11, {v(64+4*r,4)} offset:{(r>>1)*2048+(r&1)*256}")
        A("s_mov_b64 exec, 0xffff\nds_write_b128 v12, v[80:83]")
        A("s_waitcnt lgkmcnt(0)")
        self.dstamp()
        self.end()

    def build(self):
        self.prologue(); self.helper(); self.loader_x(); self.loader_w(); self.helper2(); self.loader_w2(); self.ssm(); self.consumer()
        self.A("L_end:\ns_endpgm\n.p2align 6\nL_tab:")
        self.A(".long " + ", ".join(str(i) for i in range(16)))
        self.A(f"L_codeend:\n.fill (33024-(L_codeend-{NAME}))/4, 4, 0xbf800000")
        if "pre" in self.opts or "post" in self.opts or "pft" in self.opts:
            P = Asm()
            if "pft" in self.opts:
                P("s_load_dwordx16 s[16:31], s[0:1], 0\ns_load_dwordx16 s[32:47], s[0:1], 64\ns_load_dwordx4 s[48:51], s[0:1], 128")
                P("s_cmpk_ge_u32 s2, 256\ns_cbranch_scc1 L_pend")
                P("s_getpc_b64 s[8:9]\nL_ppc:")
                P(f"s_add_u32 s8, s8, {NAME}-L_ppc\ns_addc_u32 s9, s9, -1")
                P("s_and_b32 s10, s2, 24\ns_lshl_b32 s10, s10, 10\nv_lshl_add_u32 v1, v0, 7, s10\nglobal_load_dword v8, v1, s[8:9]")
                P("s_lshl_b32 s10, s2, 13\nv_lshl_add_u32 v1, v0, 7, s10\nv_lshlrev_b32 v3, 7, v0\nv_min_u32 v2, 5376, v3\ns_mul_i32 s10, s2, 5504\nv_add_u32 v2, s10, v2\ns_lshl_b32 s10, s2, 9\nv_add_u32 v3, s10, v3\nv_lshlrev_b32 v4, 21, v0")
                P("s_waitcnt lgkmcnt(0)")
                P("global_load_dword v9, v1, s[16:17]\nglobal_load_dword v10, v2, s[36:37]\nglobal_load_dword v11, v2, s[40:41]\ns_mov_b64 exec, 15")
                for i in range(6): P(f"global_load_dword v{12+i}, v3, s[{18+2*i}:{19+2*i}]")
                P("global_load_dword v18, v4, s[50:51]")
                P("L_pend:")
            P("s_endpgm")
            ks = [(NAME, self.A.text(), 168, 102, 168, ""), ("aux_kernel", P.text(), 24, 64, 24, "")]
            main = (NAME, 256, 64*NWAVES, LDS_TOTAL); aux = ("aux_kernel", 256 if "pft" in self.opts else 1, 64, 0)
            return multi(ks, [main, aux] if "post" in self.opts else [aux, main])
        return single(self.A.text(), 256, 64*NWAVES, LDS_TOTAL, 168, 102, 168)

if __name__ == "__main__":
    args = sys.argv[2:]
    open(sys.argv[1], "w").write(G(ts="ts" in args, opts=args).build())
```

```python
import sys, struct
from asmgen import *

WS_EPOCH = 0
WS_G     = 0x1000
WS_FH    = 0x8000
WS_FG    = 0xC000
WS_FU    = 0xD000
WS_FA    = 0xF000
WS_H     = 0x80000
WS_UT    = 0x600000
WS_A     = 0x800000
WS_END   = 0xA00000
WS_TS    = 0x2000000
EPC = 0x9E3779B9
TM  = 0x69969669

KB = 1024
XS = [44*KB, 72*KB, 100*KB, 0, 16*KB]
WSL = [32*KB, 60*KB, 88*KB, 116*KB]
L_MINI = 0
BLK = [4*KB, 28*KB, 52*KB, 76*KB, 100*KB]
BLKNEED = [5, 6, 7, 7, 8]
L_TA = 0
L_TB = 116*KB
L_KF = 128*KB
KCH = 9280
PARO = [64, 576, 1088, 1600, 2304, 2816]
L_OMG = L_KF + 2*KCH
L_UL = 148*KB + 32
L_KP = 52*KB
L_PAR = L_KF
L_ST  = 132*KB
L_RED = 52*KB
L_OT  = 68*KB
L_FLAG = 163840 - 128
F_SB, F_KS, F_TAG, F_PX, F_PW, F_UD, F_FREE, F_PAR, F_XC = 0, 4, 8, 16, 20, 24, 32, 48, 56
LDS_TOTAL = 163840
assert L_KP + 4*2816 <= L_FLAG
NWAVES = 12
LOG2E = 0x3fb8aa3b
INV2PI = 0x3e22f983
def f2h(x): return struct.unpack("<I", struct.pack("<f", x))[0]
def pack8(vals): return sum((x//4096) << (8*i) for i, x in enumerate(vals))

EARLY = "early" in sys.argv
if EARLY:
    XS = [16*KB, 44*KB, 72*KB, 100*KB]; L_KP = 0
XD = len(XS)

class Cnt:
    def __init__(self, A, name, mx): self.A = A; self.q = []; self.name = name; self.mx = mx; self.issued = set()
    def op(self, text, tag=None):
        self.A(text); self.q.append(tag); self.issued.add(tag)
        assert len(self.q) <= self.mx, "counter overflow"
    def need(self, tag):
        assert tag in self.issued, tag
        idx = [i for i, t in enumerate(self.q) if t == tag]
        if not idx: return
        n = len(self.q) - 1 - idx[-1]
        self.A(f"s_waitcnt {self.name}({min(n, self.mx)})")
        self.q = self.q[idx[-1]+1:]

class G:
    def __init__(self, ts=False, opts=()):
        self.A = Asm(); self.ts = ts; self.opts = set(opts); self.role = None; self.npt = 0; self.ncm = 0; self.nw2 = 0
        self.amprole = "s" if "amps" in self.opts else "c"
    def opt(self, name, default):
        return int(([o[len(name):] for o in self.opts if o.startswith(name) and o[len(name):].isdigit()] + [default])[0])
    def dstamp(self):
        if self.role == self.amprole:
            self.npt += 1
            if self.npt == self.opt("amp", 0): self.A("s_memrealtime s[70:71]\ns_waitcnt lgkmcnt(0)")
            if self.npt == self.opt("from", 0): self.A("s_memrealtime s[68:69]\ns_waitcnt lgkmcnt(0)")
        if not self.ts: return
        self.A(("s_memrealtime s[64:65]\ns_mov_b32 s95, m0\ns_waitcnt lgkmcnt(0)\ns_nop 0\n" if "rts" in self.opts else "s_memtime s[64:65]\ns_mov_b32 s95, m0\ns_waitcnt lgkmcnt(0)\ns_sub_u32 s64, s64, s70\n") + "s_mov_b32 m0, s67\ns_add_u32 s67, s67, 1\nv_writelane_b32 v167, s64, m0\ns_mov_b32 m0, s95\ns_nop 0")
    def dump_ts(self):
        A = self.A
        if not self.ts: return
        A("s_waitcnt lgkmcnt(0) vmcnt(0)")
        A("s_mov_b64 exec, -1")
        A("s_memrealtime s[64:65]\ns_memtime s[10:11]")
        srd(A, 4, 50, 1 << 28)
        A("s_waitcnt lgkmcnt(0)")
        A("v_writelane_b32 v167, s70, 61\ns_sub_u32 s10, s10, s70\nv_writelane_b32 v167, s10, 60")
        A("v_writelane_b32 v167, s68, 63")
        A("v_writelane_b32 v167, s64, 62")
        A("s_lshl_b32 s8, s2, 4\ns_add_u32 s8, s8, s3\ns_lshl_b32 s8, s8, 8")
        A(f"s_add_u32 s8, s8, {WS_TS:#x}")
        A("v_mbcnt_lo_u32_b32 v16, -1, 0\nv_mbcnt_hi_u32_b32 v16, -1, v16\nv_lshlrev_b32 v16, 2, v16")
        A("buffer_store_dword v167, v16, s[4:7], s8 offen")
        A("s_waitcnt vmcnt(0)")
    def end(self):
        if self.opt("amp", 0) and self.role == self.amprole:
            A = self.A; L = A.lab("L_amp")
            A("s_waitcnt vmcnt(0)\ns_memrealtime s[64:65]\ns_waitcnt lgkmcnt(0)")
            if self.opt("amp", 0) == 99: A("s_mov_b32 s70, s64")
            A("s_sub_u32 s70, s70, s68\ns_lshl_b32 s70, s70, %d\ns_min_u32 s70, s70, 20000" % self.opt("mul", 1))
            if "cal" in self.opts: A("s_mov_b32 s70, 0")
            if self.opt("wg", 999) != 999:
                A("s_add_u32 s70, s70, 300\ns_cmpk_lg_u32 s2, %d\ns_cselect_b32 s70, 0, s70" % self.opt("wg", 999))
            A(f"{L}:\ns_sleep 1\ns_memrealtime s[10:11]\ns_waitcnt lgkmcnt(0)\ns_sub_u32 s10, s10, s64\ns_cmp_lt_u32 s10, s70\ns_cbranch_scc1 {L}")
        self.dump_ts(); self.A("s_endpgm")

    def guard(self):
        self.A("s_add_u32 s66, s66, 0x1000\ns_cbranch_scc1 L_end")

    def lds_wait_ge(self, vaddr, off, target, vt, name, sleep=0):
        A = self.A; L = A.lab(name); L2 = A.lab(name)
        if sleep:
            A(f"s_branch {L2}\n{L}:\ns_sleep {sleep}\n{L2}:")
        else:
            A(f"{L}:")
        A(f"ds_read_b32 v{vt}, v{vaddr} offset:{off}")
        self.guard()
        A("s_waitcnt lgkmcnt(0)")
        A(f"v_cmp_gt_u32 vcc, {target}, v{vt}")
        A(f"s_cbranch_vccnz {L}")

    def get_tag(self, vaddr, vt, sdst, name):
        A = self.A; L = A.lab(name)
        A(f"{L}:")
        A(f"ds_read_b64 v[{vt}:{vt+1}], v{vaddr} offset:{F_TAG}")
        self.guard()
        A("s_waitcnt lgkmcnt(0)")
        A(f"v_readfirstlane_b32 s9, v{vt+1}")
        A(f"v_readfirstlane_b32 s62, v{vt}")
        A(f"s_cmp_eq_u32 s9, 0\ns_cbranch_scc1 {L}")
        A("s_mov_b32 s63, s62")

    def flag_wait(self, n, soff, name, base=16, extra=None, sleep=0, prewait=True):
        A = self.A; L = A.lab(name)
        if prewait: A("s_waitcnt lgkmcnt(0)")
        if sleep:
            L2 = A.lab(name); A(f"s_branch {L2}\n{L}:\ns_sleep {sleep}\n{L2}:")
        else: A(f"{L}:")
        A(f"s_load_dwordx{n} s[{base}:{base+n-1}], s[50:51], {soff} glc")
        m = n
        if extra:
            A(f"s_load_dwordx2 s[{base+n}:{base+n+1}], s[50:51], {extra} glc"); m = n + 2
        self.guard()
        A("s_waitcnt lgkmcnt(0)")
        for k in range(0, m, 2): A(f"s_xor_b64 s[{base+k}:{base+k+1}], s[{base+k}:{base+k+1}], s[62:63]")
        for k in range(2, m, 2): A(f"s_or_b64 s[{base}:{base+1}], s[{base}:{base+1}], s[{base+k}:{base+k+1}]")
        A(f"s_cbranch_scc1 {L}")
    def flag_set(self, soff):
        self.A(f"s_mov_b32 s9, s62\ns_atomic_swap s9, s[50:51], {soff}")

    def pf_setup(self):
        A = self.A
        if "spf" not in self.opts:
            A("s_waitcnt lgkmcnt(0)"); return
        A("s_lshl_b32 s10, s2, 13\ns_lshl_b32 s11, s60, 11\ns_add_u32 s10, s10, s11")
        A("s_mul_i32 s11, s2, 688\ns_and_b32 s11, s11, 0xffffffc0\ns_mul_i32 s12, s60, 192\ns_add_u32 s11, s11, s12\ns_min_u32 s11, s11, 175936")
        A("s_add_u32 s11, s11, %d" % (3*176128))
        A("s_waitcnt lgkmcnt(0)")
        A("s_add_u32 s34, s16, s10\ns_addc_u32 s35, s17, 0\ns_add_u32 s44, s36, s11\ns_addc_u32 s45, s37, 0")
    def pf(self, slices):
        if "spf" not in self.opts: return
        n = 0
        for sl in slices:
            for r in range(2):
                for h in range(2): self.A(f"s_load_dword s{78+(n%14)}, s[34:35], {1024*r+128*sl+64*h}"); n += 1
            for k in range(3): self.A(f"s_load_dword s{78+(n%14)}, s[44:45], {176128*(sl-3)+64*k}"); n += 1

    def map_m(self):
        if "lmap" in self.opts:
            self.A("s_and_b32 s56, s2, 7\ns_lshl_b32 s56, s56, 1\ns_bfe_u32 s54, s2, 0x10003\ns_add_u32 s56, s56, s54"); return
        self.A("s_bfe_u32 s56, s2, 0x20001\ns_lshl_b32 s56, s56, 2\ns_bfe_u32 s54, s2, 0x20003\ns_add_u32 s56, s56, s54")
    def map_n(self):
        if "lmap" in self.opts:
            self.A("s_lshr_b32 s57, s2, 4"); return
        self.A("s_and_b32 s57, s2, 1\ns_lshl_b32 s57, s57, 3\ns_lshr_b32 s55, s2, 5\ns_add_u32 s57, s57, s55")
    def map_tb(self):
        self.A("s_and_b32 s59, s2, 7\ns_lshl_b32 s59, s59, 2\ns_bfe_u32 s54, s2, 0x20003\ns_add_u32 s59, s59, s54\ns_lshr_b32 s55, s2, 5")
    def rot(self, d):
        A = self.A
        if "norot" in self.opts: A(f"s_mov_b32 s{d}, 0"); return
        if "rotd" in self.opts:
            A(f"s_bfe_u32 s{d}, s2, 0x20003\ns_lshl_b32 s{d}, s{d}, 1\ns_cmp_eq_u32 s55, 3\ns_cselect_b32 s{d}, s{d}, 0"); return
        if "rot2" in self.opts:
            A(f"s_and_b32 s{d}, s55, 1\ns_lshl_b32 s{d}, s{d}, 2"); return
        if "nod3" in self.opts: A(f"s_mov_b32 s{d}, s55")
        else: A(f"s_bfe_u32 s{d}, s2, 0x20003\ns_lshl_b32 s{d}, s{d}, 1\ns_cmp_eq_u32 s55, 3\ns_cselect_b32 s{d}, s{d}, 0\ns_add_u32 s{d}, s{d}, s55")
        if "xrot" in self.opts:
            A(f"s_and_b32 s9, s2, 7\ns_add_u32 s{d}, s{d}, s9\ns_cmp_ge_u32 s{d}, 14\ns_cselect_b32 s9, 14, 0\ns_sub_u32 s{d}, s{d}, s9")
        A(f"s_cmp_ge_u32 s{d}, 7\ns_cselect_b32 s9, 7, 0\ns_sub_u32 s{d}, s{d}, s9")
    def tabptr(self):
        A = self.A; L = A.lab("L_tp")
        A(f"s_getpc_b64 s[92:93]\n{L}:")
        A(f"s_add_u32 s92, s92, L_tab-{L}\ns_addc_u32 s93, s93, 0")
    def dmaflag(self, vreg, m0src=None):
        A = self.A
        if m0src is not None: A(f"s_mov_b32 m0, {m0src}")
        A("s_mov_b64 exec, 1")
        A(f"global_load_lds_dword v{vreg}, s[92:93]")
        A("s_mov_b64 exec, -1")

    def prologue(self):
        A = self.A
        if "rt" in self.opts or self.opt("amp", 0): A("s_memrealtime s[68:69]")
        if self.ts: A("s_memrealtime s[70:71]" if "rts" in self.opts else "s_memtime s[70:71]")
        A("s_load_dwordx16 s[16:31], s[0:1], 0")
        A("s_load_dwordx16 s[32:47], s[0:1], 64")
        A("s_load_dwordx4 s[48:51], s[0:1], 128")
        A("v_lshrrev_b32 v2, 6, v0")
        if self.ts or "rt" in self.opts: A("s_nop 0")
        else: A("s_cmpk_ge_u32 s2, 256\ns_cbranch_scc1 L_end")
        A("v_readfirstlane_b32 s3, v2")
        A("s_cmp_ge_u32 s3, 8\ns_cbranch_scc1 L_ssm")
        A("s_cmp_ge_u32 s3, 4\ns_cbranch_scc1 L_cons")
        A("s_cmp_lg_u32 s3, 0\ns_cbranch_scc1 L_disp")
        A("s_getpc_b64 s[8:9]")
        A("s_and_b32 s10, s2, 24\ns_lshl_b32 s10, s10, 10")
        A("v_lshl_add_u32 v1, v0, 7, s10")
        A("global_load_dword v14, v1, s[8:9]")
        A("s_lshl_b32 s10, s2, 9")
        A("v_lshl_add_u32 v2, v0, 4, s10")
        A(f"s_mov_b32 m0, {L_PAR+PARO[0]}")
        A("s_mov_b32 exec_hi, 0")
        A("v_lshlrev_b32 v3, 21, v0")
        A("s_waitcnt lgkmcnt(0)")
        fill = ["s_and_b32 s10, s2, 7", "s_lshl_b32 s10, s10, 7", "s_lshr_b32 s12, s2, 3", "s_lshl_b32 s12, s12, 16", "s_add_u32 s10, s10, s12", None]
        if "lazy" in self.opts:
            fill = ["s_lshl_b32 s10, s2, 13", "s_movk_i32 s12, %d" % (688*self.opt("ns", 2)), "s_mul_i32 s12, s12, s2", "v_lshl_add_u32 v4, v0, 6, s12", "global_load_dword v17, v4, s[36:37]", None]
        for i in range(6):
            A(f"global_load_lds_dwordx4 v2, s[{18+2*i}:{19+2*i}]")
            if fill[i]:
                A(f"s_addk_i32 m0, {PARO[i+1]-PARO[i]}"); A(fill[i])
        if "lazy" in self.opts:
            A("s_mov_b32 exec_lo, 0x%x\ns_mov_b32 exec_hi, exec_lo" % (0x01010101*((1 << self.opt("ns", 2))-1)))
            A("v_lshl_add_u32 v1, v0, 7, s10")
        else:
            A("s_mov_b32 exec_hi, -1")
            A("v_lshl_add_u32 v1, v0, 10, s10")
        A("global_load_dword v15, v1, s[16:17]")
        A("s_mov_b64 exec, 31")
        A("global_load_dword v16, v3, s[50:51] offset:64")
        A("s_mov_b64 exec, -1")
        A("L_disp:")
        A("v_and_b32 v0, 63, v0\ns_mov_b32 s66, 0")
        if self.ts: A("s_mov_b32 s67, 0\nv_mov_b32 v167, 0\ns_memrealtime s[68:69]")
        A("s_cmp_eq_u32 s3, 1\ns_cbranch_scc1 L_ldx")
        A("s_cmp_eq_u32 s3, 2\ns_cbranch_scc1 L_ldw")
    def entry(self):
        A = self.A
        A("v_and_b32 v0, 63, v0\ns_mov_b32 s66, 0")
        if self.ts: A("s_mov_b32 s67, 0\nv_mov_b32 v167, 0\ns_memrealtime s[68:69]")

    def free_issue(self):
        self.A(f"ds_read_b32 v20, v13")
    def free_check(self, target, name):
        A = self.A; L = A.lab(name); L2 = A.lab(name)
        chk = f"s_waitcnt lgkmcnt(0)\nv_cmp_gt_u32 vcc, {target}, v20\n"
        A(chk + f"s_cbranch_vccz {L2}")
        A(f"{L}:")
        if self.opt("zl", 0): A("s_sleep %d" % self.opt("zl", 0))
        self.free_issue()
        self.guard()
        A(chk + f"s_cbranch_vccnz {L}")
        A(f"{L2}:")
    def throttle(self):
        t = self.opt("thr", 0)
        if t: self.A(f"s_waitcnt vmcnt({t})")

    def loop_tail(self, p, depth):
        A = self.A
        A("v_add_u32 v9, 4, v9")
        self.dmaflag(9, "s94")
        if "lstamp" in self.opts: self.dstamp()
        A("s_add_u32 s12, s12, 1\ns_lshr_b64 s[96:97], s[96:97], 8")
        if "nohold" not in self.opts and "lazy" not in self.opts:
            A(f"s_cmp_lg_u32 s12, 1\ns_cbranch_scc1 L_{p}_nh\nv_and_b32 v22, 1, v0\nv_lshl_add_u32 v22, v22, 2, v8")
            self.lds_wait_ge(22, F_UD, 1, 21, f"L_{p}_h")
            A(f"L_{p}_nh:")
        A(f"s_cmp_lt_u32 s12, {depth}\ns_cbranch_scc1 L_{p}_loop")
        A(f"s_cmp_eq_u32 s12, 8\ns_cbranch_scc1 L_w2")
        A(f"s_sub_u32 s15, s12, {depth-1}")
        if "nofree" not in self.opts: self.free_check("s15", f"L_{p}_f")
        A(f"s_branch L_{p}_loop")

    def loader_x(self):
        A = self.A
        A("L_ldx:")
        self.tabptr()
        self.map_m()
        A("v_lshrrev_b32 v1, 3, v0\nv_lshrrev_b32 v2, 4, v0\nv_and_b32 v3, 7, v0\nv_xor_b32 v2, v3, v2\nv_lshlrev_b32 v1, 10, v1")
        A("v_lshl_add_u32 v4, v2, 4, v1")
        A("v_xor_b32 v5, 64, v4")
        A(f"v_add_u32 v5, {7*1024}, v5\nv_add_u32 v6, {14*1024}, v4\nv_add_u32 v7, {14*1024}, v5")
        A("s_lshl_b32 s10, s56, 17")
        xs = [XS[s % XD] for s in range(8)]
        A(f"s_mov_b32 s96, {pack8(xs[:4]):#x}\ns_mov_b32 s97, {pack8(xs[4:]):#x}")
        A(f"s_mov_b32 s94, {L_FLAG+F_PX}\ns_mov_b32 s12, 0\ns_mov_b32 s98, 0")
        A(f"v_mov_b32 v8, {L_FLAG}\nv_mov_b32 v9, 0\nv_and_b32 v13, 3, v0\nv_lshl_add_u32 v13, v13, 2, v8\nv_add_u32 v13, {F_FREE}, v13")
        A("s_mov_b32 s6, 0x200000\ns_mov_b32 s7, 0x20000")
        A("s_waitcnt lgkmcnt(0)")
        A("s_mov_b32 s4, s16\ns_and_b32 s5, s17, 0xffff")
        A("s_barrier")
        if "g2only" in self.opts: A("s_endpgm")
        self.dstamp()
        if self.opt("lprio", 0): A("s_setprio %d" % self.opt("lprio", 0))
        A("s_lshr_b32 s13, s2, 5\ns_lshl_b32 s13, s13, 7\nv_mov_b32 v3, s13\ns_mov_b64 exec, 1")
        A("global_load_dword v140, v3, s[42:43]\nglobal_load_dword v141, v3, s[40:41]")
        if "noot" not in self.opts: A("s_and_b32 s14, s2, 7\ns_lshl_b32 s14, s14, 18\nv_add_u32 v3, s14, v3\nglobal_load_dword v143, v3, s[46:47]")
        A("s_mov_b64 exec, -1")
        if "w2f" in self.opts:
            A("s_mul_i32 s13, s2, 5504\ns_add_u32 s14, s40, s13\ns_addc_u32 s15, s41, 0\nv_lshlrev_b32 v3, 7, v0\ns_movk_i32 exec_hi, 0x7ff")
            A("global_load_dword v142, v3, s[14:15]\ns_mov_b64 exec, -1")
        A("L_x_loop:")
        A("s_and_b32 s13, s96, 0xff\ns_lshl_b32 s13, s13, 12\ns_mov_b32 s14, s10")
        for g in range(4):
            A(f"s_add_u32 m0, s13, {g*4096}")
            if g: A(f"s_add_u32 s14, s14, 32768")
            else: A(f"s_add_u32 s10, s10, 128")
            if g == 3: self.free_issue()
            self.throttle()
            for j in range(4):
                A(f"buffer_load_dwordx4 v{4+j}, s[4:7], s14 offen offset:{j*1024} lds")
        self.loop_tail("x", XD)

    def loader_w(self):
        A = self.A
        A("L_ldw:")
        self.tabptr()
        A(f"v_mov_b32 v8, {L_FLAG}\nv_mov_b32 v9, 0\nv_lshl_add_u32 v3, v0, 2, v8")
        A("s_mov_b32 exec_hi, 0\nds_write_b32 v3, v9\ns_mov_b64 exec, -1")
        self.map_n()
        for j in range(3):
            A(f"v_add_u32 v1, {64*j}, v0")
            A(f"v_mul_u32_u24 v2, 0xaaab, v1\nv_lshrrev_b32 v{24+j}, 19, v2")
            A(f"v_mul_u32_u24 v2, {2752-192}, v{24+j}")
            A(f"v_lshl_add_u32 v{4+j}, v0, 4, v2")
        A("v_and_b32 v1, 32, v0\nv_xor_b32 v5, v5, v1\nv_xor_b32 v6, 32, v6")
        A("s_mul_i32 s10, s57, 192")
        A(f"s_mov_b32 s53, {16*2752}")
        A(f"v_and_b32 v13, 3, v0\nv_lshl_add_u32 v13, v13, 2, v8\nv_add_u32 v13, {F_FREE}, v13")
        ws_ = [WSL[s % 4] for s in range(8)]
        A(f"s_mov_b32 s96, {pack8(ws_[:4]):#x}\ns_mov_b32 s97, s96")
        A(f"s_mov_b32 s94, {L_FLAG+F_PW}\ns_mov_b32 s12, 0\ns_mov_b32 s98, 1")
        A(f"s_mov_b32 s6, {512*2752}\ns_mov_b32 s7, 0x20000")
        A("s_waitcnt lgkmcnt(0)")
        A("s_mov_b32 s4, s36\ns_and_b32 s5, s37, 0xffff")
        A("s_cmp_ge_u32 s57, 14\ns_cbranch_scc1 L_ld_gate")
        A("L_ld_go:")
        A("s_barrier")
        if "g2only" in self.opts: A("s_endpgm")
        self.dstamp()
        if self.opt("lprio", 0): A("s_setprio %d" % self.opt("lprio", 0))
        A("s_mul_i32 s13, s2, 5504\ns_add_u32 s14, s36, s13\ns_addc_u32 s15, s37, 0\nv_lshlrev_b32 v3, 7, v0\ns_movk_i32 exec_hi, 0x7ff")
        A(("" if "lazy" in self.opts else "global_load_dword v140, v3, s[14:15]\n") + "s_mov_b64 exec, -1")
        A("L_w_loop:")
        A("s_and_b32 s13, s96, 0xff\ns_lshl_b32 s13, s13, 12")
        for g in range(4):
            A(f"s_add_u32 m0, s13, {g*3072}")
            if g == 3: self.free_issue()
            else: A("s_nop 0")
            self.throttle()
            for j in range(3):
                A(f"buffer_load_dwordx4 v{4+j}, s[4:7], s10 offen offset:{j*1024} lds")
            A("s_add_u32 s10, s10, s53")
        self.loop_tail("w", 4)
        A("L_ld_gate:")
        A("v_mov_b32 v15, 0x80000000")
        A("s_cmp_eq_u32 s57, 15\ns_cbranch_scc1 L_ld_gate2")
        for j in range(3):
            A(f"v_add_u32 v1, {64*j}, v0")
            A(f"v_mul_u32_u24 v2, 12, v{24+j}\nv_sub_u32 v1, v1, v2")
            A("v_cmp_gt_u32 vcc, 4, v1\ns_nop 1")
            A(f"v_cndmask_b32 v{4+j}, v15, v{4+j}, vcc")
        A("s_branch L_ld_go")
        A("L_ld_gate2:")
        A("s_sub_u32 s4, s44, 2048\ns_subb_u32 s5, s45, 0\ns_and_b32 s5, s5, 0xffff")
        A("s_mov_b32 s6, 3072\ns_mov_b32 s53, 32\ns_mov_b32 s10, 0")
        for j in range(3):
            A(f"v_add_u32 v1, {64*j}, v0")
            A(f"v_mul_u32_u24 v2, 12, v{24+j}\nv_sub_u32 v1, v1, v2")
            A(f"v_lshrrev_b32 v2, 3, v{24+j}\nv_xor_b32 v2, v2, v{24+j}\nv_and_b32 v2, 1, v2\nv_lshlrev_b32 v2, 1, v2")
            A("v_cmp_eq_u32 vcc, v1, v2")
            A(f"v_and_b32 v2, 14, v{24+j}\nv_lshlrev_b32 v2, 1, v2\nv_add_u32 v2, {2048-1024*j}, v2")
            A(f"v_cndmask_b32 v{4+j}, v15, v2, vcc")
        A("s_branch L_ld_go")

    def loader_w2(self):
        A = self.A
        A("L_w2:")
        A("v_lshrrev_b32 v1, 3, v0\nv_lshlrev_b32 v1, 10, v1")
        A("v_lshrrev_b32 v2, 4, v0\nv_lshlrev_b32 v2, 1, v2\nv_and_b32 v3, 7, v0\nv_xor_b32 v2, v2, v3")
        A("v_lshl_add_u32 v16, v2, 4, v1")
        for j in range(1, 4): A(f"v_add_u32 v{16+j}, {7*1024*j}, v16")
        srd(A, 4, 40, 1376*1024)
        A("s_lshr_b32 s55, s2, 5\ns_lshl_b32 s10, s55, 7")
        A(f"s_lshl_b32 s14, s98, 14\ns_add_u32 s14, s14, s10\ns_add_u32 s14, s14, {1344*1024}")
        A(f"s_mul_i32 s11, s98, {7*96*1024}\ns_add_u32 s52, s10, s11\ns_add_u32 s53, s52, {7*96*1024}")
        A("s_mul_i32 s11, s98, 12288")
        self.rot(13)
        A(f"s_add_u32 s10, s13, 5\ns_cmp_ge_u32 s10, 7\ns_cselect_b32 s12, 7, 0\ns_sub_u32 s10, s10, s12\ns_mul_i32 s10, s10, {96*1024}\ns_add_u32 s10, s10, s52")
        RB = 32
        if self.opt("rg", 7): self.lds_wait_ge(8, F_PW, self.opt("rg", 7), 21, "L_w2_rg")
        for k in range(6):
            for j in range(4):
                A(f"buffer_load_dwordx4 {v(RB+16*k+4*j,4)}, v{16+j}, s[4:7], s10 offen offset:{j*1024}")
            A("s_add_u32 s10, s10, 32768")
            if k % 3 == 2: A("s_cmp_eq_u32 s10, s53\ns_cselect_b32 s10, s52, s10")
        if "lstamp" in self.opts: self.dstamp()
        bl = [BLK[b] for b in range(5)] + [0, 0, 0]
        A(f"s_mov_b32 s96, {pack8(bl[:4]):#x}\ns_mov_b32 s97, {pack8(bl[4:]):#x}")
        nd = sum(x << (4*i) for i, x in enumerate(BLKNEED))
        A(f"s_mov_b32 s99, {nd:#x}")
        if EARLY: self.lds_wait_ge(8, F_SB, 4, 21, "L_w2_e")
        self.free_issue()
        self.free_check(self.opt("w2g", 8), "L_w2_m")
        A(f"s_lshl_b32 m0, s98, 11\ns_nop 0")
        for j in range(2):
            A(f"buffer_load_dwordx4 v{16+j}, s[4:7], s14 offen offset:{j*1024} lds")
        A("L_w2_loop:")
        A("s_and_b32 s13, s96, 0xff\ns_lshl_b32 s13, s13, 12\ns_add_u32 s13, s13, s11")
        for g in range(3):
            A(f"s_add_u32 m0, s13, {g*4096}")
            if g == 2: self.free_issue()
            else: A("s_nop 0")
            self.throttle()
            for j in range(4):
                A(f"buffer_load_dwordx4 v{16+j}, s[4:7], s10 offen offset:{j*1024} lds")
            A("s_add_u32 s10, s10, 32768")
        A("s_cmp_eq_u32 s10, s53\ns_cselect_b32 s10, s52, s10")
        A("v_add_u32 v9, 4, v9")
        self.dmaflag(9, "s94")
        if "lstamp" in self.opts: self.dstamp()
        A("s_lshr_b64 s[96:97], s[96:97], 8\ns_lshr_b32 s99, s99, 4")
        A("s_cbranch_scc0 L_w2_done")
        A("s_and_b32 s15, s99, 15")
        self.free_check("s15", "L_w2_f")
        A(f"s_cmp_lg_u32 s99, {nd >> 8:#x}\ns_cbranch_scc1 L_w2_loop")
        self.lds_wait_ge(8, F_SB, 4, 21, "L_w2_s")
        A("s_branch L_w2_loop")
        A("L_w2_done:")
        A("v_lshl_add_u32 v4, v0, 4, s11\nv_mov_b32 v5, s94")
        A("s_waitcnt vmcnt(0)")
        if "lend" in self.opts: A("v_mov_b32 v6, 15\ns_mov_b64 exec, 1\nds_write_b32 v5, v6\ns_waitcnt lgkmcnt(0)\ns_endpgm")
        for bb in range(2):
            self.lds_wait_ge(13, 0, 9+bb, 20, "L_w2_r", sleep=self.opt("zw", 4))
            for k in range(12):
                if "nowr" not in self.opts: A(f"ds_write_b128 v4, {v(RB+48*bb+4*k,4)} offset:{BLK[bb]+1024*k}")
                if self.opt("wsp", 0): A("s_nop %d" % self.opt("wsp", 0))
            A(f"v_mov_b32 v6, {14+bb}\ns_mov_b64 exec, 1\nds_write_b32 v5, v6\ns_mov_b64 exec, -1")
            if "lstamp" in self.opts: self.dstamp()
        A("s_waitcnt lgkmcnt(0)")
        self.dstamp()
        self.end()

    def helper(self):
        A = self.A
        A("s_and_b32 s60, s3, 1")
        A("s_lshr_b32 s59, s2, 3\ns_and_b32 s55, s2, 7")
        A("s_lshl_b32 s10, s59, 16\ns_lshl_b32 s11, s60, 6\ns_add_u32 s10, s10, s11\ns_lshl_b32 s11, s55, 7\ns_add_u32 s10, s10, s11")
        A("v_lshrrev_b32 v12, 3, v0\nv_bfe_u32 v4, v0, 2, 1\nv_lshl_add_u32 v4, v4, 5, v12\nv_and_b32 v11, 3, v0\nv_lshlrev_b32 v5, 4, v11\nv_lshl_add_u32 v4, v4, 10, v5")
        for j in range(1, 4): A(f"v_xor_b32 v{4+j}, {16*j}, v4\nv_add_u32 v{4+j}, {7*1024*j}, v{4+j}")
        A(f"s_mul_i32 s11, s60, 4608\ns_add_u32 s58, s11, {L_UL+480}\ns_mov_b32 m0, s58")
        A("s_waitcnt lgkmcnt(0)")
        A(f"s_load_dword s62, s[50:51], {WS_EPOCH}")
        srd(A, 4, 16, 2048*1024)
        if "lazy" not in self.opts:
            for j in range(4): A(f"buffer_load_dwordx4 v{4+j}, s[4:7], s10 offen offset:{j*1024} lds")
        A("s_barrier")
        A("s_branch L_help2")
    def helper2(self):
        A = self.A
        A("L_help2:")
        A("s_setprio 3")
        A(f"v_mov_b32 v8, {L_FLAG}\nv_mov_b32 v3, 1")
        if "lazy" in self.opts:
            A("s_cmp_lg_u32 s60, 0\ns_cbranch_scc1 L_h_lz")
            A("s_waitcnt vmcnt(2)")
            A(f"s_mov_b64 exec, 1\nds_write_b32 v8, v3 offset:{F_PAR}\ns_mov_b64 exec, -1")
            A("L_h_lz:")
            A("s_waitcnt lgkmcnt(0)")
            A(f"s_add_u32 s62, s62, {EPC:#x}\ns_mov_b32 s63, s62\nv_mov_b32 v2, s62")
            A(f"s_mov_b64 exec, 1\nds_write_b64 v8, v[2:3] offset:{F_TAG}\ns_mov_b64 exec, -1")
            self.lds_wait_ge(8, F_PAR if self.opt("upub", 0) == 0 else F_PW, max(1, self.opt("upub", 0)), 10, "L_h_lw")
            for j in range(4): A(f"buffer_load_dwordx4 v{4+j}, s[4:7], s10 offen offset:{j*1024} lds")
            A("s_mul_i32 s14, s2, 5504\ns_mul_i32 s15, s60, 2816\ns_add_u32 s14, s14, s15\ns_add_u32 s14, s36, s14\ns_addc_u32 s15, s37, 0")
            A("v_lshlrev_b32 v4, 7, v0\ns_lshr_b32 exec_lo, 0x3fffff, s60\ns_mov_b32 exec_hi, 0\nglobal_load_dword v74, v4, s[14:15]\ns_mov_b64 exec, -1")
        self.tabptr()
        srd(A, 72, 50, WS_END)
        A("v_lshrrev_b32 v4, 5, v0\nv_xor_b32 v4, v4, v11\nv_lshlrev_b32 v4, 4, v4\nv_lshl_add_u32 v4, v11, 10, v4")
        A("v_bfe_u32 v5, v0, 2, 1\nv_lshl_add_u32 v4, v5, 6, v4\nv_bfe_u32 v5, v0, 3, 2\nv_lshl_add_u32 v4, v5, 2, v4\nv_add_u32 v24, s58, v4\nv_xor_b32 v25, 32, v24")
        A("v_and_b32 v4, 7, v0\nv_lshlrev_b32 v4, 4, v4\nv_lshl_add_u32 v28, v12, 13, v4")
        A("s_lshl_b32 s10, s55, 18\ns_lshl_b32 s12, s60, 17\ns_add_u32 s10, s10, s12\ns_lshl_b32 s12, s59, 7\ns_add_u32 s10, s10, s12")
        A(f"s_add_u32 s10, s10, {WS_UT:#x}\ns_add_u32 s11, s10, 4096\ns_add_u32 s52, s10, 0x10000\ns_add_u32 s53, s10, 0x11000")
        A("s_lshl_b32 s12, s55, 1\ns_add_u32 s12, s12, s60\ns_lshl_b32 s12, s12, 2\ns_lshr_b32 s13, s59, 3\ns_add_u32 s12, s12, s13\ns_lshl_b32 s12, s12, 7")
        A(f"s_and_b32 s13, s59, 7\ns_lshl_b32 s13, s13, 2\ns_add_u32 s12, s12, s13\ns_add_u32 s54, s12, {WS_FU:#x}")
        A("s_mov_b32 s12, 0x05040100\ns_mov_b32 s13, 0x07060302")
        A("s_load_dword s56, s[50:51], s54 glc")
        A(f"s_lshl_b32 s94, s60, 2\ns_add_u32 s94, s94, {L_FLAG+F_UD}\nv_mov_b32 v9, s94")
        if "lazy" not in self.opts:
            A("s_cmp_lg_u32 s60, 0\ns_cbranch_scc1 L_h_np")
            A("s_waitcnt vmcnt(6)")
            A(f"s_mov_b64 exec, 1\nds_write_b32 v8, v3 offset:{F_PAR}\ns_mov_b64 exec, -1")
            A("L_h_np:")
            A("s_waitcnt lgkmcnt(0)")
            A(f"s_add_u32 s62, s62, {EPC:#x}\ns_mov_b32 s63, s62\nv_mov_b32 v2, s62")
            A(f"s_mov_b64 exec, 1\nds_write_b64 v8, v[2:3] offset:{F_TAG}\ns_mov_b64 exec, -1")
        if "g2only" in self.opts: A("s_waitcnt lgkmcnt(0)\ns_endpgm")
        A("s_waitcnt vmcnt(1) lgkmcnt(0)" if "lazy" in self.opts else "s_waitcnt vmcnt(0)")
        self.dstamp()
        for it_ in range(2):
            for e in range(4): A(f"ds_read2_b32 {v(32+8*it_+2*e,2)}, v{24+it_} offset0:{64*e} offset1:{64*e+32}")
        for it_ in range(2):
            A(f"s_waitcnt lgkmcnt({4-4*it_})")
            for c_ in range(2):
                for e in range(4): A(f"v_perm_b32 v{48+8*it_+4*c_+e}, v{33+8*it_+2*e}, v{32+8*it_+2*e}, s{12+c_}")
                A(f"buffer_store_dwordx4 {v(48+8*it_+4*c_,4)}, v28, s[72:75], s{(10, 11, 52, 53)[2*it_+c_]} offen sc1")
        if "w2all" in self.opts:
            A("s_mul_i32 s14, s2, 5504\ns_mul_i32 s15, s60, 2816\ns_add_u32 s14, s14, s15\ns_add_u32 s14, s40, s14\ns_addc_u32 s15, s41, 0")
            A("v_lshlrev_b32 v4, 7, v0\ns_lshr_b32 exec_lo, 0x3fffff, s60\ns_mov_b32 exec_hi, 0\nglobal_load_dword v73, v4, s[14:15]")
            if "t3" in self.opts:
                A("s_mul_i32 s14, s59, 43\ns_mul_i32 s15, s60, 22\ns_add_u32 s14, s14, s15\ns_lshl_b32 s14, s14, 10\ns_add_u32 s14, s14, 384\ns_add_u32 s14, s40, s14\ns_addc_u32 s15, s41, 0")
                A("v_lshlrev_b32 v4, 10, v0\nglobal_load_dword v75, v4, s[14:15]")
        A("s_mov_b64 exec, 1\nds_write_b32 v9, v3\ns_mov_b64 exec, -1")
        A("s_setprio 0")
        if "w2all" not in self.opts and "now2" not in self.opts: A("s_cmp_eq_u32 s60, 0\ns_cbranch_scc1 L_h_w2\nL_h_w2r:")
        self.dstamp()
        A("s_waitcnt vmcnt(%d)" % ((2 if "t3" in self.opts else 1) if "w2all" in self.opts else 0))
        self.flag_set("s54")
        A("s_cmp_eq_u32 s60, 0\ns_cbranch_scc1 %s" % ("L_h_st" if "w2st" in self.opts else "L_h_done"))
        A(f"s_lshr_b32 s10, s2, 4\ns_lshl_b32 s10, s10, 9\ns_add_u32 s52, s10, {WS_FU:#x}\ns_add_u32 s53, s52, 128\ns_add_u32 s54, s52, 256\ns_add_u32 s55, s52, 384")
        A(f"s_lshl_b32 s10, s2, 13\ns_add_u32 s10, s10, {WS_UT:#x}\ns_add_u32 s11, s10, 4096")
        A(f"s_mov_b32 m0, {L_UL+480}\nv_lshlrev_b32 v13, 4, v0\nv_mov_b32 v9, 8")
        A("s_waitcnt lgkmcnt(0)")
        self.dstamp()
        A("L_h_uw:")
        A("s_sleep %d" % self.opt("usl", 6))
        for k_ in range(4): A(f"s_load_dwordx8 s[{16+8*k_}:{23+8*k_}], s[50:51], s{52+k_} glc")
        self.guard()
        A("s_waitcnt lgkmcnt(0)")
        for k_ in range(0, 32, 2): A(f"s_xor_b64 s[{16+k_}:{17+k_}], s[{16+k_}:{17+k_}], s[62:63]")
        for k_ in range(2, 32, 2): A(f"s_or_b64 s[16:17], s[16:17], s[{16+k_}:{17+k_}]")
        A("s_cbranch_scc1 L_h_uw")
        self.lds_wait_ge(8, F_UD, 1, 10, "L_h_ud")
        for j in range(4): A(f"buffer_load_dwordx4 v13, s[72:75], s10 offen offset:{1024*j} sc1 lds")
        A(f"s_mov_b32 m0, {L_UL+480+4608}\ns_nop 0")
        for j in range(4): A(f"buffer_load_dwordx4 v13, s[72:75], s11 offen offset:{1024*j} sc1 lds")
        self.dmaflag(9, "s94")
        self.dstamp()
        A("s_cmpk_lg_u32 s2, 255\ns_cbranch_scc1 L_h_done")
        if "nopub" in self.opts or "nos" in self.opts: A("s_branch L_h_done")
        A(f"v_lshlrev_b32 v4, 7, v0\nv_add_u32 v4, {WS_FU:#x}, v4")
        A("L_h_bump:")
        A("buffer_load_dwordx4 v[10:13], v4, s[72:75], 0 offen sc1\nbuffer_load_dwordx4 v[14:17], v4, s[72:75], 0 offen offset:16 sc1")
        A("s_waitcnt vmcnt(0)")
        for i in range(4): A(f"v_bitop3_b32 v{10+i}, v{10+2*i}, v{11+2*i}, v2 bitop3:0x7e")
        A("v_or3_b32 v10, v10, v11, v12\nv_or_b32 v10, v10, v13")
        A("v_cmp_ne_u32 vcc, 0, v10")
        A("s_cbranch_vccz L_h_ok")
        self.guard()
        A("s_sleep 16\ns_branch L_h_bump")
        A("L_h_ok:")
        A(f"v_mov_b32 v4, {WS_EPOCH}")
        A("s_mov_b64 exec, 1")
        A("buffer_store_dword v2, v4, s[72:75], 0 offen sc1")
        A("L_h_done:")
        A("s_waitcnt vmcnt(0) lgkmcnt(0)")
        if "hend" in self.opts: A("s_endpgm")
        if self.ts: self.lds_wait_ge(8, F_PW, 15, 4, "L_h_z", sleep=8)
        self.end()
        if "w2st" in self.opts:
            A("L_h_st:")
            A("s_bfe_u32 s13, s2, 0x%x\ns_add_u32 s13, s13, %d" % (0x10000*self.opt("stb", 2)+3, self.opt("sto", 1)))
            A("s_mul_i32 s14, s2, 5504\ns_add_u32 s14, s40, s14\ns_addc_u32 s15, s41, 0\nv_lshlrev_b32 v4, 7, v0")
            self.lds_wait_ge(8, F_PW, "s13", 10, "L_h_sw", sleep=1)
            A("s_movk_i32 exec_hi, 0x7ff\nglobal_load_dword v73, v4, s[14:15]\ns_mov_b64 exec, -1\ns_branch L_h_done")
        A("L_h_w2:")
        if "w2all" in self.opts or "now2" in self.opts:
            A("s_branch L_h_done"); return
        A("s_mov_b32 s15, s54")
        self.map_n(); self.map_m()
        A("s_mov_b32 s54, s15")
        A("s_cmp_lt_u32 s57, 14\ns_cbranch_scc1 L_h_w2r")
        srd(A, 4, 40, 1376*1024)
        NG = self.opt("gt", 7)
        A(f"s_mul_i32 s10, s56, {88*1024}\ns_sub_u32 s11, 15, s57\ns_mul_i32 s11, s11, {NG*8192}\ns_add_u32 s10, s10, s11\nv_lshlrev_b32 v4, 7, v0")
        for i in range(NG):
            if i == 11-NG: A("s_cmp_eq_u32 s57, 14\ns_cbranch_scc1 L_h_done")
            A(f"buffer_load_dword v{74+i}, v4, s[4:7], s10 offen\ns_add_u32 s10, s10, 8192")
            if i == 2:
                A("s_waitcnt vmcnt(3)"); self.flag_set("s54")
        A("s_mov_b64 exec, -1\ns_branch L_h_done")

    def kg_addr(self):
        A = self.A
        A(f"s_lshl_b32 s12, s52, 8\ns_lshl_b32 s13, s53, 7\ns_add_u32 s12, s12, s13\ns_add_u32 s12, s12, {L_PAR}")
        A("v_lshl_add_u32 v6, v0, 1, s12")
        A(f"s_lshl_b32 s12, s52, 1\ns_add_u32 s12, s12, {L_PAR+3072}\nv_mov_b32 v10, s12\nv_mov_b32 v1, {LOG2E:#x}")
    def kg_common(self, n, dsk=None):
        A = self.A
        A("ds_read_u16 v2, v10")
        for i in range(n): A(f"ds_read_u16 v{16+i}, v6 offset:{512*i}")
        if dsk: A(f"ds_read_u16 v{dsk}, v10 offset:4")
        A(f"s_waitcnt lgkmcnt({n + (1 if dsk else 0)})")
        A("v_lshlrev_b32 v2, 16, v2\nv_mul_f32 v2, v2, v1\nv_exp_f32 v2, v2")
        A("s_waitcnt lgkmcnt(0)")
        A("v_cvt_pk_bf16_f32 v2, v2, v2")
        for i in range(n): A(f"v_lshlrev_b32 v{16+i}, 16, v{16+i}")
        A("v_lshlrev_b32 v2, 16, v2")
    def cmul(self, d, a, b):
        A = self.A
        self.ncm += 1
        if self.ncm >= self.opt("w2s", 4) and self.ncm % 2 == 0 and self.nw2 < 22 and "sw2" in self.opts:
            A(f"s_load_dword s{78+(self.nw2%14)}, s[34:35], {64*self.nw2}"); self.nw2 += 1
        if "pk" in self.opts:
            A(f"v_pk_mul_f32 {v(d,2)}, {v(a,2)}, {v(b,2)} op_sel:[0,0] op_sel_hi:[1,0]")
            A(f"v_pk_fma_f32 {v(d,2)}, {v(a,2)}, {v(b,2)}, {v(d,2)} op_sel:[1,1,0] op_sel_hi:[0,1,1] neg_lo:[1,0,0]")
        else:
            A(f"v_mul_f32 v{d}, v{a}, v{b}\nv_mul_f32 v{d+1}, v{a+1}, v{b}")
            A(f"v_fma_f32 v{d}, -v{a+1}, v{b+1}, v{d}\nv_fmac_f32 v{d+1}, v{a}, v{b+1}")
    def direct(self, d, L):
        A = self.A
        if L != 1:
            A(f"v_mul_f32 v3, {f2h(float(L)):#x}, v16\nv_mul_f32 v7, {f2h(float(L)):#x}, v17")
            A("v_exp_f32 v3, v3\nv_fract_f32 v7, v7")
        else:
            A("v_exp_f32 v3, v16\nv_fract_f32 v7, v17")
        A(f"v_cos_f32 v{d}, v7\nv_sin_f32 v{d+1}, v7")
        A(f"v_mul_f32 v{d}, v3, v{d}\nv_mul_f32 v{d+1}, v3, v{d+1}")
    PK = 64
    def put(self, row, src, neg=False):
        if row & 1 == 0:
            self.prev = src; return
        p = self.prev; n = '-' if neg else ''; PK = self.PK
        self.A(f"v_cvt_pk_bf16_f32 v{PK+(row>>1)}, v{p}, v{src}")
        self.A(f"v_cvt_pk_bf16_f32 v{PK+8+(row>>1)}, {n}v{p+1}, {n}v{src+1}")
    def flush(self, tb, hh):
        PK = self.PK; a = 4 + hh
        self.A(f"ds_write_b128 v{a}, {v(PK+4*hh,4)} offset:{4096*tb+1024*hh}")
        self.A(f"ds_write_b128 v{a}, {v(PK+8+4*hh,4)} offset:{4096*tb+1024*(2+hh)}")
    def chain(self, va, vb, acc, fr):
        A = self.A
        lg = Cnt(A, "lgkmcnt", 15)
        def rd(q):
            o = (q >> 2)*16384 + (q & 3)*256; b = fr + 8*(q % 3)
            for h in range(2): lg.op(f"ds_read_b64_tr_b16 {v(b+2*h,2)}, v{va} offset:{o+2048*h}", q)
            for h in range(2): lg.op(f"ds_read_b64_tr_b16 {v(b+4+2*h,2)}, v{vb} offset:{o+2048*h}", q)
        for q in range(3): rd(q)
        for q in range(8):
            b = fr + 8*(q % 3)
            lg.need(q)
            A(f"v_mfma_f32_16x16x32_bf16 {v(acc,4)}, {v(b,4)}, {v(b+4,4)}, {v(acc,4) if q else '0'}")
            if q + 3 < 8: rd(q+3)
    def tr_addr(self, d):
        A = self.A
        A(f"v_lshrrev_b32 v{d}, 2, v0\nv_lshlrev_b32 v{d}, 4, v{d}\nv_and_b32 v3, 1, v0\nv_lshl_add_u32 v{d}, v3, 3, v{d}")
        A(f"v_bfe_u32 v3, v0, 1, 1\nv_mul_u32_u24 v3, 1152, v3\nv_xor_b32 v{d}, v{d}, v3")

    def consumer(self):
        A = self.A
        ACC = 16
        AF = [64, 76, 88, 100]
        BFR = [112, 120]
        A(".p2align 8")
        A("L_cons:")
        self.role = "c"
        self.entry()
        A("s_sub_u32 s60, s3, 4")
        A("s_and_b32 s52, s60, 1\ns_lshr_b32 s53, s60, 1")
        A(f"v_mov_b32 v9, {L_FLAG}")
        self.map_n(); self.map_m()
        A("v_and_b32 v1, 15, v0\nv_lshrrev_b32 v130, 4, v0")
        A("v_lshlrev_b32 v13, 1, v0")
        A("s_waitcnt lgkmcnt(0)")
        A("s_barrier")
        A("s_mul_i32 s10, s57, 192")
        srd(A, 4, 38, 1376*2)
        A("buffer_load_ushort v64, v13, s[4:7], s10 offen")
        A("buffer_load_ushort v68, v13, s[4:7], s10 offen offset:128")
        for q in range(64, 88):
            if q & 3: A(f"v_mov_b32 v{q}, 0")
        A("v_mov_b32 v3, 0x3f80")
        for k in range(4): A(f"v_cmp_eq_u32 vcc, {k}, v130\ns_nop 1\nv_cndmask_b32 v{72+4*k}, 0, v3, vcc")
        A("v_bfe_u32 v3, v0, 1, 3\nv_xor_b32 v3, v3, v130\nv_lshlrev_b32 v3, 4, v3\nv_lshl_add_u32 v3, v1, 7, v3")
        A("s_lshl_b32 s10, s60, 12")
        A("v_add_u32 v134, s10, v3\nv_xor_b32 v135, 64, v134")
        A("v_bfe_u32 v3, v0, 2, 2\nv_lshl_add_u32 v3, v130, 3, v3\nv_mul_u32_u24 v3, 192, v3")
        A("v_bfe_u32 v8, v0, 4, 1\nv_lshl_add_u32 v3, v8, 5, v3")
        A("v_and_b32 v8, 3, v0\nv_lshl_add_u32 v136, v8, 3, v3\nv_xor_b32 v137, 32, v136")
        A(f"v_add_u32 v4, {XS[0]}, v134\nv_add_u32 v5, {XS[0]}, v135\nv_add_u32 v6, {WSL[0]}, v136\nv_add_u32 v7, {WSL[0]}, v137")
        xs = [XS[s % XD] for s in range(1, 9)]; ws_ = [WSL[s % 4] for s in range(1, 9)]
        A(f"s_mov_b32 s96, {pack8(xs[:4]):#x}\ns_mov_b32 s97, {pack8(xs[4:]):#x}\ns_mov_b32 s98, {pack8(ws_[:4]):#x}\ns_mov_b32 s99, s98")
        A(f"v_and_b32 v11, 1, v0\nv_lshl_add_u32 v11, v11, 2, v9\nv_add_u32 v11, {F_PX}, v11")
        self.tabptr()
        A(f"s_lshl_b32 s94, s60, 2\ns_add_u32 s94, s94, {L_FLAG+F_FREE}\ns_mov_b32 m0, s94\nv_mov_b32 v14, 0")
        srd(A, 72, 50, WS_END)
        A("v_lshlrev_b32 v13, 4, v0")
        A("s_lshl_b32 s10, s56, 2\ns_add_u32 s58, s10, s60")
        A("s_mul_i32 s10, s58, 86\ns_mul_i32 s11, s57, 6\ns_add_u32 s10, s10, s11\ns_lshl_b32 s10, s10, 10")
        A(f"s_add_u32 s76, s10, {WS_H:#x}\ns_add_u32 s77, s76, 4096")
        A("s_cmp_ge_u32 s57, 7\ns_cselect_b32 s10, 100, 0\ns_lshl_b32 s11, s57, 2\ns_add_u32 s10, s10, s11\ns_lshl_b32 s11, s58, 8\ns_add_u32 s10, s10, s11")
        A(f"s_add_u32 s100, s10, {WS_FH:#x}")
        self.map_tb()
        A(f"s_lshl_b32 s10, s59, 1\ns_add_u32 s10, s10, s52\ns_lshl_b32 s10, s10, 1\ns_add_u32 s10, s10, s53\ns_lshl_b32 s10, s10, 7\ns_add_u32 s101, s10, {WS_FH:#x}")
        A("s_load_dword s16, s[50:51], s101 glc")
        A("s_setprio %d" % self.opt("cprio", 3))
        self.dstamp()
        A("s_waitcnt vmcnt(0)")
        for ft in range(6):
            for ts in range(2):
                A(f"v_mfma_f32_16x16x32_bf16 {v(ACC+8*ft+4*ts,4)}, {v(64+4*(ft>>2),4)}, {v(72+4*(ft&3),4)}, 0")
        self.get_tag(9, 2, 61, "L_c_tag")
        def reads(u):
            st, hf = u >> 1, u & 1; out = []
            if hf == 0:
                for ts in range(2): out.append(f"ds_read_b128 {v(BFR[st]+4*ts,4)}, v{4+st} offset:{2048*ts}")
            for i in range(3):
                ft = 3*hf + i
                for h in range(2):
                    out.append(f"ds_read_b64_tr_b16 {v(AF[u]+4*i+2*h,2)}, v{6+(ft&1)} offset:{st*6144+h*768+(ft>>1)*64}")
            return out
        def mfmas(u):
            st, hf = u >> 1, u & 1
            return [f"v_mfma_f32_16x16x32_bf16 {v(ACC+8*(3*hf+i)+4*ts,4)}, {v(AF[u]+4*i,4)}, {v(BFR[st]+4*ts,4)}, {v(ACC+8*(3*hf+i)+4*ts,4)}" for i in range(3) for ts in range(2)]
        def weave(ms, fl):
            n = len(ms); k = 0
            for i, m in enumerate(ms):
                A(m)
                e = (len(fl)*(i+1) + n - 1)//n
                for x in fl[k:e]: A(x)
                k = e
        FLAGRD = "ds_read_b32 v10, v11"
        FREEF = ["s_mov_b64 exec, 1", "global_load_lds_dword v14, s[92:93]", "s_mov_b64 exec, -1"]
        if "g2only" in self.opts:
            A(f"v_mov_b32 v12, 100\nv_lshl_add_u32 v10, v0, 2, v9\ns_mov_b64 exec, 0xff\nds_write_b32 v10, v12 offset:{F_PX}\ns_mov_b64 exec, -1\ns_sleep 64\ns_branch L_c_e1done")
        A("s_mov_b32 s12, 1")
        self.dstamp()
        A("L_c_poll:")
        self.lds_wait_ge(11, 0, "s12", 10, "L_c_p0", sleep=self.opt("zc", 0))
        A("L_c_rd:")
        for r in reads(0) + reads(1): A(r)
        A(".p2align 3")
        A("L_c_loop:")
        A("s_waitcnt lgkmcnt(6)")
        weave(mfmas(0), [FLAGRD] + reads(2) + ["s_add_u32 s12, s12, 1", "s_cmp_eq_u32 s12, 9", "s_cselect_b32 s12, -1, s12"])
        A("s_waitcnt lgkmcnt(8)")
        weave(mfmas(1), reads(3) + ["s_and_b32 s13, s96, 0xff\ns_and_b32 s15, s98, 0xff", "v_cmp_gt_u32 vcc, s12, v10", "s_lshl_b32 s13, s13, 12\ns_lshl_b32 s15, s15, 12",
                                   "v_add_u32 v4, s13, v134", "v_add_u32 v6, s15, v136", "v_add_u32 v7, s15, v137"])
        A("s_cbranch_vccnz L_c_slow")
        A("s_waitcnt lgkmcnt(6)")
        weave(mfmas(2), reads(0) + ["v_add_u32 v5, s13, v135", "v_add_u32 v14, 4, v14", "s_lshr_b64 s[96:97], s[96:97], 8", "s_lshr_b64 s[98:99], s[98:99], 8"])
        A("s_waitcnt lgkmcnt(8)")
        weave(mfmas(3), ["\n".join(FREEF)] + reads(1))
        A("s_branch L_c_loop")
        A("L_c_slow:")
        A("s_waitcnt lgkmcnt(6)")
        ms = mfmas(2)
        A(ms[0]); A("v_add_u32 v5, s13, v135\nv_add_u32 v14, 4, v14"); A(ms[1]); A(ms[2]); A(ms[3])
        A("s_waitcnt lgkmcnt(0)")
        for x in FREEF: A(x)
        A(FLAGRD)
        A(ms[4]); A(ms[5])
        A("s_cmp_eq_u32 s12, -1\ns_cbranch_scc1 L_c_last")
        A("s_lshr_b64 s[96:97], s[96:97], 8\ns_lshr_b64 s[98:99], s[98:99], 8")
        ms = mfmas(3)
        for m in ms[:4]: A(m)
        A("s_waitcnt lgkmcnt(0)\nv_cmp_gt_u32 vcc, s12, v10")
        A(ms[4]); A(ms[5])
        A("s_cbranch_vccz L_c_rd")
        A("s_branch L_c_poll")
        A("L_c_last:")
        for m in ms: A(m)
        self.dstamp()
        A("s_cmp_eq_u32 s57, 15\ns_cbranch_scc1 L_c_gate")
        for blk in range(3):
            if blk == 1: A("s_cmp_eq_u32 s57, 14\ns_cbranch_scc1 L_c_e1done")
            for ts in range(2):
                o = 64 + 8*blk + 4*ts
                regs = [ACC + 8*(2*blk+(q>>2)) + 4*ts + (q&3) for q in range(8)]
                for r0 in regs: A(f"v_mul_f32 v{r0}, v{r0}, abs(v{r0})")
                for q in range(4): A(f"v_cvt_pk_bf16_f32 v{o+q}, v{regs[2*q]}, v{regs[2*q+1]}")
                for q in range(4): A(f"v_pk_max_i16 v{o+q}, v{o+q}, 0")
                idx = 2*blk + ts
                A(f"buffer_store_dwordx4 {v(o,4)}, v13, s[72:75], s{76 if idx < 4 else 77} offen offset:{(idx&3)*1024} sc1")
        A("s_branch L_c_e1done")
        A("L_c_gate:")
        for ts in range(2):
            A(f"v_add_f32 v{64+ts}, v{ACC+4*ts}, v{ACC+8+4*ts+1}")
            A(f"v_mul_f32 v{64+ts}, {LOG2E ^ 0x80000000:#x}, v{64+ts}")
        A("v_exp_f32 v64, v64\nv_exp_f32 v65, v65\ns_nop 0\nv_add_f32 v64, 1.0, v64\nv_add_f32 v65, 1.0, v65\nv_rcp_f32 v64, v64\nv_rcp_f32 v65, v65")
        A("s_lshr_b32 s10, s58, 1\ns_and_b32 s11, s58, 1\ns_lshl_b32 s12, s10, 7\ns_lshl_b32 s13, s11, 2\ns_add_u32 s12, s12, s13")
        A(f"s_add_u32 s100, s12, {WS_FG:#x}\ns_lshl_b32 s10, s12, 1\ns_add_u32 s10, s10, {WS_G:#x}")
        A("s_mov_b64 exec, 0xffff")
        A("buffer_store_dwordx2 v[64:65], v13, s[72:75], s10 offen sc1")
        A("s_mov_b64 exec, -1")
        A("L_c_e1done:")
        A("s_waitcnt lgkmcnt(0)")
        A("s_setprio %d" % self.opt("c2p", 1))
        self.dstamp()
        self.gemm2()

    def gemm2(self):
        A = self.A
        AC2 = 16
        NH = self.opt("nh", 16); HB = 48
        WF = [HB+4*NH+8*i for i in range(4)]
        AX = WF[3] + 8
        assert AX + 16 <= 167
        AH, MI, FRA, FRV, RW, RR, RE, RO, OW, OR_, OG, PB = AX, AX+4, AX+6, AX+7, AX+8, AX+9, AX+10, AX+11, AX+12, AX+13, AX+14, AX+15
        A("v_lshrrev_b32 v2, 2, v0\nv_lshlrev_b32 v2, 7, v2")
        A("v_bfe_u32 v3, v0, 3, 2\ns_lshl_b32 s10, s53, 1\nv_xor_b32 v3, s10, v3\nv_lshl_add_u32 v2, v3, 5, v2")
        A("v_and_b32 v3, 3, v0\nv_lshl_add_u32 v2, v3, 3, v2")
        A(f"v_mov_b32 v{MI}, v2\nv_xor_b32 v{MI+1}, 32, v2")
        A("s_mul_i32 s10, s53, 12288")
        A("v_add_u32 v4, s10, v2")
        for k in range(1, 4): A(f"v_xor_b32 v{4+k}, {32*k}, v4")
        for k in range(4): A(f"v_add_u32 v{AH+k}, {52*KB}, v{4+k}")
        A("s_lshl_b32 s10, s59, 1\ns_add_u32 s10, s10, s52\ns_mul_i32 s10, s10, 86")
        A("s_add_u32 s11, s10, 84\ns_lshl_b32 s11, s11, 10")
        A(f"s_add_u32 s76, s11, {WS_H:#x}")
        A("s_mul_i32 s11, s53, 42\ns_add_u32 s10, s10, s11\ns_lshl_b32 s10, s10, 10")
        A(f"s_add_u32 s77, s10, {WS_H:#x}")
        A(f"v_and_b32 v{FRA}, 3, v0\nv_lshl_add_u32 v{FRA}, v{FRA}, 2, v9\nv_mov_b32 v{PB}, v11")
        A(f"s_lshl_b32 s10, s53, 2\ns_add_u32 s10, s10, {L_FLAG+F_PX}\nv_mov_b32 v11, s10")
        A("v_mov_b32 v8, s94\nv_mov_b32 v12, 8")
        self.rot(10)
        A(f"s_mul_i32 s10, s10, 6144\ns_add_u32 s10, s10, s77\ns_add_u32 s11, s77, {7*6144}")
        for g in range(7):
            A(f"s_mov_b32 s{78+2*g}, s10\ns_add_u32 s{79+2*g}, s10, 4096")
            if g < 6: A("s_add_u32 s10, s10, 6144\ns_cmp_eq_u32 s10, s11\ns_cselect_b32 s10, s77, s10")
        A("s_lshl_b32 s10, s60, 12")
        A(f"s_add_u32 s11, s10, {L_RED}\nv_add_u32 v{RW}, s11, v13")
        A(f"s_xor_b32 s11, s10, 8192\ns_add_u32 s11, s11, {L_RED}\nv_add_u32 v{RR}, s11, v13")
        A(f"s_lshl_b32 s11, s53, 13\ns_lshl_b32 s12, s52, 11\ns_add_u32 s11, s11, s12\ns_add_u32 s11, s11, {L_KF}\nv_add_u32 v{RE}, s11, v13")
        A(f"s_lshl_b32 s11, s52, 3\ns_add_u32 s11, s11, {L_OMG}\nv_lshl_add_u32 v{RO}, v1, 4, s11")
        A("s_mul_i32 s10, s60, 2560")
        A(f"s_add_u32 s10, s10, {L_OT}")
        A(f"v_mul_u32_u24 v2, 80, v1\nv_lshrrev_b32 v3, 4, v0\nv_lshl_add_u32 v2, v3, 3, v2\nv_add_u32 v{OW}, s10, v2")
        A(f"v_lshrrev_b32 v3, 2, v0\nv_mul_u32_u24 v2, 80, v3\nv_and_b32 v10, 3, v0\nv_lshl_add_u32 v2, v10, 4, v2\nv_add_u32 v{OR_}, s10, v2")
        A(f"v_lshlrev_b32 v3, 10, v3\nv_lshl_add_u32 v{OG}, v10, 4, v3")
        srd(A, 4, 46, 2048*1024)
        A("s_lshl_b32 s10, s59, 1\ns_add_u32 s10, s10, s52\ns_lshl_b32 s10, s10, 15")
        A("s_lshl_b32 s11, s55, 7\ns_add_u32 s10, s10, s11\ns_lshl_b32 s11, s53, 6\ns_add_u32 s96, s10, s11")
        A("s_add_u32 s97, s96, 16384")
        A("s_waitcnt vmcnt(0)")
        self.flag_set("s100")
        A("s_cmp_lg_u32 s57, 14\ns_cbranch_scc1 L_g2_f1\ns_sub_u32 s100, s100, 128\ns_mov_b32 s8, s62\ns_atomic_swap s8, s[50:51], s100\nL_g2_f1:")
        self.dstamp()
        if "g2only" not in self.opts: self.flag_wait(8, "s101", "L_g2_w", sleep=self.opt("hsl", 0))
        self.dstamp()
        hfl = "" if "hlp" in self.opts else ("nt" if "hnt" in self.opts else ("sc0 sc1" if "hsys" in self.opts else "sc1"))
        def hload(f):
            r = HB + 4*(f % NH)
            if f >= 42: return f"buffer_load_dwordx4 {v(r,4)}, v13, s[72:75], s76 offen offset:{(f-42)*1024} {hfl}"
            g, s_ = divmod(f, 6)
            return f"buffer_load_dwordx4 {v(r,4)}, v13, s[72:75], s{78+2*g+(s_>>2)} offen offset:{(s_&3)*1024} {hfl}"
        vm = Cnt(A, "vmcnt", 63); lg = Cnt(A, "lgkmcnt", 15)
        N0 = self.opt("hpre", 10)
        def slot_of(q): return 0 if q == 42 else 1 - (q & 1)
        def wreads(q):
            buf = WF[q & 3]; o = []
            for a_ in range(2):
                for h in range(2):
                    if q == 42: ar, off = MI+a_, L_MINI + h*2048
                    else:
                        b, s_ = divmod(q, 6); base = BLK[b % 5]; k = 2*slot_of(q) + a_
                        hi = base >= 52*KB
                        ar = (AH if hi else 4) + k; off = base - (52*KB if hi else 0) + (s_ >> 1)*4096 + h*2048
                    o.append(f"ds_read_b64_tr_b16 {v(buf+4*a_+2*h,2)}, v{ar} offset:{off}")
            return o
        progs = []
        def progcheck(b):
            Lp, Lr = A.lab("L_g2_pp"), A.lab("L_g2_pr")
            A(f"s_cbranch_vccnz {Lp}")
            A(f"{Lr}:")
            progs.append((Lp, Lr, 9+b))
        for f in range(4): vm.op(hload(f), f)
        self.lds_wait_ge(PB, 0, 9, 10, "L_g2_p0")
        for q in range(3):
            for r in wreads(q): lg.op(r, ("w", q))
        for f in range(4, N0): vm.op(hload(f), f)
        nxt = N0
        for q in range(43):
            g, s_ = divmod(q, 6)
            buf = WF[q & 3]; f0 = q & ~1; sl = slot_of(q)
            def mm(a_, ts):
                acc = v(AC2+16*sl+8*a_+4*ts, 4)
                A(f"v_mfma_f32_16x16x32_bf16 {acc}, {v(buf+4*a_,4)}, {v(HB+4*((f0+ts) % NH),4)}, {acc if q >= 2 else '0'}")
            if q & 1 == 0: vm.need(f0+1)
            if q == 0 or ("gfine" in self.opts and q % 6 == 0): self.dstamp()
            lg.need(("w", q))
            rs = wreads(q+3) if q+3 <= 42 else []
            mm(0, 0)
            if s_ == 5 and g < 4 and "g2only" not in self.opts:
                A("v_add_u32 v12, 1, v12\ns_mov_b64 exec, 1")
                lg.op("ds_write_b32 v8, v12")
                A("s_mov_b64 exec, -1")
            if s_ == 0 and g < 6: lg.op("ds_read_b32 v10, v11", "flag")
            if q == 38: lg.op(f"ds_read_b32 v{FRV}, v{FRA} offset:{F_FREE}", "free")
            if s_ == 2 and g < 6:
                lg.need("flag"); A(f"v_cmp_gt_u32 vcc, {10+g}, v10")
            if s_ == 3 and g < 6: progcheck(g+1)
            mm(0, 1)
            for r in rs[:2]: lg.op(r, ("w", q+3))
            mm(1, 0)
            for r in rs[2:]: lg.op(r, ("w", q+3))
            mm(1, 1)
            if nxt <= 43 and nxt - f0 < NH: vm.op(hload(nxt), nxt); nxt += 1
            if nxt <= 43 and nxt - f0 < NH and q < NH - N0: vm.op(hload(nxt), nxt); nxt += 1
            if q == 40:
                lg.need("free"); A(f"v_cmp_gt_u32 vcc, 12, v{FRV}")
            if q == 41:
                A("s_cbranch_vccz L_g2_red")
                self.lds_wait_ge(FRA, F_FREE, 12, FRV, "L_g2_fw")
                A("L_g2_red:")
                A("s_nop 2")
                for k in range(4): lg.op(f"ds_write_b128 v{RW}, {v(AC2+16+4*k,4)} offset:{k*1024}")
        assert nxt == 44
        self.dstamp()
        A("s_waitcnt lgkmcnt(0)")
        A("s_barrier")
        self.dstamp()
        A(f"ds_read_b64 v[10:11], v{RO}")
        for q in range(4):
            A(f"ds_read_b128 {v(48+4*q,4)}, v{RR} offset:{q*1024}")
            A(f"ds_read_b128 {v(64+4*q,4)}, v{RE} offset:{(q>>1)*4096+(q&1)*1024}")
        for q in range(4):
            A(f"s_waitcnt lgkmcnt({6-q})")
            for r in range(0, 4, 2):
                A(f"v_pk_add_f32 {v(AC2+4*q+r,2)}, {v(AC2+4*q+r,2)}, {v(48+4*q+r,2)}")
            for r in range(0, 4, 2):
                A(f"v_pk_fma_f32 {v(64+4*q+r,2)}, {v(AC2+4*q+r,2)}, v[10:11], {v(64+4*q+r,2)} op_sel:[0,{q&1},0] op_sel_hi:[1,{q&1},1]")
            A(f"v_cvt_pk_bf16_f32 v{80+2*q}, v{64+4*q}, v{64+4*q+1}")
            A(f"v_cvt_pk_bf16_f32 v{81+2*q}, v{64+4*q+2}, v{64+4*q+3}")
            A(f"ds_write_b64 v{OW}, {v(80+2*q,2)} offset:{32*(q>>1)+1280*(q&1)}")
        A(f"ds_read_b128 v[88:91], v{OR_}\nds_read_b128 v[92:95], v{OR_} offset:1280")
        ofl = "" if "oplain" in self.opts else "sc1"
        A("s_waitcnt lgkmcnt(1)")
        A(f"buffer_store_dwordx4 v[88:91], v{OG}, s[4:7], s96 offen {ofl}")
        A("s_waitcnt lgkmcnt(0)")
        A(f"buffer_store_dwordx4 v[92:95], v{OG}, s[4:7], s97 offen {ofl}")
        self.dstamp()
        if self.ts:
            A("s_waitcnt vmcnt(0)")
            self.dstamp()
        if "rt" in self.opts:
            A("s_waitcnt vmcnt(0)\ns_memrealtime s[64:65]\ns_lshl_b32 s8, s2, 2\ns_add_u32 s8, s8, s60\ns_lshl_b32 s8, s8, 3")
            A(f"s_add_u32 s8, s8, {WS_TS:#x}\nv_mov_b32 v4, s8\ns_waitcnt lgkmcnt(0)")
            A("v_mov_b32 v2, s68\nv_mov_b32 v3, s64\ns_mov_b64 exec, 1\nglobal_store_dwordx2 v4, v[2:3], s[50:51]")
        self.end()
        for Lp, Lr, n in progs:
            A(f"{Lp}:")
            self.lds_wait_ge(11, 0, n, 10, "L_g2_pw")
            A(f"s_branch {Lr}")

    def sbar(self, k):
        A = self.A
        A("s_waitcnt lgkmcnt(0)")
        A(f"s_mov_b64 exec, 1\nds_add_u32 v9, v8 offset:{F_SB}\ns_mov_b64 exec, -1")
        self.lds_wait_ge(9, F_SB, 4*k, 10, "L_sb")

    def ssm(self):
        A = self.A
        A(".p2align 8")
        A("L_ssm:")
        self.role = "s"
        self.entry()
        A("s_sub_u32 s60, s3, 8")
        A("s_and_b32 s52, s60, 1\ns_lshr_b32 s53, s60, 1")
        A("s_lshl_b32 s13, s2, 2")
        self.pf_setup()
        A("s_load_dword s14, s[30:31], s13\ns_load_dword s15, s[32:33], s13")
        A("s_barrier")
        self.pf([4])
        if "stop0" in self.opts or "g2only" in self.opts: A("s_endpgm")
        A("s_setprio %d" % self.opt("sprio", 1))
        self.map_tb()
        A(f"v_mov_b32 v9, {L_FLAG}\nv_mov_b32 v8, 1")
        srd(A, 72, 50, WS_END)
        A("v_and_b32 v123, 15, v0\nv_lshrrev_b32 v124, 4, v0\nv_lshlrev_b32 v13, 4, v0")
        A("s_lshl_b32 s10, s55, 7\ns_lshl_b32 s9, s60, 5\ns_add_u32 s10, s10, s9\nv_lshl_add_u32 v3, v124, 3, s10")
        A("global_load_dwordx2 v[98:99], v3, s[42:43]")
        A(f"s_mul_i32 s12, s52, 4608\ns_add_u32 s12, s12, {L_UL}\nv_lshl_add_u32 v12, v0, 3, s12\nv_mov_b64 v[2:3], 0")
        A("s_mov_b32 exec_hi, 0x0fffffff\nds_write_b64 v12, v[2:3]\ns_mov_b64 exec, -1")
        SEL = 158
        A("v_and_b32 v1, 31, v0\nv_lshrrev_b32 v2, 5, v0\nv_lshlrev_b32 v2, 4, v2\nv_sub_u32 v1, v1, v2")
        A("v_and_b32 v2, 1, v1\nv_lshlrev_b32 v2, 4, v2\nv_mov_b32 v3, 0x3f80\nv_lshlrev_b32 v2, v2, v3\nv_ashrrev_i32 v1, 1, v1")
        for j in range(8):
            A(f"v_cmp_eq_u32 vcc, {j}, v1\ns_nop 1\nv_cndmask_b32 v{SEL+j}, 0, v2, vcc")
        A(f"s_lshl_b32 s12, s52, 8\ns_lshl_b32 s13, s53, 7\ns_add_u32 s12, s12, s13\ns_add_u32 s12, s12, {L_PAR}")
        A("v_lshl_add_u32 v6, v0, 1, s12")
        A(f"s_mul_i32 s11, s52, 5632\ns_mul_i32 s12, s53, 2816\ns_add_u32 s57, s11, s12\ns_add_u32 s57, s57, {L_KP}\ns_add_u32 s56, s11, {L_KP}")
        A("v_lshlrev_b32 v3, 2, v124\nv_lshl_add_u32 v120, v123, 4, v3")
        A("v_lshl_add_u32 v3, v123, 3, v3\nv_lshlrev_b32 v2, 6, v124\nv_lshl_add_u32 v4, v123, 2, v2")
        A("v_cmp_gt_u32 vcc, 2, v124")
        A("v_lshl_add_u32 v122, v123, 1, v2\nv_add_u32 v122, 512, v122")
        A("v_cndmask_b32 v121, v4, v3, vcc\nv_add_u32 v121, 256, v121\nv_mov_b32 v125, s57")
        for r_ in (120, 121, 122): A(f"v_lshrrev_b32 v2, 5, v{r_}\nv_add_u32 v{r_}, v{r_}, v2\nv_lshl_add_u32 v{r_}, v{r_}, 2, s57")
        A(f"s_mul_i32 s11, s52, {KCH}\ns_add_u32 s11, s11, {L_KF}\ns_lshl_b32 s12, s53, 10\ns_add_u32 s12, s12, s11\ns_add_u32 s12, s12, 64")
        A("v_lshl_add_u32 v12, v0, 4, s12")
        A("v_mul_u32_u24 v3, 2240, v124\nv_lshl_add_u32 v3, v123, 2, v3\ns_mul_i32 s12, s53, 2112\ns_add_u32 s12, s12, s11\nv_add_u32 v3, s12, v3\nv_lshl_add_u32 v11, v0, 2, s11\nv_mov_b32 v2, 0")
        A("ds_write_b32 v3, v2\ns_mov_b64 exec, 0xffff\nds_write_b32 v11, v2 offset:9216\ns_mov_b64 exec, -1")
        A("v_mul_u32_u24 v119, 2240, v0\nv_add_u32 v119, s11, v119")
        A(f"s_mul_i32 s13, s52, 4608\ns_add_u32 s13, s13, {L_UL}")
        A("v_lshlrev_b32 v3, 4, v124\nv_lshl_add_u32 v3, v123, 5, v3\nv_add_u32 v14, s13, v3")
        A("v_sub_u32 v3, 15, v123\nv_and_b32 v15, 3, v3\nv_mul_u32_u24 v15, 2240, v15\nv_lshrrev_b32 v3, 2, v3\nv_lshl_add_u32 v3, v124, 1, v3\nv_lshl_add_u32 v15, v3, 3, v15\nv_add_u32 v15, s11, v15")
        A("v_lshlrev_b32 v3, 2, v124\nv_sub_u32 v3, v3, v123\nv_add_u32 v3, 2255, v3\nv_lshl_add_u32 v118, v3, 2, s11")
        A(f"v_and_b32 v3, 7, v0\nv_lshl_add_u32 v62, v3, 2, v9")
        A("v_lshlrev_b32 v3, 2, v3\nv_mov_b32 v63, %s\nv_lshrrev_b32 v63, v3, v63\nv_and_b32 v63, 15, v63" % (hex(0x11*self.opt("lpa", 0)) if EARLY else "0x66660088"))
        A(f"v_and_b32 v3, 1, v0\nv_mul_u32_u24 v96, {F_UD+4}, v3\nv_add_u32 v96, v96, v9\nv_lshlrev_b32 v3, 1, v3\nv_sub_u32 v97, 4, v3")
        GA = 100
        A("s_lshl_b32 s12, s53, 9\ns_sub_u32 s12, 1023, s12\nv_lshlrev_b32 v1, 3, v0\nv_sub_u32 v1, s12, v1\nv_cvt_f32_i32 v4, v1")
        for i in range(11):
            A(f"v_subrev_u32 v2, {i}, v1")
            A(f"v_subrev_f32 v3, {f2h(float(i)):#x}, v4")
            A("v_cvt_pk_bf16_f32 v3, v3, 0")
            A("v_min_i32 v2, 128, v2")
            A("v_subrev_u32 v3, 0x4280, v3")
            A("v_max_i32 v3, v3, v2")
            if i >= 8: A("v_min_u32 v3, 660, v3")
            A("v_lshrrev_b32 v2, 5, v3\nv_add_u32 v3, v3, v2")
            A(f"v_lshl_add_u32 v{GA+i}, v3, 2, s56")
        A(f"v_lshlrev_b32 v1, 1, v0\nv_sub_u32 v{GA+11}, 639, v1\nv_sub_u32 v{GA+12}, 640, v1")
        for r_ in (GA+11, GA+12): A(f"v_lshrrev_b32 v3, 5, v{r_}\nv_add_u32 v{r_}, v{r_}, v3\nv_lshl_add_u32 v{r_}, v{r_}, 2, s56")
        self.dstamp()
        A("s_mul_i32 s10, s2, 5504\ns_mul_i32 s11, s60, 1408\ns_min_u32 s11, s11, 4096\ns_add_u32 s10, s10, s11\ns_add_u32 s34, s40, s10\ns_addc_u32 s35, s41, 0")
        A("s_lshl_b32 s10, s55, 3\ns_lshr_b32 s11, s59, 1\ns_xor_b32 s11, s11, s59\ns_and_b32 s11, s11, 4\ns_add_u32 s10, s10, s11\ns_add_u32 s10, s10, s60\ns_lshl_b32 s10, s10, 7")
        A(f"s_add_u32 s100, s10, {WS_FA:#x}\ns_lshl_b32 s10, s59, 7\ns_add_u32 s101, s10, {WS_FG:#x}")
        self.lds_wait_ge(9, F_PAR, 1, 10, "L_s_par", sleep=self.opt("zs", 2))
        for i in range(6): A(f"ds_read_u16 v{16+i}, v6 offset:{PARO[i]}")
        A("s_lshl_b32 s11, s52, 4\ns_lshr_b32 s14, s14, s11\ns_lshl_b32 s14, s14, 16\ns_lshr_b32 s15, s15, s11\ns_lshl_b32 s15, s15, 16")
        A(f"v_mov_b32 v1, {LOG2E:#x}\nv_mul_f32 v2, s14, v1\nv_exp_f32 v2, v2")
        A("s_waitcnt lgkmcnt(0)")
        self.dstamp()
        for i in range(6): A(f"v_lshlrev_b32 v{16+i}, 16, v{16+i}")
        A("v_cvt_pk_bf16_f32 v2, v2, v2\nv_lshlrev_b32 v2, 16, v2")
        A("v_mul_f32 v16, v2, v16\nv_mul_f32 v17, v2, v17\nv_mul_f32 v18, v2, v18\nv_mul_f32 v19, v2, v19")
        A(f"v_mul_f32 v16, v1, v16\nv_mul_f32 v17, {INV2PI:#x}, v17")
        A("v_mul_f32 v20, 0x1f800000, v20\nv_mul_f32 v21, 0x1f800000, v21")
        E1, E16, E256, PA, PB, ONE, BS = 22, 24, 26, 28, 30, 4, [46, 48]
        PK, BF, TRE, TIM, KA = self.PK, 80, 126, 142, 50
        def ep(k): return E1 if k == 1 else (32 + k - 2 if k % 2 == 0 else PA)
        def tr(dre, hh):
            for d, p in ((dre, PK), (TIM, PK+8)):
                A(f"v_mfma_f32_32x32x16_bf16 {v(d,16)}, {v(p+4*hh,4)}, {v(SEL+4*hh,4)}, {v(d,16) if hh else '0'}")
        def repack(dre):
            for q in range(4):
                A(f"v_cvt_pk_bf16_f32 v{dre+4*q}, v{dre+4*q}, v{dre+4*q+1}\nv_cvt_pk_bf16_f32 v{dre+4*q+1}, v{dre+4*q+2}, v{dre+4*q+3}")
            for q in range(4):
                A(f"v_cvt_pk_bf16_f32 v{dre+4*q+2}, v{TIM+4*q}, v{TIM+4*q+1}\nv_cvt_pk_bf16_f32 v{dre+4*q+3}, v{TIM+4*q+2}, v{TIM+4*q+3}")
        def kmf(k):
            for q in range(4):
                A(f"v_mfma_f32_16x16x32_bf16 {v(KA+4*k,4)}, {v(TRE+4*q,4)}, {v(BF+4*q,4)}, {v(KA+4*k,4) if q else '0'}")
        self.direct(E16, 16)
        self.cmul(PA, 20, 18)
        cur, nxt = PA, PB
        for b in range(16):
            self.put(b, cur, neg=True)
            if b < 15:
                self.cmul(nxt, cur, E16); cur, nxt = nxt, cur
            if b == 7: tr(BF, 0)
        self.direct(E1, 1)
        tr(BF, 1)
        if "nowarm" not in self.opts: A("s_load_dword s17, s[50:51], s101 glc")
        A(f"v_mov_b32 v{ONE}, 1.0\nv_mov_b32 v{ONE+1}, 0")
        self.put(0, ONE); self.put(1, E1)
        for k in range(2, 16):
            self.cmul(ep(k), ep(k-1), E1); self.put(k, ep(k))
            if k == 7: repack(BF)
            if k == 8: tr(TRE, 0)
        self.direct(E256, 256)
        tr(TRE, 1)
        self.put(0, E256)
        for r in range(1, 8):
            self.cmul(PA if r & 1 else PB, E256, ep(2*r)); self.put(r, PA if r & 1 else PB)
        repack(TRE)
        self.cmul(BS[0], E256, E256)
        kmf(0)
        tr(TRE, 0)
        for a_ in range(2):
            self.put(8+4*a_, BS[a_])
            for r in range(1, 4):
                self.cmul(PA if r & 1 else PB, BS[a_], ep(4*r)); self.put(8+4*a_+r, PA if r & 1 else PB)
            self.cmul(BS[1-a_], BS[a_], E256)
        tr(TRE, 1)
        cur = 0
        for a_ in range(4):
            self.put(2*a_, BS[cur])
            self.cmul(PA, BS[cur], ep(8)); self.put(2*a_+1, PA)
            self.cmul(BS[1-cur], BS[cur], E256); cur = 1-cur
        repack(TRE)
        self.put(8, BS[cur]); self.put(9, BS[cur])
        kmf(1)
        tr(TRE, 0); tr(TRE, 1)
        self.get_tag(9, 2, 61, "L_s_tag")
        A("v_mov_b32 v1, v123\nv_mov_b32 v2, v124\nv_mov_b32 v24, v15\nv_mov_b32 v21, v118\ns_nop 1")
        repack(TRE)
        A("s_cmp_eq_u32 s53, 0\ns_cselect_b32 s15, s15, 0")
        kmf(2)
        A("v_mov_b32 v6, 0\nv_mov_b32 v7, 0")
        A("v_writelane_b32 v6, s15, 0")
        A(f"v_fmac_f32 v{KA}, 0x1f800000, v6")
        A("s_waitcnt vmcnt(0)\nv_mov_b32 v22, v98\nv_mov_b32 v23, v99")
        self.dstamp()
        A("v_lshlrev_b32 v3, 3, v2\nv_sub_u32 v3, v1, v3\nv_mov_b32 v16, 0x3f80\nv_mov_b32 v17, 0x3f800000")
        for bx, (c0, w_) in enumerate(((16-5, 7), (24-12, 9))):
            for d_ in range(4):
                A(f"v_add_u32 v18, {c0-2*d_}, v3\nv_add_u32 v19, {c0-2*d_-1}, v3\nv_cmp_gt_u32 vcc, {w_}, v18\nv_cmp_gt_u32 s[10:11], {w_}, v19\ns_nop 0")
                A(f"v_cndmask_b32 v18, 0, v16, vcc\nv_cndmask_b32 v19, 0, v17, s[10:11]\nv_or_b32 v{156+4*bx+d_}, v18, v19")
        A(f"s_lshl_b32 s10, s2, 13\ns_lshl_b32 s11, s52, 12\ns_add_u32 s10, s10, s11\ns_add_u32 s54, s10, {WS_A:#x}")
        A("v_and_b32 v3, 7, v0\nv_lshlrev_b32 v6, 4, v3\nv_lshl_add_u32 v6, v2, 7, v6\nv_bfe_u32 v4, v0, 3, 1\nv_lshl_add_u32 v6, v4, 9, v6")
        A(f"s_and_b32 s11, s62, 1\ns_sub_u32 s11, 0, s11\ns_xor_b32 s57, s11, {TM:#x}\ns_mov_b32 s56, 0xbfffbfff")
        A("v_lshrrev_b32 v3, v3, s57\nv_and_b32 v3, 1, v3\nv_mul_u32_u24 v3, 0x4000, v3\nv_lshl_or_b32 v15, v3, 16, v3")
        A(f"s_lshl_b32 s58, s60, 12\ns_add_u32 s58, s58, {L_KF}")
        KX = 32
        GV = 126
        A("s_setprio %d" % self.opt("slp", 3))
        self.lds_wait_ge(62, F_PX, "v63", 10, "L_s_lp", sleep=self.opt("zs", 2))
        self.dstamp()
        for k_ in range(2):
            A(f"ds_write2_b32 v{120+k_}, v{KA+4*k_}, v{KA+4*k_+1} offset0:0 offset1:1\nds_write2_b32 v{120+k_}, v{KA+4*k_+2}, v{KA+4*k_+3} offset0:2 offset1:3")
        A(f"s_mov_b32 exec_hi, 1\nds_write2_b32 v122, v{KA+8}, v{KA+9} offset0:0 offset1:1")
        A(f"s_mov_b32 exec_hi, 0\nds_write2_b32 v122, v{KA+10}, v{KA+11} offset0:33 offset1:34")
        A(f"s_mov_b64 exec, 1\nds_write_b32 v125, v7 offset:{680*4}\nds_add_u32 v9, v8 offset:{F_KS}")
        A("s_mov_b64 exec, -1")
        if "fine" in self.opts: self.dstamp()
        self.lds_wait_ge(9, F_KS, 4, 10, "L_s_ks")
        if "fine" in self.opts: self.dstamp()
        for i in range(13): A(f"ds_read2st64_b32 {v(GV+2*i,2)}, v{GA+i} offset0:0 offset1:11")
        for i in range(13):
            if i in (0, 4, 9): A(f"s_waitcnt lgkmcnt({(9, 4, 0)[(0, 4, 9).index(i)]})")
            A(f"v_add_f32 v{GV+2*i}, v{GV+2*i}, v{GV+2*i+1}")
        for c_ in range(4):
            for i in range(4): A(f"v_cvt_pk_bf16_f32 v{KX+4*c_+i}, v{GV+2*(c_+2*i)}, v{GV+2*(c_+2*i+1)}")
            A(f"ds_write_b128 v12, {v(KX+4*c_,4)} offset:{2240*c_}")
        A("s_cmp_eq_u32 s53, 0\ns_cbranch_scc1 L_s_g0")
        A(f"v_cvt_pk_bf16_f32 v48, v{GV+22}, v{GV+24}")
        A("ds_write_b32 v11, v48 offset:8960")
        A("s_branch L_s_gj")
        A("L_s_g0:")
        A(f"v_readfirstlane_b32 s10, v{KX}\nv_readfirstlane_b32 s11, v{KX+4}\ns_nop 0\ns_and_b32 s12, s10, 0xffff0000")
        for i in range(4): A(f"v_mov_b32 v{48+i}, s10")
        A("v_writelane_b32 v48, 0, 0\nv_writelane_b32 v48, 0, 1\nv_writelane_b32 v48, s12, 2\nv_writelane_b32 v49, s12, 0\nv_writelane_b32 v51, s11, 3")
        A("s_mov_b64 exec, 15\nds_write_b128 v119, v[48:51] offset:48\ns_mov_b64 exec, -1")
        A("L_s_gj:")
        if "fine" in self.opts: self.dstamp()
        A(f"s_mov_b64 exec, 1\nds_add_u32 v9, v8 offset:{F_SB}\ns_mov_b64 exec, -1")
        self.lds_wait_ge(96, F_SB, "v97", 10, "L_sb", sleep=(1 if EARLY else 0))
        if self.opt("cvg", 0): self.lds_wait_ge(9, F_PW, self.opt("cvg", 0), 10, "L_s_cg", sleep=1)
        A("s_setprio %d" % self.opt("scv", 2))
        self.dstamp()
        if "nocv" in self.opts: A("s_endpgm")
        def conv(hf):
            lg = Cnt(A, "lgkmcnt", 15)
            tiles = [0, 1, 2, 3, 4] if hf == 0 else [5, 6, 7]
            us = list(range(0, 5)) if hf == 0 else list(range(2, 8))
            acc = {0: 28, 1: 32, 2: 36, 3: 40, 4: 44} if hf == 0 else {5: 28, 6: 32, 7: 16}
            r0 = 48 if hf == 0 else 36
            sz = 16 + 4*len(us)
            kreg = lambda rho, sg: r0 + sz*(rho & 1) + 4*sg
            ureg = lambda rho, T: r0 + sz*(rho & 1) + 16 + 4*us.index(T)
            X = r0 + 2*sz
            taus = [0] if hf == 0 else [0, 1, 2, 3]
            nt = len(taus)
            T0, U0, T1, U9 = X, X+4, X+4+4*nt, X+8+4*nt
            assert U9 + 4*nt <= 156
            def kr(dst, s_): return [f"ds_read_b64 {v(dst+2*h,2)}, v24 offset:{64*(32-s_)+8*h}" for h in range(2)]
            def ur(dst, off): return [f"ds_read_b128 {v(dst,4)}, v14 offset:{off}"]
            prog = []; reads = []
            started = set()
            def M(d, a_, b_, needs, fresh=False):
                z = fresh or (d not in started); started.add(d)
                prog.append((f"v_mfma_f32_16x16x32_bf16 {v(d,4)}, {v(a_,4)}, {v(b_,4)}, {'0' if z else v(d,4)}", needs))
            pstart = {}
            for rho in range(8):
                pstart[rho] = len(prog)
                e = pstart[rho-1] if rho >= 1 else 0
                seen = set()
                for sg in range(4):
                    for T in tiles:
                        if T < sg: continue
                        for tag, tx in ((("k", rho, sg), kr(kreg(rho, sg), 8*sg+rho)), (("u", rho, T-sg), ur(ureg(rho, T-sg), 64*(7-rho)+512*(T-sg)))):
                            if tag not in seen:
                                seen.add(tag); reads.append((tag, tx, e))
                        M(acc[T], ureg(rho, T-sg), kreg(rho, sg), [("k", rho, sg), ("u", rho, T-sg)])
                if rho == 1:
                    reads.append(("k32", kr(T1, 32), 0))
                    for t in taus: reads.append((("x", t), ur(U0+4*t, 448+512*t) + ur(U9+4*t, 432+512*t), 0))
                    for T in tiles:
                        if T >= 4: M(acc[T], U0+4*(T-4), T1, ["k32", ("x", T-4)])
                    for t in taus:
                        M(T0+4*t, U0+4*t, 156, [("x", t)], True); M(T1+4*t, U9+4*t, 160, [], True)
                if rho == 2:
                    for t in taus:
                        prog.append(("\n".join(f"v_cvt_pk_bf16_f32 v{T0+4*t+r}, v{T0+4*t+r}, v{T1+4*t+r}" for r in range(4)), []))
                    cvt_end = len(prog)
                if rho == 4:
                    for dl in range(nt):
                        reads.append((("a", dl), [f"ds_read2_b32 {v(U9+4*dl+2*h,2)}, v21 offset0:{16*(3-dl)+2*h} offset1:{16*(3-dl)+2*h+1}" for h in range(2)], cvt_end))
                    for T in tiles:
                        for t in taus:
                            if T-4-t >= 0: M(acc[T], U9+4*(T-4-t), T0+4*t, [("a", T-4-t)])
            flat = [(tag if k == len(tx)-1 else None, t, e) for tag, tx, e in reads for k, t in enumerate(tx)]
            ri = 0
            def issue(i, n):
                nonlocal ri
                while n > 0 and ri < len(flat) and flat[ri][2] <= i and len(lg.q) < 15:
                    lg.op(flat[ri][1], flat[ri][0]); ri += 1; n -= 1
            issue(0, 15)
            for i, (text, needs) in enumerate(prog):
                for tg in needs:
                    while tg not in lg.issued:
                        if len(lg.q) >= 15:
                            A("s_waitcnt lgkmcnt(11)"); lg.q = lg.q[-11:]
                        assert flat[ri][2] <= i
                        issue(i, 1)
                if any(tg in lg.q for tg in needs):
                    cand = [tg for tg in needs if tg in lg.q]
                    if i > 0: cand += [tg for x in prog[i+1:i+3] for tg in x[1] if tg in lg.q and lg.q.index(tg) < 6]
                    lg.need(max(cand, key=lambda t: lg.q.index(t)))
                A(text)
                issue(i+1, 2)
            assert ri == len(flat)
            self.dstamp()
            A("s_nop 5")
            P = 48 if hf == 0 else 36
            for k, T in enumerate(tiles):
                for h in range(2): A(f"v_cvt_pk_bf16_f32 v{P+2*k+h}, v{acc[T]+2*h}, v{acc[T]+2*h+1}")
            npair = (len(tiles)+1)//2
            for p in range(npair):
                for i in range(2): A(f"v_mov_b32 v{P+12+2*p+i}, v{P+4*p+i}")
            for p in range(npair):
                single = 2*p+1 >= len(tiles)
                if not single:
                    for i in range(2): A(f"v_mov_b32_dpp v{P+4*p+i}, v{P+4*p+2+i} row_ror:8 row_mask:0xf bank_mask:0xc")
                for i in range(2): A(f"v_mov_b32_dpp v{P+4*p+2+i}, v{P+12+2*p+i} row_ror:8 row_mask:0xf bank_mask:0x3")
                for i in range(4): A(f"v_and_or_b32 v{P+4*p+i}, v{P+4*p+i}, s56, v15")
                if single: A("s_mov_b32 exec_lo, 0x00ff00ff\ns_mov_b32 exec_hi, exec_lo")
                if "noast" not in self.opts: A(f"buffer_store_dwordx4 {v(P+4*p,4)}, v6, s[72:75], s54 offen offset:{512*tiles[2*p]} sc1")
            A("s_mov_b64 exec, -1")
        A("s_cmp_eq_u32 s53, 0\ns_cbranch_scc1 L_s_x0")
        conv(1)
        A("s_branch L_s_xj")
        A("L_s_x0:")
        self.npt -= 1
        conv(0)
        A("L_s_xj:")
        A(f"s_mov_b64 exec, 1\nds_add_u32 v9, v8 offset:{F_SB}\ns_mov_b64 exec, -1")
        self.dstamp()
        if "noe" in self.opts: A("s_endpgm")
        A("s_setprio %d" % self.opt("sep", 2))
        A("s_lshl_b32 s10, s55, 18\ns_lshl_b32 s11, s60, 16\ns_add_u32 s10, s10, s11\ns_lshl_b32 s11, s59, 7\ns_add_u32 s10, s10, s11")
        A(f"s_add_u32 s10, s10, {WS_A:#x}")
        for i in range(1, 4): A(f"s_add_u32 s{10+i}, s10, {4096*i}")
        A("v_lshlrev_b32 v3, 14, v2\nv_lshl_add_u32 v4, v1, 3, v3")
        A("v_and_b32 v3, 1, v1\nv_lshrrev_b32 v1, 1, v1")
        A("v_lshrrev_b32 v6, v1, s57\nv_and_b32 v6, 1, v6\nv_mul_u32_u24 v6, 0x4000, v6\nv_lshl_or_b32 v15, v6, 16, v6")
        A("v_lshl_add_u32 v1, v3, 3, v1")
        A(f"s_lshl_b32 s14, s59, 8\ns_add_u32 s14, s14, {WS_G:#x}")
        A("v_lshlrev_b32 v5, 4, v1")
        A("v_lshl_add_u32 v3, v2, 8, v5\nv_add_u32 v11, s58, v3")
        A(f"v_add_u32 v12, {L_OMG}, v5")
        A(f"v_and_b32 v3, 3, v0\nv_lshl_add_u32 v3, v3, 2, v9")
        self.flag_wait(2, "s101", "L_s_gw", sleep=4)
        A("buffer_load_dwordx4 v[48:51], v5, s[72:75], s14 offen sc1")
        A("v_lshlrev_b32 v60, 16, v22\nv_and_b32 v61, 0xffff0000, v22\nv_lshlrev_b32 v62, 16, v23\nv_and_b32 v63, 0xffff0000, v23")
        A("s_waitcnt vmcnt(0)")
        self.dstamp()
        for r in range(4): A(f"v_sub_f32 v{80+r}, 1.0, v{48+r}\nv_mul_f32 v{48+r}, 0x5f800000, v{48+r}")
        for r in range(4):
            for i in range(4): A(f"v_mul_f32 v{64+4*r+i}, v{80+r}, v{60+i}")
        self.lds_wait_ge(3, F_FREE, self.opt("aat", 11), 10, "L_s_aw", sleep=self.opt("za", 4))
        self.dstamp()
        self.lds_wait_ge(9, F_SB, 8, 10, "L_s_kd")
        A("L_s_aget:")
        for i in range(4): A(f"buffer_load_dwordx2 {v(32+2*i,2)}, v4, s[72:75], s{10+i} offen sc1")
        A("s_waitcnt vmcnt(0)")
        for i in range(8): A(f"v_xor_b32 v{32+i}, v{32+i}, v15")
        A("v_or3_b32 v40, v32, v33, v34\nv_or3_b32 v41, v35, v36, v37\nv_or3_b32 v40, v40, v38, v39\nv_or_b32 v40, v40, v41\nv_and_b32 v40, 0x40004000, v40\nv_cmp_ne_u32 vcc, 0, v40")
        A("s_cbranch_vccz L_s_aok")
        if "noast" in self.opts: A("s_branch L_s_aok")
        self.guard()
        A("s_sleep %d\ns_branch L_s_aget" % self.opt("asl", 5))
        A("L_s_aok:")
        self.dstamp()
        for r in range(4):
            for i in range(4):
                src = 32 + 2*i + (r >> 1)
                A(f"v_lshlrev_b32 v{44+i}, 16, v{src}" if (r & 1) == 0 else f"v_and_b32 v{44+i}, 0xffff0000, v{src}")
            for i in range(4): A(f"v_fmac_f32 v{64+4*r+i}, v{48+r}, v{44+i}")
            A(f"ds_write_b128 v11, {v(64+4*r,4)} offset:{r*1024}")
        A("s_mov_b64 exec, 0xffff\nds_write_b128 v12, v[80:83]")
        A("s_waitcnt lgkmcnt(0)")
        self.dstamp()
        self.end()

    def build(self):
        self.prologue(); self.helper(); self.loader_x(); self.loader_w(); self.helper2(); self.loader_w2(); self.ssm(); self.consumer()
        self.A("L_end:\ns_endpgm\n.p2align 6\nL_tab:")
        self.A(".long " + ", ".join(str(i) for i in range(16)))
        self.A(f"L_codeend:\n.fill (33024-(L_codeend-{NAME}))/4, 4, 0xbf800000")
        if "pre" in self.opts or "post" in self.opts or "pft" in self.opts:
            P = Asm()
            if "pft" in self.opts:
                P("s_load_dwordx16 s[16:31], s[0:1], 0\ns_load_dwordx16 s[32:47], s[0:1], 64\ns_load_dwordx4 s[48:51], s[0:1], 128")
                P("s_cmpk_ge_u32 s2, 256\ns_cbranch_scc1 L_pend")
                P("s_getpc_b64 s[8:9]\nL_ppc:")
                P(f"s_add_u32 s8, s8, {NAME}-L_ppc\ns_addc_u32 s9, s9, -1")
                P("s_and_b32 s10, s2, 24\ns_lshl_b32 s10, s10, 10\nv_lshl_add_u32 v1, v0, 7, s10\nglobal_load_dword v8, v1, s[8:9]")
                P("s_lshl_b32 s10, s2, 13\nv_lshl_add_u32 v1, v0, 7, s10\nv_lshlrev_b32 v3, 7, v0\nv_min_u32 v2, 5376, v3\ns_mul_i32 s10, s2, 5504\nv_add_u32 v2, s10, v2\ns_lshl_b32 s10, s2, 9\nv_add_u32 v3, s10, v3\nv_lshlrev_b32 v4, 21, v0")
                P("s_waitcnt lgkmcnt(0)")
                P("global_load_dword v9, v1, s[16:17]\nglobal_load_dword v10, v2, s[36:37]\nglobal_load_dword v11, v2, s[40:41]\ns_mov_b64 exec, 15")
                for i in range(6): P(f"global_load_dword v{12+i}, v3, s[{18+2*i}:{19+2*i}]")
                P("global_load_dword v18, v4, s[50:51]")
                P("L_pend:")
            P("s_endpgm")
            ks = [(NAME, self.A.text(), 168, 102, 168, ""), ("aux_kernel", P.text(), 24, 64, 24, "")]
            main = (NAME, 256, 64*NWAVES, LDS_TOTAL); aux = ("aux_kernel", 256 if "pft" in self.opts else 1, 64, 0)
            return multi(ks, [main, aux] if "post" in self.opts else [aux, main])
        return single(self.A.text(), 256, 64*NWAVES, LDS_TOTAL, 168, 102, 168)

if __name__ == "__main__":
    args = sys.argv[2:]
    open(sys.argv[1], "w").write(G(ts="ts" in args, opts=args).build())
```

```python
import sys, struct
from asmgen import *

WS_EPOCH = 0
WS_G     = 0x1000
WS_FH    = 0x8000
WS_FG    = 0xC000
WS_FU    = 0xD000
WS_FA    = 0xF000
WS_H     = 0x80000
WS_UT    = 0x600000
WS_A     = 0x800000
WS_END   = 0xA00000
WS_TS    = 0x2000000
EPC = 0x9E3779B9
TM  = 0x69969669

KB = 1024
XS = [44*KB, 72*KB, 100*KB, 0, 16*KB]
WSL = [32*KB, 60*KB, 88*KB, 116*KB]
L_MINI = 0
BLK = [4*KB, 28*KB, 52*KB, 76*KB, 100*KB]
BLKNEED = [5, 6, 7, 7, 8]
L_TA = 0
L_TB = 116*KB
L_KF = 128*KB
KCH = 9280
PARO = [64, 576, 1088, 1600, 2304, 2816]
L_OMG = L_KF + 2*KCH
L_UL = 148*KB + 32
L_KP = 52*KB
L_PAR = L_KF
L_ST  = 132*KB
L_RED = 52*KB
L_OT  = 68*KB
L_FLAG = 163840 - 128
F_SB, F_KS, F_TAG, F_PX, F_PW, F_UD, F_FREE, F_PAR, F_XC = 0, 4, 8, 16, 20, 24, 32, 48, 56
LDS_TOTAL = 163840
assert L_KP + 4*2816 <= L_FLAG
NWAVES = 12
LOG2E = 0x3fb8aa3b
INV2PI = 0x3e22f983
def f2h(x): return struct.unpack("<I", struct.pack("<f", x))[0]
def pack8(vals): return sum((x//4096) << (8*i) for i, x in enumerate(vals))

EARLY = "early" in sys.argv
if EARLY:
    XS = [16*KB, 44*KB, 72*KB, 100*KB]; L_KP = 0
XD = len(XS)

class Cnt:
    def __init__(self, A, name, mx): self.A = A; self.q = []; self.name = name; self.mx = mx; self.issued = set()
    def op(self, text, tag=None):
        self.A(text); self.q.append(tag); self.issued.add(tag)
        assert len(self.q) <= self.mx, "counter overflow"
    def need(self, tag):
        assert tag in self.issued, tag
        idx = [i for i, t in enumerate(self.q) if t == tag]
        if not idx: return
        n = len(self.q) - 1 - idx[-1]
        self.A(f"s_waitcnt {self.name}({min(n, self.mx)})")
        self.q = self.q[idx[-1]+1:]

class G:
    def __init__(self, ts=False, opts=()):
        self.A = Asm(); self.ts = ts; self.opts = set(opts); self.role = None; self.npt = 0; self.ncm = 0; self.nw2 = 0
        self.amprole = "s" if "amps" in self.opts else "c"
        if not ({"gates", "now2"} & self.opts): self.opts |= {"w2all"}
        if not ({"rot", "rotd", "rot2", "nod3"} & self.opts): self.opts |= {"norot"}
        if "not3" not in self.opts: self.opts |= {"t3"}
    def opt(self, name, default):
        return int(([o[len(name):] for o in self.opts if o.startswith(name) and o[len(name):].isdigit()] + [default])[0])
    def dstamp(self):
        if self.role == self.amprole and self.opt("amp", 0):
            self.npt += 1
            if self.npt == self.opt("amp", 0): self.A("s_memrealtime s[70:71]\ns_waitcnt lgkmcnt(0)")
            if self.npt == self.opt("from", 0): self.A("s_memrealtime s[68:69]\ns_waitcnt lgkmcnt(0)")
        if not self.ts: return
        self.A(("s_memrealtime s[64:65]\ns_mov_b32 s95, m0\ns_waitcnt lgkmcnt(0)\ns_nop 0\n" if "rts" in self.opts else "s_memtime s[64:65]\ns_mov_b32 s95, m0\ns_waitcnt lgkmcnt(0)\ns_sub_u32 s64, s64, s70\n") + "s_mov_b32 m0, s67\ns_add_u32 s67, s67, 1\nv_writelane_b32 v167, s64, m0\ns_mov_b32 m0, s95\ns_nop 0")
    def dump_ts(self):
        A = self.A
        if not self.ts: return
        A("s_waitcnt lgkmcnt(0) vmcnt(0)")
        A("s_mov_b64 exec, -1")
        A("s_memrealtime s[64:65]\ns_memtime s[10:11]")
        srd(A, 4, 50, 1 << 28)
        A("s_waitcnt lgkmcnt(0)")
        A("v_writelane_b32 v167, s70, 61\ns_sub_u32 s10, s10, s70\nv_writelane_b32 v167, s10, 60")
        A("v_writelane_b32 v167, s68, 63")
        A("v_writelane_b32 v167, s64, 62")
        A("s_lshl_b32 s8, s2, 4\ns_add_u32 s8, s8, s3\ns_lshl_b32 s8, s8, 8")
        A(f"s_add_u32 s8, s8, {WS_TS:#x}")
        A("v_mbcnt_lo_u32_b32 v16, -1, 0\nv_mbcnt_hi_u32_b32 v16, -1, v16\nv_lshlrev_b32 v16, 2, v16")
        A("buffer_store_dword v167, v16, s[4:7], s8 offen")
        A("s_waitcnt vmcnt(0)")
    def end(self):
        if self.opt("amp", 0) and self.role == self.amprole:
            A = self.A; L = A.lab("L_amp")
            A("s_waitcnt vmcnt(0)\ns_memrealtime s[64:65]\ns_waitcnt lgkmcnt(0)")
            if self.opt("amp", 0) == 99: A("s_mov_b32 s70, s64")
            A("s_sub_u32 s70, s70, s68\ns_lshl_b32 s70, s70, %d\ns_min_u32 s70, s70, 20000" % self.opt("mul", 1))
            if "cal" in self.opts: A("s_mov_b32 s70, 0")
            if self.opt("wg", 999) != 999:
                A("s_add_u32 s70, s70, 300\ns_cmpk_lg_u32 s2, %d\ns_cselect_b32 s70, 0, s70" % self.opt("wg", 999))
            A(f"{L}:\ns_sleep 1\ns_memrealtime s[10:11]\ns_waitcnt lgkmcnt(0)\ns_sub_u32 s10, s10, s64\ns_cmp_lt_u32 s10, s70\ns_cbranch_scc1 {L}")
        self.dump_ts(); self.A("s_endpgm")

    def guard(self):
        self.A("s_add_u32 s66, s66, 0x1000\ns_cbranch_scc1 L_end")

    def lds_wait_ge(self, vaddr, off, target, vt, name, sleep=0):
        A = self.A; L = A.lab(name); L2 = A.lab(name)
        if sleep:
            A(f"s_branch {L2}\n{L}:\ns_sleep {sleep}\n{L2}:")
        else:
            A(f"{L}:")
        A(f"ds_read_b32 v{vt}, v{vaddr} offset:{off}")
        self.guard()
        A("s_waitcnt lgkmcnt(0)")
        A(f"v_cmp_gt_u32 vcc, {target}, v{vt}")
        A(f"s_cbranch_vccnz {L}")

    def get_tag(self, vaddr, vt, sdst, name):
        A = self.A; L = A.lab(name)
        A(f"{L}:")
        A(f"ds_read_b64 v[{vt}:{vt+1}], v{vaddr} offset:{F_TAG}")
        self.guard()
        A("s_waitcnt lgkmcnt(0)")
        A(f"v_readfirstlane_b32 s9, v{vt+1}")
        A(f"v_readfirstlane_b32 s62, v{vt}")
        A(f"s_cmp_eq_u32 s9, 0\ns_cbranch_scc1 {L}")
        A("s_mov_b32 s63, s62")

    def flag_wait(self, n, soff, name, base=16, extra=None, sleep=0, prewait=True):
        A = self.A; L = A.lab(name)
        if prewait: A("s_waitcnt lgkmcnt(0)")
        if sleep:
            L2 = A.lab(name); A(f"s_branch {L2}\n{L}:\ns_sleep {sleep}\n{L2}:")
        else: A(f"{L}:")
        A(f"s_load_dwordx{n} s[{base}:{base+n-1}], s[50:51], {soff} glc")
        m = n
        if extra:
            A(f"s_load_dwordx2 s[{base+n}:{base+n+1}], s[50:51], {extra} glc"); m = n + 2
        self.guard()
        A("s_waitcnt lgkmcnt(0)")
        for k in range(0, m, 2): A(f"s_xor_b64 s[{base+k}:{base+k+1}], s[{base+k}:{base+k+1}], s[62:63]")
        for k in range(2, m, 2): A(f"s_or_b64 s[{base}:{base+1}], s[{base}:{base+1}], s[{base+k}:{base+k+1}]")
        A(f"s_cbranch_scc1 {L}")
    def flag_set(self, soff):
        self.A(f"s_mov_b32 s9, s62\ns_atomic_swap s9, s[50:51], {soff}")

    def pf_setup(self):
        A = self.A
        if "spf" not in self.opts:
            A("s_waitcnt lgkmcnt(0)"); return
        A("s_lshl_b32 s10, s2, 13\ns_lshl_b32 s11, s60, 11\ns_add_u32 s10, s10, s11")
        A("s_mul_i32 s11, s2, 688\ns_and_b32 s11, s11, 0xffffffc0\ns_mul_i32 s12, s60, 192\ns_add_u32 s11, s11, s12\ns_min_u32 s11, s11, 175936")
        A("s_add_u32 s11, s11, %d" % (3*176128))
        A("s_waitcnt lgkmcnt(0)")
        A("s_add_u32 s34, s16, s10\ns_addc_u32 s35, s17, 0\ns_add_u32 s44, s36, s11\ns_addc_u32 s45, s37, 0")
    def pf(self, slices):
        if "spf" not in self.opts: return
        n = 0
        for sl in slices:
            for r in range(2):
                for h in range(2): self.A(f"s_load_dword s{78+(n%14)}, s[34:35], {1024*r+128*sl+64*h}"); n += 1
            for k in range(3): self.A(f"s_load_dword s{78+(n%14)}, s[44:45], {176128*(sl-3)+64*k}"); n += 1

    def map_m(self):
        if "lmap" in self.opts:
            self.A("s_and_b32 s56, s2, 7\ns_lshl_b32 s56, s56, 1\ns_bfe_u32 s54, s2, 0x10003\ns_add_u32 s56, s56, s54"); return
        self.A("s_bfe_u32 s56, s2, 0x20001\ns_lshl_b32 s56, s56, 2\ns_bfe_u32 s54, s2, 0x20003\ns_add_u32 s56, s56, s54")
    def map_n(self):
        if "lmap" in self.opts:
            self.A("s_lshr_b32 s57, s2, 4"); return
        self.A("s_and_b32 s57, s2, 1\ns_lshl_b32 s57, s57, 3\ns_lshr_b32 s55, s2, 5\ns_add_u32 s57, s57, s55")
    def map_tb(self):
        self.A("s_and_b32 s59, s2, 7\ns_lshl_b32 s59, s59, 2\ns_bfe_u32 s54, s2, 0x20003\ns_add_u32 s59, s59, s54\ns_lshr_b32 s55, s2, 5")
    def rot(self, d):
        A = self.A
        if "norot" in self.opts: A(f"s_mov_b32 s{d}, 0"); return
        if "rotd" in self.opts:
            A(f"s_bfe_u32 s{d}, s2, 0x20003\ns_lshl_b32 s{d}, s{d}, 1\ns_cmp_eq_u32 s55, 3\ns_cselect_b32 s{d}, s{d}, 0"); return
        if "rot2" in self.opts:
            A(f"s_and_b32 s{d}, s55, 1\ns_lshl_b32 s{d}, s{d}, 2"); return
        if "nod3" in self.opts: A(f"s_mov_b32 s{d}, s55")
        else: A(f"s_bfe_u32 s{d}, s2, 0x20003\ns_lshl_b32 s{d}, s{d}, 1\ns_cmp_eq_u32 s55, 3\ns_cselect_b32 s{d}, s{d}, 0\ns_add_u32 s{d}, s{d}, s55")
        if "xrot" in self.opts:
            A(f"s_and_b32 s9, s2, 7\ns_add_u32 s{d}, s{d}, s9\ns_cmp_ge_u32 s{d}, 14\ns_cselect_b32 s9, 14, 0\ns_sub_u32 s{d}, s{d}, s9")
        A(f"s_cmp_ge_u32 s{d}, 7\ns_cselect_b32 s9, 7, 0\ns_sub_u32 s{d}, s{d}, s9")
    def tabptr(self):
        A = self.A; L = A.lab("L_tp")
        A(f"s_getpc_b64 s[92:93]\n{L}:")
        A(f"s_add_u32 s92, s92, L_tab-{L}\ns_addc_u32 s93, s93, 0")
    def dmaflag(self, vreg, m0src=None):
        A = self.A
        if m0src is not None: A(f"s_mov_b32 m0, {m0src}")
        A("s_mov_b64 exec, 1")
        A(f"global_load_lds_dword v{vreg}, s[92:93]")
        A("s_mov_b64 exec, -1")

    def prologue(self):
        A = self.A
        if "rt" in self.opts or self.opt("amp", 0): A("s_memrealtime s[68:69]")
        if self.ts: A("s_memrealtime s[70:71]" if "rts" in self.opts else "s_memtime s[70:71]")
        A("s_load_dwordx16 s[16:31], s[0:1], 0")
        A("s_load_dwordx16 s[32:47], s[0:1], 64")
        A("s_load_dwordx4 s[48:51], s[0:1], 128")
        A("v_lshrrev_b32 v2, 6, v0")
        if self.ts or "rt" in self.opts: A("s_nop 0")
        else: A("s_cmpk_ge_u32 s2, 256\ns_cbranch_scc1 L_end")
        A("v_readfirstlane_b32 s3, v2")
        A("s_cmp_ge_u32 s3, 8\ns_cbranch_scc1 L_ssm")
        A("s_cmp_ge_u32 s3, 4\ns_cbranch_scc1 L_cons")
        A("s_cmp_lg_u32 s3, 0\ns_cbranch_scc1 L_disp")
        A("s_getpc_b64 s[8:9]")
        A("s_and_b32 s10, s2, 24\ns_lshl_b32 s10, s10, 10")
        A("v_lshl_add_u32 v1, v0, 7, s10")
        A("global_load_dword v14, v1, s[8:9]")
        A("s_lshl_b32 s10, s2, 9")
        A("v_lshl_add_u32 v2, v0, 4, s10")
        A(f"s_mov_b32 m0, {L_PAR+PARO[0]}")
        A("s_mov_b32 exec_hi, 0")
        A("v_lshlrev_b32 v3, 21, v0")
        A("s_waitcnt lgkmcnt(0)")
        fill = ["s_and_b32 s10, s2, 7", "s_lshl_b32 s10, s10, 7", "s_lshr_b32 s12, s2, 3", "s_lshl_b32 s12, s12, 16", "s_add_u32 s10, s10, s12", None]
        if "lazy" in self.opts:
            fill = ["s_lshl_b32 s10, s2, 13", "s_movk_i32 s12, %d" % (688*self.opt("ns", 2)), "s_mul_i32 s12, s12, s2", "v_lshl_add_u32 v4, v0, 6, s12", "global_load_dword v17, v4, s[36:37]", None]
        for i in range(6):
            A(f"global_load_lds_dwordx4 v2, s[{18+2*i}:{19+2*i}]")
            if fill[i]:
                A(f"s_addk_i32 m0, {PARO[i+1]-PARO[i]}"); A(fill[i])
        if "lazy" in self.opts:
            A("s_mov_b32 exec_lo, 0x%x\ns_mov_b32 exec_hi, exec_lo" % (0x01010101*((1 << self.opt("ns", 2))-1)))
            A("v_lshl_add_u32 v1, v0, 7, s10")
        else:
            A("s_mov_b32 exec_hi, -1")
            A("v_lshl_add_u32 v1, v0, 10, s10")
        A("global_load_dword v15, v1, s[16:17]")
        A("s_mov_b64 exec, 31")
        A("global_load_dword v16, v3, s[50:51] offset:64")
        A("s_mov_b64 exec, -1")
        A("L_disp:")
        A("v_and_b32 v0, 63, v0\ns_mov_b32 s66, 0")
        if self.ts: A("s_mov_b32 s67, 0\nv_mov_b32 v167, 0\ns_memrealtime s[68:69]")
        A("s_cmp_eq_u32 s3, 1\ns_cbranch_scc1 L_ldx")
        A("s_cmp_eq_u32 s3, 2\ns_cbranch_scc1 L_ldw")
    def entry(self):
        A = self.A
        A("v_and_b32 v0, 63, v0\ns_mov_b32 s66, 0")
        if self.ts: A("s_mov_b32 s67, 0\nv_mov_b32 v167, 0\ns_memrealtime s[68:69]")

    def free_issue(self):
        self.A(f"ds_read_b32 v20, v13")
    def free_check(self, target, name):
        A = self.A; L = A.lab(name); L2 = A.lab(name)
        chk = f"s_waitcnt lgkmcnt(0)\nv_cmp_gt_u32 vcc, {target}, v20\n"
        A(chk + f"s_cbranch_vccz {L2}")
        A(f"{L}:")
        if self.opt("zl", 0): A("s_sleep %d" % self.opt("zl", 0))
        self.free_issue()
        self.guard()
        A(chk + f"s_cbranch_vccnz {L}")
        A(f"{L2}:")
    def throttle(self):
        t = self.opt("thr", 0)
        if t: self.A(f"s_waitcnt vmcnt({t})")

    def loop_tail(self, p, depth):
        A = self.A
        A("v_add_u32 v9, 4, v9")
        self.dmaflag(9, "s94")
        if "lstamp" in self.opts: self.dstamp()
        A("s_add_u32 s12, s12, 1\ns_lshr_b64 s[96:97], s[96:97], 8")
        if "nohold" not in self.opts and "lazy" not in self.opts:
            A(f"s_cmp_lg_u32 s12, 1\ns_cbranch_scc1 L_{p}_nh\nv_and_b32 v22, 1, v0\nv_lshl_add_u32 v22, v22, 2, v8")
            self.lds_wait_ge(22, F_UD, 1, 21, f"L_{p}_h")
            A(f"L_{p}_nh:")
        A(f"s_cmp_lt_u32 s12, {depth}\ns_cbranch_scc1 L_{p}_loop")
        A(f"s_cmp_eq_u32 s12, 8\ns_cbranch_scc1 L_w2")
        A(f"s_sub_u32 s15, s12, {depth-1}")
        if "nofree" not in self.opts: self.free_check("s15", f"L_{p}_f")
        A(f"s_branch L_{p}_loop")

    def loader_x(self):
        A = self.A
        A("L_ldx:")
        self.tabptr()
        self.map_m()
        A("v_lshrrev_b32 v1, 3, v0\nv_lshrrev_b32 v2, 4, v0\nv_and_b32 v3, 7, v0\nv_xor_b32 v2, v3, v2\nv_lshlrev_b32 v1, 10, v1")
        A("v_lshl_add_u32 v4, v2, 4, v1")
        A("v_xor_b32 v5, 64, v4")
        A(f"v_add_u32 v5, {7*1024}, v5\nv_add_u32 v6, {14*1024}, v4\nv_add_u32 v7, {14*1024}, v5")
        A("s_lshl_b32 s10, s56, 17")
        xs = [XS[s % XD] for s in range(8)]
        A(f"s_mov_b32 s96, {pack8(xs[:4]):#x}\ns_mov_b32 s97, {pack8(xs[4:]):#x}")
        A(f"s_mov_b32 s94, {L_FLAG+F_PX}\ns_mov_b32 s12, 0\ns_mov_b32 s98, 0")
        A(f"v_mov_b32 v8, {L_FLAG}\nv_mov_b32 v9, 0\nv_and_b32 v13, 3, v0\nv_lshl_add_u32 v13, v13, 2, v8\nv_add_u32 v13, {F_FREE}, v13")
        A("s_mov_b32 s6, 0x200000\ns_mov_b32 s7, 0x20000")
        A("s_waitcnt lgkmcnt(0)")
        A("s_mov_b32 s4, s16\ns_and_b32 s5, s17, 0xffff")
        A("s_barrier")
        if "g2only" in self.opts: A("s_endpgm")
        self.dstamp()
        if self.opt("lprio", 0): A("s_setprio %d" % self.opt("lprio", 0))
        A("s_lshr_b32 s13, s2, 5\ns_lshl_b32 s13, s13, 7\nv_mov_b32 v3, s13\ns_mov_b64 exec, 1")
        A("global_load_dword v140, v3, s[42:43]\nglobal_load_dword v141, v3, s[40:41]")
        if "noot" not in self.opts: A("s_and_b32 s14, s2, 7\ns_lshl_b32 s14, s14, 18\nv_add_u32 v3, s14, v3\nglobal_load_dword v143, v3, s[46:47]")
        A("s_mov_b64 exec, -1")
        if "w2f" in self.opts:
            A("s_mul_i32 s13, s2, 5504\ns_add_u32 s14, s40, s13\ns_addc_u32 s15, s41, 0\nv_lshlrev_b32 v3, 7, v0\ns_movk_i32 exec_hi, 0x7ff")
            A("global_load_dword v142, v3, s[14:15]\ns_mov_b64 exec, -1")
        A("L_x_loop:")
        A("s_and_b32 s13, s96, 0xff\ns_lshl_b32 s13, s13, 12\ns_mov_b32 s14, s10")
        for g in range(4):
            A(f"s_add_u32 m0, s13, {g*4096}")
            if g: A(f"s_add_u32 s14, s14, 32768")
            else: A(f"s_add_u32 s10, s10, 128")
            if g == 3: self.free_issue()
            self.throttle()
            for j in range(4):
                A(f"buffer_load_dwordx4 v{4+j}, s[4:7], s14 offen offset:{j*1024} lds")
        self.loop_tail("x", XD)

    def loader_w(self):
        A = self.A
        A("L_ldw:")
        self.tabptr()
        A(f"v_mov_b32 v8, {L_FLAG}\nv_mov_b32 v9, 0\nv_lshl_add_u32 v3, v0, 2, v8")
        A("s_mov_b32 exec_hi, 0\nds_write_b32 v3, v9\ns_mov_b64 exec, -1")
        self.map_n()
        for j in range(3):
            A(f"v_add_u32 v1, {64*j}, v0")
            A(f"v_mul_u32_u24 v2, 0xaaab, v1\nv_lshrrev_b32 v{24+j}, 19, v2")
            A(f"v_mul_u32_u24 v2, {2752-192}, v{24+j}")
            A(f"v_lshl_add_u32 v{4+j}, v0, 4, v2")
        A("v_and_b32 v1, 32, v0\nv_xor_b32 v5, v5, v1\nv_xor_b32 v6, 32, v6")
        A("s_mul_i32 s10, s57, 192")
        A(f"s_mov_b32 s53, {16*2752}")
        A(f"v_and_b32 v13, 3, v0\nv_lshl_add_u32 v13, v13, 2, v8\nv_add_u32 v13, {F_FREE}, v13")
        ws_ = [WSL[s % 4] for s in range(8)]
        A(f"s_mov_b32 s96, {pack8(ws_[:4]):#x}\ns_mov_b32 s97, s96")
        A(f"s_mov_b32 s94, {L_FLAG+F_PW}\ns_mov_b32 s12, 0\ns_mov_b32 s98, 1")
        A(f"s_mov_b32 s6, {512*2752}\ns_mov_b32 s7, 0x20000")
        A("s_waitcnt lgkmcnt(0)")
        A("s_mov_b32 s4, s36\ns_and_b32 s5, s37, 0xffff")
        A("s_cmp_ge_u32 s57, 14\ns_cbranch_scc1 L_ld_gate")
        A("L_ld_go:")
        A("s_barrier")
        if "g2only" in self.opts: A("s_endpgm")
        self.dstamp()
        if self.opt("lprio", 0): A("s_setprio %d" % self.opt("lprio", 0))
        A("s_mul_i32 s13, s2, 5504\ns_add_u32 s14, s36, s13\ns_addc_u32 s15, s37, 0\nv_lshlrev_b32 v3, 7, v0\ns_movk_i32 exec_hi, 0x7ff")
        A(("" if "lazy" in self.opts else "global_load_dword v140, v3, s[14:15]\n") + "s_mov_b64 exec, -1")
        A("L_w_loop:")
        A("s_and_b32 s13, s96, 0xff\ns_lshl_b32 s13, s13, 12")
        for g in range(4):
            A(f"s_add_u32 m0, s13, {g*3072}")
            if g == 3: self.free_issue()
            else: A("s_nop 0")
            self.throttle()
            for j in range(3):
                A(f"buffer_load_dwordx4 v{4+j}, s[4:7], s10 offen offset:{j*1024} lds")
            A("s_add_u32 s10, s10, s53")
        self.loop_tail("w", 4)
        A("L_ld_gate:")
        A("v_mov_b32 v15, 0x80000000")
        A("s_cmp_eq_u32 s57, 15\ns_cbranch_scc1 L_ld_gate2")
        for j in range(3):
            A(f"v_add_u32 v1, {64*j}, v0")
            A(f"v_mul_u32_u24 v2, 12, v{24+j}\nv_sub_u32 v1, v1, v2")
            A("v_cmp_gt_u32 vcc, 4, v1\ns_nop 1")
            A(f"v_cndmask_b32 v{4+j}, v15, v{4+j}, vcc")
        A("s_branch L_ld_go")
        A("L_ld_gate2:")
        A("s_sub_u32 s4, s44, 2048\ns_subb_u32 s5, s45, 0\ns_and_b32 s5, s5, 0xffff")
        A("s_mov_b32 s6, 3072\ns_mov_b32 s53, 32\ns_mov_b32 s10, 0")
        for j in range(3):
            A(f"v_add_u32 v1, {64*j}, v0")
            A(f"v_mul_u32_u24 v2, 12, v{24+j}\nv_sub_u32 v1, v1, v2")
            A(f"v_lshrrev_b32 v2, 3, v{24+j}\nv_xor_b32 v2, v2, v{24+j}\nv_and_b32 v2, 1, v2\nv_lshlrev_b32 v2, 1, v2")
            A("v_cmp_eq_u32 vcc, v1, v2")
            A(f"v_and_b32 v2, 14, v{24+j}\nv_lshlrev_b32 v2, 1, v2\nv_add_u32 v2, {2048-1024*j}, v2")
            A(f"v_cndmask_b32 v{4+j}, v15, v2, vcc")
        A("s_branch L_ld_go")

    def loader_w2(self):
        A = self.A
        A("L_w2:")
        A("v_lshrrev_b32 v1, 3, v0\nv_lshlrev_b32 v1, 10, v1")
        A("v_lshrrev_b32 v2, 4, v0\nv_lshlrev_b32 v2, 1, v2\nv_and_b32 v3, 7, v0\nv_xor_b32 v2, v2, v3")
        A("v_lshl_add_u32 v16, v2, 4, v1")
        for j in range(1, 4): A(f"v_add_u32 v{16+j}, {7*1024*j}, v16")
        srd(A, 4, 40, 1376*1024)
        A("s_lshr_b32 s55, s2, 5\ns_lshl_b32 s10, s55, 7")
        A(f"s_lshl_b32 s14, s98, 14\ns_add_u32 s14, s14, s10\ns_add_u32 s14, s14, {1344*1024}")
        A(f"s_mul_i32 s11, s98, {7*96*1024}\ns_add_u32 s52, s10, s11\ns_add_u32 s53, s52, {7*96*1024}")
        A("s_mul_i32 s11, s98, 12288")
        self.rot(13)
        A(f"s_add_u32 s10, s13, 5\ns_cmp_ge_u32 s10, 7\ns_cselect_b32 s12, 7, 0\ns_sub_u32 s10, s10, s12\ns_mul_i32 s10, s10, {96*1024}\ns_add_u32 s10, s10, s52")
        RB = 32
        if self.opt("rg", 7): self.lds_wait_ge(8, F_PW, self.opt("rg", 7), 21, "L_w2_rg")
        for k in range(6):
            for j in range(4):
                A(f"buffer_load_dwordx4 {v(RB+16*k+4*j,4)}, v{16+j}, s[4:7], s10 offen offset:{j*1024}")
            A("s_add_u32 s10, s10, 32768")
            if k % 3 == 2: A("s_cmp_eq_u32 s10, s53\ns_cselect_b32 s10, s52, s10")
        if "lstamp" in self.opts: self.dstamp()
        bl = [BLK[b] for b in range(5)] + [0, 0, 0]
        A(f"s_mov_b32 s96, {pack8(bl[:4]):#x}\ns_mov_b32 s97, {pack8(bl[4:]):#x}")
        nd = sum(x << (4*i) for i, x in enumerate(BLKNEED))
        A(f"s_mov_b32 s99, {nd:#x}")
        if EARLY: self.lds_wait_ge(8, F_SB, 4, 21, "L_w2_e")
        self.free_issue()
        self.free_check(self.opt("w2g", 6), "L_w2_m")
        A(f"s_lshl_b32 m0, s98, 11\ns_nop 0")
        for j in range(2):
            A(f"buffer_load_dwordx4 v{16+j}, s[4:7], s14 offen offset:{j*1024} lds")
        A("L_w2_loop:")
        A("s_and_b32 s13, s96, 0xff\ns_lshl_b32 s13, s13, 12\ns_add_u32 s13, s13, s11")
        for g in range(3):
            A(f"s_add_u32 m0, s13, {g*4096}")
            if g == 2: self.free_issue()
            else: A("s_nop 0")
            self.throttle()
            for j in range(4):
                A(f"buffer_load_dwordx4 v{16+j}, s[4:7], s10 offen offset:{j*1024} lds")
            A("s_add_u32 s10, s10, 32768")
        A("s_cmp_eq_u32 s10, s53\ns_cselect_b32 s10, s52, s10")
        A("v_add_u32 v9, 4, v9")
        self.dmaflag(9, "s94")
        if "lstamp" in self.opts: self.dstamp()
        A("s_lshr_b64 s[96:97], s[96:97], 8\ns_lshr_b32 s99, s99, 4")
        A("s_cbranch_scc0 L_w2_done")
        A("s_and_b32 s15, s99, 15")
        self.free_check("s15", "L_w2_f")
        A(f"s_cmp_lg_u32 s99, {nd >> 8:#x}\ns_cbranch_scc1 L_w2_loop")
        self.lds_wait_ge(8, F_SB, 4, 21, "L_w2_s")
        A("s_branch L_w2_loop")
        A("L_w2_done:")
        A("v_lshl_add_u32 v4, v0, 4, s11\nv_mov_b32 v5, s94")
        A("s_waitcnt vmcnt(0)")
        if "lend" in self.opts: A("v_mov_b32 v6, 15\ns_mov_b64 exec, 1\nds_write_b32 v5, v6\ns_waitcnt lgkmcnt(0)\ns_endpgm")
        for bb in range(2):
            self.lds_wait_ge(13, 0, 9+bb, 20, "L_w2_r", sleep=self.opt("zw", 4))
            for k in range(12):
                if "nowr" not in self.opts: A(f"ds_write_b128 v4, {v(RB+48*bb+4*k,4)} offset:{BLK[bb]+1024*k}")
                if self.opt("wsp", 0): A("s_nop %d" % self.opt("wsp", 0))
            A(f"v_mov_b32 v6, {14+bb}\ns_mov_b64 exec, 1\nds_write_b32 v5, v6\ns_mov_b64 exec, -1")
            if "lstamp" in self.opts: self.dstamp()
        A("s_waitcnt lgkmcnt(0)")
        self.dstamp()
        self.end()

    def helper(self):
        A = self.A
        A("s_and_b32 s60, s3, 1")
        A("s_lshr_b32 s59, s2, 3\ns_and_b32 s55, s2, 7")
        A("s_lshl_b32 s10, s59, 16\ns_lshl_b32 s11, s60, 6\ns_add_u32 s10, s10, s11\ns_lshl_b32 s11, s55, 7\ns_add_u32 s10, s10, s11")
        A("v_lshrrev_b32 v12, 3, v0\nv_bfe_u32 v4, v0, 2, 1\nv_lshl_add_u32 v4, v4, 5, v12\nv_and_b32 v11, 3, v0\nv_lshlrev_b32 v5, 4, v11\nv_lshl_add_u32 v4, v4, 10, v5")
        for j in range(1, 4): A(f"v_xor_b32 v{4+j}, {16*j}, v4\nv_add_u32 v{4+j}, {7*1024*j}, v{4+j}")
        A(f"s_mul_i32 s11, s60, 4608\ns_add_u32 s58, s11, {L_UL+480}\ns_mov_b32 m0, s58")
        A("s_waitcnt lgkmcnt(0)")
        A(f"s_load_dword s62, s[50:51], {WS_EPOCH}")
        srd(A, 4, 16, 2048*1024)
        if "lazy" not in self.opts:
            for j in range(4): A(f"buffer_load_dwordx4 v{4+j}, s[4:7], s10 offen offset:{j*1024} lds")
        A("s_barrier")
        A("s_branch L_help2")
    def helper2(self):
        A = self.A
        A("L_help2:")
        A("s_setprio 3")
        A(f"v_mov_b32 v8, {L_FLAG}\nv_mov_b32 v3, 1")
        if "lazy" in self.opts:
            A("s_cmp_lg_u32 s60, 0\ns_cbranch_scc1 L_h_lz")
            A("s_waitcnt vmcnt(2)")
            A(f"s_mov_b64 exec, 1\nds_write_b32 v8, v3 offset:{F_PAR}\ns_mov_b64 exec, -1")
            A("L_h_lz:")
            A("s_waitcnt lgkmcnt(0)")
            A(f"s_add_u32 s62, s62, {EPC:#x}\ns_mov_b32 s63, s62\nv_mov_b32 v2, s62")
            A(f"s_mov_b64 exec, 1\nds_write_b64 v8, v[2:3] offset:{F_TAG}\ns_mov_b64 exec, -1")
            self.lds_wait_ge(8, F_PAR if self.opt("upub", 0) == 0 else F_PW, max(1, self.opt("upub", 0)), 10, "L_h_lw")
            for j in range(4): A(f"buffer_load_dwordx4 v{4+j}, s[4:7], s10 offen offset:{j*1024} lds")
            A("s_mul_i32 s14, s2, 5504\ns_mul_i32 s15, s60, 2816\ns_add_u32 s14, s14, s15\ns_add_u32 s14, s36, s14\ns_addc_u32 s15, s37, 0")
            A("v_lshlrev_b32 v4, 7, v0\ns_lshr_b32 exec_lo, 0x3fffff, s60\ns_mov_b32 exec_hi, 0\nglobal_load_dword v74, v4, s[14:15]\ns_mov_b64 exec, -1")
        self.tabptr()
        srd(A, 72, 50, WS_END)
        A("v_lshrrev_b32 v4, 5, v0\nv_xor_b32 v4, v4, v11\nv_lshlrev_b32 v4, 4, v4\nv_lshl_add_u32 v4, v11, 10, v4")
        A("v_bfe_u32 v5, v0, 2, 1\nv_lshl_add_u32 v4, v5, 6, v4\nv_bfe_u32 v5, v0, 3, 2\nv_lshl_add_u32 v4, v5, 2, v4\nv_add_u32 v24, s58, v4\nv_xor_b32 v25, 32, v24")
        A("v_and_b32 v4, 7, v0\nv_lshlrev_b32 v4, 4, v4\nv_lshl_add_u32 v28, v12, 13, v4")
        A("s_lshl_b32 s10, s55, 18\ns_lshl_b32 s12, s60, 17\ns_add_u32 s10, s10, s12\ns_lshl_b32 s12, s59, 7\ns_add_u32 s10, s10, s12")
        A(f"s_add_u32 s10, s10, {WS_UT:#x}\ns_add_u32 s11, s10, 4096\ns_add_u32 s52, s10, 0x10000\ns_add_u32 s53, s10, 0x11000")
        A("s_lshl_b32 s12, s55, 1\ns_add_u32 s12, s12, s60\ns_lshl_b32 s12, s12, 2\ns_lshr_b32 s13, s59, 3\ns_add_u32 s12, s12, s13\ns_lshl_b32 s12, s12, 7")
        A(f"s_and_b32 s13, s59, 7\ns_lshl_b32 s13, s13, 2\ns_add_u32 s12, s12, s13\ns_add_u32 s54, s12, {WS_FU:#x}")
        A("s_mov_b32 s12, 0x05040100\ns_mov_b32 s13, 0x07060302")
        A("s_load_dword s56, s[50:51], s54 glc")
        A(f"s_lshl_b32 s94, s60, 2\ns_add_u32 s94, s94, {L_FLAG+F_UD}\nv_mov_b32 v9, s94")
        if "lazy" not in self.opts:
            A("s_cmp_lg_u32 s60, 0\ns_cbranch_scc1 L_h_np")
            A("s_waitcnt vmcnt(6)")
            A(f"s_mov_b64 exec, 1\nds_write_b32 v8, v3 offset:{F_PAR}\ns_mov_b64 exec, -1")
            A("L_h_np:")
            A("s_waitcnt lgkmcnt(0)")
            A(f"s_add_u32 s62, s62, {EPC:#x}\ns_mov_b32 s63, s62\nv_mov_b32 v2, s62")
            A(f"s_mov_b64 exec, 1\nds_write_b64 v8, v[2:3] offset:{F_TAG}\ns_mov_b64 exec, -1")
        if "g2only" in self.opts: A("s_waitcnt lgkmcnt(0)\ns_endpgm")
        A("s_waitcnt vmcnt(1) lgkmcnt(0)" if "lazy" in self.opts else "s_waitcnt vmcnt(0)")
        self.dstamp()
        for it_ in range(2):
            for e in range(4): A(f"ds_read2_b32 {v(32+8*it_+2*e,2)}, v{24+it_} offset0:{64*e} offset1:{64*e+32}")
        for it_ in range(2):
            A(f"s_waitcnt lgkmcnt({4-4*it_})")
            for c_ in range(2):
                for e in range(4): A(f"v_perm_b32 v{48+8*it_+4*c_+e}, v{33+8*it_+2*e}, v{32+8*it_+2*e}, s{12+c_}")
                A(f"buffer_store_dwordx4 {v(48+8*it_+4*c_,4)}, v28, s[72:75], s{(10, 11, 52, 53)[2*it_+c_]} offen sc1")
        if "w2all" in self.opts:
            A("s_mul_i32 s14, s2, 5504\ns_mul_i32 s15, s60, 2816\ns_add_u32 s14, s14, s15\ns_add_u32 s14, s40, s14\ns_addc_u32 s15, s41, 0")
            A("v_lshlrev_b32 v4, 7, v0\ns_lshr_b32 exec_lo, 0x3fffff, s60\ns_mov_b32 exec_hi, 0\nglobal_load_dword v73, v4, s[14:15]")
            if "t3" in self.opts:
                A("s_mul_i32 s14, s59, 43\ns_mul_i32 s15, s60, 22\ns_add_u32 s14, s14, s15\ns_lshl_b32 s14, s14, 10\ns_add_u32 s14, s14, 384\ns_add_u32 s14, s40, s14\ns_addc_u32 s15, s41, 0")
                A("v_lshlrev_b32 v4, 10, v0\nglobal_load_dword v75, v4, s[14:15]")
        A("s_mov_b64 exec, 1\nds_write_b32 v9, v3\ns_mov_b64 exec, -1")
        A("s_setprio 0")
        if "w2all" not in self.opts and "now2" not in self.opts: A("s_cmp_eq_u32 s60, 0\ns_cbranch_scc1 L_h_w2\nL_h_w2r:")
        self.dstamp()
        A("s_waitcnt vmcnt(%d)" % ((2 if "t3" in self.opts else 1) if "w2all" in self.opts else 0))
        self.flag_set("s54")
        A("s_cmp_eq_u32 s60, 0\ns_cbranch_scc1 %s" % ("L_h_st" if "w2st" in self.opts else "L_h_done"))
        A(f"s_lshr_b32 s10, s2, 4\ns_lshl_b32 s10, s10, 9\ns_add_u32 s52, s10, {WS_FU:#x}\ns_add_u32 s53, s52, 128\ns_add_u32 s54, s52, 256\ns_add_u32 s55, s52, 384")
        A(f"s_lshl_b32 s10, s2, 13\ns_add_u32 s10, s10, {WS_UT:#x}\ns_add_u32 s11, s10, 4096")
        A(f"s_mov_b32 m0, {L_UL+480}\nv_lshlrev_b32 v13, 4, v0\nv_mov_b32 v9, 8")
        A("s_waitcnt lgkmcnt(0)")
        self.dstamp()
        A("L_h_uw:")
        A("s_sleep %d" % self.opt("usl", 6))
        for k_ in range(4): A(f"s_load_dwordx8 s[{16+8*k_}:{23+8*k_}], s[50:51], s{52+k_} glc")
        self.guard()
        A("s_waitcnt lgkmcnt(0)")
        for k_ in range(0, 32, 2): A(f"s_xor_b64 s[{16+k_}:{17+k_}], s[{16+k_}:{17+k_}], s[62:63]")
        for k_ in range(2, 32, 2): A(f"s_or_b64 s[16:17], s[16:17], s[{16+k_}:{17+k_}]")
        A("s_cbranch_scc1 L_h_uw")
        self.lds_wait_ge(8, F_UD, 1, 10, "L_h_ud")
        for j in range(4): A(f"buffer_load_dwordx4 v13, s[72:75], s10 offen offset:{1024*j} sc1 lds")
        A(f"s_mov_b32 m0, {L_UL+480+4608}\ns_nop 0")
        for j in range(4): A(f"buffer_load_dwordx4 v13, s[72:75], s11 offen offset:{1024*j} sc1 lds")
        self.dmaflag(9, "s94")
        self.dstamp()
        A("s_cmpk_lg_u32 s2, 255\ns_cbranch_scc1 L_h_done")
        if "nopub" in self.opts or "nos" in self.opts: A("s_branch L_h_done")
        A(f"v_lshlrev_b32 v4, 7, v0\nv_add_u32 v4, {WS_FU:#x}, v4")
        A("L_h_bump:")
        A("buffer_load_dwordx4 v[10:13], v4, s[72:75], 0 offen sc1\nbuffer_load_dwordx4 v[14:17], v4, s[72:75], 0 offen offset:16 sc1")
        A("s_waitcnt vmcnt(0)")
        for i in range(4): A(f"v_bitop3_b32 v{10+i}, v{10+2*i}, v{11+2*i}, v2 bitop3:0x7e")
        A("v_or3_b32 v10, v10, v11, v12\nv_or_b32 v10, v10, v13")
        A("v_cmp_ne_u32 vcc, 0, v10")
        A("s_cbranch_vccz L_h_ok")
        self.guard()
        A("s_sleep 16\ns_branch L_h_bump")
        A("L_h_ok:")
        A(f"v_mov_b32 v4, {WS_EPOCH}")
        A("s_mov_b64 exec, 1")
        A("buffer_store_dword v2, v4, s[72:75], 0 offen sc1")
        A("L_h_done:")
        A("s_waitcnt vmcnt(0) lgkmcnt(0)")
        if "hend" in self.opts: A("s_endpgm")
        if self.ts: self.lds_wait_ge(8, F_PW, 15, 4, "L_h_z", sleep=8)
        self.end()
        if "w2st" in self.opts:
            A("L_h_st:")
            A("s_bfe_u32 s13, s2, 0x%x\ns_add_u32 s13, s13, %d" % (0x10000*self.opt("stb", 2)+3, self.opt("sto", 1)))
            A("s_mul_i32 s14, s2, 5504\ns_add_u32 s14, s40, s14\ns_addc_u32 s15, s41, 0\nv_lshlrev_b32 v4, 7, v0")
            self.lds_wait_ge(8, F_PW, "s13", 10, "L_h_sw", sleep=1)
            A("s_movk_i32 exec_hi, 0x7ff\nglobal_load_dword v73, v4, s[14:15]\ns_mov_b64 exec, -1\ns_branch L_h_done")
        A("L_h_w2:")
        if "w2all" in self.opts or "now2" in self.opts:
            A("s_branch L_h_done"); return
        A("s_mov_b32 s15, s54")
        self.map_n(); self.map_m()
        A("s_mov_b32 s54, s15")
        A("s_cmp_lt_u32 s57, 14\ns_cbranch_scc1 L_h_w2r")
        srd(A, 4, 40, 1376*1024)
        NG = self.opt("gt", 7)
        A(f"s_mul_i32 s10, s56, {88*1024}\ns_sub_u32 s11, 15, s57\ns_mul_i32 s11, s11, {NG*8192}\ns_add_u32 s10, s10, s11\nv_lshlrev_b32 v4, 7, v0")
        for i in range(NG):
            if i == 11-NG: A("s_cmp_eq_u32 s57, 14\ns_cbranch_scc1 L_h_done")
            A(f"buffer_load_dword v{74+i}, v4, s[4:7], s10 offen\ns_add_u32 s10, s10, 8192")
            if i == 2:
                A("s_waitcnt vmcnt(3)"); self.flag_set("s54")
        A("s_mov_b64 exec, -1\ns_branch L_h_done")

    def kg_addr(self):
        A = self.A
        A(f"s_lshl_b32 s12, s52, 8\ns_lshl_b32 s13, s53, 7\ns_add_u32 s12, s12, s13\ns_add_u32 s12, s12, {L_PAR}")
        A("v_lshl_add_u32 v6, v0, 1, s12")
        A(f"s_lshl_b32 s12, s52, 1\ns_add_u32 s12, s12, {L_PAR+3072}\nv_mov_b32 v10, s12\nv_mov_b32 v1, {LOG2E:#x}")
    def kg_common(self, n, dsk=None):
        A = self.A
        A("ds_read_u16 v2, v10")
        for i in range(n): A(f"ds_read_u16 v{16+i}, v6 offset:{512*i}")
        if dsk: A(f"ds_read_u16 v{dsk}, v10 offset:4")
        A(f"s_waitcnt lgkmcnt({n + (1 if dsk else 0)})")
        A("v_lshlrev_b32 v2, 16, v2\nv_mul_f32 v2, v2, v1\nv_exp_f32 v2, v2")
        A("s_waitcnt lgkmcnt(0)")
        A("v_cvt_pk_bf16_f32 v2, v2, v2")
        for i in range(n): A(f"v_lshlrev_b32 v{16+i}, 16, v{16+i}")
        A("v_lshlrev_b32 v2, 16, v2")
    def cmul(self, d, a, b):
        A = self.A
        self.ncm += 1
        if self.ncm >= self.opt("w2s", 4) and self.ncm % 2 == 0 and self.nw2 < 22 and "sw2" in self.opts:
            A(f"s_load_dword s{78+(self.nw2%14)}, s[34:35], {64*self.nw2}"); self.nw2 += 1
        if "pk" in self.opts:
            A(f"v_pk_mul_f32 {v(d,2)}, {v(a,2)}, {v(b,2)} op_sel:[0,0] op_sel_hi:[1,0]")
            A(f"v_pk_fma_f32 {v(d,2)}, {v(a,2)}, {v(b,2)}, {v(d,2)} op_sel:[1,1,0] op_sel_hi:[0,1,1] neg_lo:[1,0,0]")
        else:
            A(f"v_mul_f32 v{d}, v{a}, v{b}\nv_mul_f32 v{d+1}, v{a+1}, v{b}")
            A(f"v_fma_f32 v{d}, -v{a+1}, v{b+1}, v{d}\nv_fmac_f32 v{d+1}, v{a}, v{b+1}")
    def direct(self, d, L):
        A = self.A
        if L != 1:
            A(f"v_mul_f32 v3, {f2h(float(L)):#x}, v16\nv_mul_f32 v7, {f2h(float(L)):#x}, v17")
            A("v_exp_f32 v3, v3\nv_fract_f32 v7, v7")
        else:
            A("v_exp_f32 v3, v16\nv_fract_f32 v7, v17")
        A(f"v_cos_f32 v{d}, v7\nv_sin_f32 v{d+1}, v7")
        A(f"v_mul_f32 v{d}, v3, v{d}\nv_mul_f32 v{d+1}, v3, v{d+1}")
    PK = 64
    def put(self, row, src, neg=False):
        if row & 1 == 0:
            self.prev = src; return
        p = self.prev; n = '-' if neg else ''; PK = self.PK
        self.A(f"v_cvt_pk_bf16_f32 v{PK+(row>>1)}, v{p}, v{src}")
        self.A(f"v_cvt_pk_bf16_f32 v{PK+8+(row>>1)}, {n}v{p+1}, {n}v{src+1}")
    def flush(self, tb, hh):
        PK = self.PK; a = 4 + hh
        self.A(f"ds_write_b128 v{a}, {v(PK+4*hh,4)} offset:{4096*tb+1024*hh}")
        self.A(f"ds_write_b128 v{a}, {v(PK+8+4*hh,4)} offset:{4096*tb+1024*(2+hh)}")
    def chain(self, va, vb, acc, fr):
        A = self.A
        lg = Cnt(A, "lgkmcnt", 15)
        def rd(q):
            o = (q >> 2)*16384 + (q & 3)*256; b = fr + 8*(q % 3)
            for h in range(2): lg.op(f"ds_read_b64_tr_b16 {v(b+2*h,2)}, v{va} offset:{o+2048*h}", q)
            for h in range(2): lg.op(f"ds_read_b64_tr_b16 {v(b+4+2*h,2)}, v{vb} offset:{o+2048*h}", q)
        for q in range(3): rd(q)
        for q in range(8):
            b = fr + 8*(q % 3)
            lg.need(q)
            A(f"v_mfma_f32_16x16x32_bf16 {v(acc,4)}, {v(b,4)}, {v(b+4,4)}, {v(acc,4) if q else '0'}")
            if q + 3 < 8: rd(q+3)
    def tr_addr(self, d):
        A = self.A
        A(f"v_lshrrev_b32 v{d}, 2, v0\nv_lshlrev_b32 v{d}, 4, v{d}\nv_and_b32 v3, 1, v0\nv_lshl_add_u32 v{d}, v3, 3, v{d}")
        A(f"v_bfe_u32 v3, v0, 1, 1\nv_mul_u32_u24 v3, 1152, v3\nv_xor_b32 v{d}, v{d}, v3")

    def consumer(self):
        A = self.A
        ACC = 16
        AF = [64, 76, 88, 100]
        BFR = [112, 120]
        A(".p2align 8")
        A("L_cons:")
        self.role = "c"
        self.entry()
        A("s_sub_u32 s60, s3, 4")
        A("s_and_b32 s52, s60, 1\ns_lshr_b32 s53, s60, 1")
        A(f"v_mov_b32 v9, {L_FLAG}")
        self.map_n(); self.map_m()
        A("v_and_b32 v1, 15, v0\nv_lshrrev_b32 v130, 4, v0")
        A("v_lshlrev_b32 v13, 1, v0")
        A("s_waitcnt lgkmcnt(0)")
        A("s_barrier")
        A("s_mul_i32 s10, s57, 192")
        srd(A, 4, 38, 1376*2)
        A("buffer_load_ushort v64, v13, s[4:7], s10 offen")
        A("buffer_load_ushort v68, v13, s[4:7], s10 offen offset:128")
        for q in range(64, 88):
            if q & 3: A(f"v_mov_b32 v{q}, 0")
        A("v_mov_b32 v3, 0x3f80")
        for k in range(4): A(f"v_cmp_eq_u32 vcc, {k}, v130\ns_nop 1\nv_cndmask_b32 v{72+4*k}, 0, v3, vcc")
        A("v_bfe_u32 v3, v0, 1, 3\nv_xor_b32 v3, v3, v130\nv_lshlrev_b32 v3, 4, v3\nv_lshl_add_u32 v3, v1, 7, v3")
        A("s_lshl_b32 s10, s60, 12")
        A("v_add_u32 v134, s10, v3\nv_xor_b32 v135, 64, v134")
        A("v_bfe_u32 v3, v0, 2, 2\nv_lshl_add_u32 v3, v130, 3, v3\nv_mul_u32_u24 v3, 192, v3")
        A("v_bfe_u32 v8, v0, 4, 1\nv_lshl_add_u32 v3, v8, 5, v3")
        A("v_and_b32 v8, 3, v0\nv_lshl_add_u32 v136, v8, 3, v3\nv_xor_b32 v137, 32, v136")
        A(f"v_add_u32 v4, {XS[0]}, v134\nv_add_u32 v5, {XS[0]}, v135\nv_add_u32 v6, {WSL[0]}, v136\nv_add_u32 v7, {WSL[0]}, v137")
        xs = [XS[s % XD] for s in range(1, 9)]; ws_ = [WSL[s % 4] for s in range(1, 9)]
        A(f"s_mov_b32 s96, {pack8(xs[:4]):#x}\ns_mov_b32 s97, {pack8(xs[4:]):#x}\ns_mov_b32 s98, {pack8(ws_[:4]):#x}\ns_mov_b32 s99, s98")
        A(f"v_and_b32 v11, 1, v0\nv_lshl_add_u32 v11, v11, 2, v9\nv_add_u32 v11, {F_PX}, v11")
        self.tabptr()
        A(f"s_lshl_b32 s94, s60, 2\ns_add_u32 s94, s94, {L_FLAG+F_FREE}\ns_mov_b32 m0, s94\nv_mov_b32 v14, 0")
        srd(A, 72, 50, WS_END)
        A("v_lshlrev_b32 v13, 4, v0")
        A("s_lshl_b32 s10, s56, 2\ns_add_u32 s58, s10, s60")
        A("s_mul_i32 s10, s58, 86\ns_mul_i32 s11, s57, 6\ns_add_u32 s10, s10, s11\ns_lshl_b32 s10, s10, 10")
        A(f"s_add_u32 s76, s10, {WS_H:#x}\ns_add_u32 s77, s76, 4096")
        A("s_cmp_ge_u32 s57, 7\ns_cselect_b32 s10, 100, 0\ns_lshl_b32 s11, s57, 2\ns_add_u32 s10, s10, s11\ns_lshl_b32 s11, s58, 8\ns_add_u32 s10, s10, s11")
        A(f"s_add_u32 s100, s10, {WS_FH:#x}")
        self.map_tb()
        A(f"s_lshl_b32 s10, s59, 1\ns_add_u32 s10, s10, s52\ns_lshl_b32 s10, s10, 1\ns_add_u32 s10, s10, s53\ns_lshl_b32 s10, s10, 7\ns_add_u32 s101, s10, {WS_FH:#x}")
        A("s_load_dword s16, s[50:51], s101 glc")
        A("s_setprio %d" % self.opt("cprio", 3))
        self.dstamp()
        A("s_waitcnt vmcnt(0)")
        for ft in range(6):
            for ts in range(2):
                A(f"v_mfma_f32_16x16x32_bf16 {v(ACC+8*ft+4*ts,4)}, {v(64+4*(ft>>2),4)}, {v(72+4*(ft&3),4)}, 0")
        self.get_tag(9, 2, 61, "L_c_tag")
        def reads(u):
            st, hf = u >> 1, u & 1; out = []
            if hf == 0:
                for ts in range(2): out.append(f"ds_read_b128 {v(BFR[st]+4*ts,4)}, v{4+st} offset:{2048*ts}")
            for i in range(3):
                ft = 3*hf + i
                for h in range(2):
                    out.append(f"ds_read_b64_tr_b16 {v(AF[u]+4*i+2*h,2)}, v{6+(ft&1)} offset:{st*6144+h*768+(ft>>1)*64}")
            return out
        def mfmas(u):
            st, hf = u >> 1, u & 1
            return [f"v_mfma_f32_16x16x32_bf16 {v(ACC+8*(3*hf+i)+4*ts,4)}, {v(AF[u]+4*i,4)}, {v(BFR[st]+4*ts,4)}, {v(ACC+8*(3*hf+i)+4*ts,4)}" for i in range(3) for ts in range(2)]
        def weave(ms, fl):
            n = len(ms); k = 0
            for i, m in enumerate(ms):
                A(m)
                e = (len(fl)*(i+1) + n - 1)//n
                for x in fl[k:e]: A(x)
                k = e
        FLAGRD = "ds_read_b32 v10, v11"
        FREEF = ["s_mov_b64 exec, 1", "global_load_lds_dword v14, s[92:93]", "s_mov_b64 exec, -1"]
        if "g2only" in self.opts:
            A(f"v_mov_b32 v12, 100\nv_lshl_add_u32 v10, v0, 2, v9\ns_mov_b64 exec, 0xff\nds_write_b32 v10, v12 offset:{F_PX}\ns_mov_b64 exec, -1\ns_sleep 64\ns_branch L_c_e1done")
        A("s_mov_b32 s12, 1")
        self.dstamp()
        A("L_c_poll:")
        self.lds_wait_ge(11, 0, "s12", 10, "L_c_p0", sleep=self.opt("zc", 0))
        A("L_c_rd:")
        for r in reads(0) + reads(1): A(r)
        A(".p2align 3")
        A("L_c_loop:")
        A("s_waitcnt lgkmcnt(6)")
        weave(mfmas(0), [FLAGRD] + reads(2) + ["s_add_u32 s12, s12, 1", "s_cmp_eq_u32 s12, 9", "s_cselect_b32 s12, -1, s12"])
        A("s_waitcnt lgkmcnt(8)")
        weave(mfmas(1), reads(3) + ["s_and_b32 s13, s96, 0xff\ns_and_b32 s15, s98, 0xff", "v_cmp_gt_u32 vcc, s12, v10", "s_lshl_b32 s13, s13, 12\ns_lshl_b32 s15, s15, 12",
                                   "v_add_u32 v4, s13, v134", "v_add_u32 v6, s15, v136", "v_add_u32 v7, s15, v137"])
        A("s_cbranch_vccnz L_c_slow")
        A("s_waitcnt lgkmcnt(6)")
        weave(mfmas(2), reads(0) + ["v_add_u32 v5, s13, v135", "v_add_u32 v14, 4, v14", "s_lshr_b64 s[96:97], s[96:97], 8", "s_lshr_b64 s[98:99], s[98:99], 8"])
        A("s_waitcnt lgkmcnt(8)")
        weave(mfmas(3), ["\n".join(FREEF)] + reads(1))
        A("s_branch L_c_loop")
        A("L_c_slow:")
        A("s_waitcnt lgkmcnt(6)")
        ms = mfmas(2)
        A(ms[0]); A("v_add_u32 v5, s13, v135\nv_add_u32 v14, 4, v14"); A(ms[1]); A(ms[2]); A(ms[3])
        A("s_waitcnt lgkmcnt(0)")
        for x in FREEF: A(x)
        A(FLAGRD)
        A(ms[4]); A(ms[5])
        A("s_cmp_eq_u32 s12, -1\ns_cbranch_scc1 L_c_last")
        A("s_lshr_b64 s[96:97], s[96:97], 8\ns_lshr_b64 s[98:99], s[98:99], 8")
        ms = mfmas(3)
        for m in ms[:4]: A(m)
        A("s_waitcnt lgkmcnt(0)\nv_cmp_gt_u32 vcc, s12, v10")
        A(ms[4]); A(ms[5])
        A("s_cbranch_vccz L_c_rd")
        A("s_branch L_c_poll")
        A("L_c_last:")
        for m in ms: A(m)
        self.dstamp()
        A("s_cmp_eq_u32 s57, 15\ns_cbranch_scc1 L_c_gate")
        for blk in range(3):
            if blk == 1: A("s_cmp_eq_u32 s57, 14\ns_cbranch_scc1 L_c_e1done")
            for ts in range(2):
                o = 64 + 8*blk + 4*ts
                regs = [ACC + 8*(2*blk+(q>>2)) + 4*ts + (q&3) for q in range(8)]
                for r0 in regs: A(f"v_mul_f32 v{r0}, v{r0}, abs(v{r0})")
                for q in range(4): A(f"v_cvt_pk_bf16_f32 v{o+q}, v{regs[2*q]}, v{regs[2*q+1]}")
                for q in range(4): A(f"v_pk_max_i16 v{o+q}, v{o+q}, 0")
                idx = 2*blk + ts
                A(f"buffer_store_dwordx4 {v(o,4)}, v13, s[72:75], s{76 if idx < 4 else 77} offen offset:{(idx&3)*1024} sc1")
        A("s_branch L_c_e1done")
        A("L_c_gate:")
        for ts in range(2):
            A(f"v_add_f32 v{64+ts}, v{ACC+4*ts}, v{ACC+8+4*ts+1}")
            A(f"v_mul_f32 v{64+ts}, {LOG2E ^ 0x80000000:#x}, v{64+ts}")
        A("v_exp_f32 v64, v64\nv_exp_f32 v65, v65\ns_nop 0\nv_add_f32 v64, 1.0, v64\nv_add_f32 v65, 1.0, v65\nv_rcp_f32 v64, v64\nv_rcp_f32 v65, v65")
        A("s_lshr_b32 s10, s58, 1\ns_and_b32 s11, s58, 1\ns_lshl_b32 s12, s10, 7\ns_lshl_b32 s13, s11, 2\ns_add_u32 s12, s12, s13")
        A(f"s_add_u32 s100, s12, {WS_FG:#x}\ns_lshl_b32 s10, s12, 1\ns_add_u32 s10, s10, {WS_G:#x}")
        A("s_mov_b64 exec, 0xffff")
        A("buffer_store_dwordx2 v[64:65], v13, s[72:75], s10 offen sc1")
        A("s_mov_b64 exec, -1")
        A("L_c_e1done:")
        A("s_waitcnt lgkmcnt(0)")
        A("s_setprio %d" % self.opt("c2p", 1))
        self.dstamp()
        self.gemm2()

    def gemm2(self):
        A = self.A
        AC2 = 16
        NH = self.opt("nh", 12); HB = 48
        WF = [HB+4*NH+8*i for i in range(4)]
        AX = WF[3] + 8
        assert AX + 16 <= 167
        AH, MI, FRA, FRV, RW, RR, RE, RO, OW, OR_, OG, PB = AX, AX+4, AX+6, AX+7, AX+8, AX+9, AX+10, AX+11, AX+12, AX+13, AX+14, AX+15
        A("v_lshrrev_b32 v2, 2, v0\nv_lshlrev_b32 v2, 7, v2")
        A("v_bfe_u32 v3, v0, 3, 2\ns_lshl_b32 s10, s53, 1\nv_xor_b32 v3, s10, v3\nv_lshl_add_u32 v2, v3, 5, v2")
        A("v_and_b32 v3, 3, v0\nv_lshl_add_u32 v2, v3, 3, v2")
        A(f"v_mov_b32 v{MI}, v2\nv_xor_b32 v{MI+1}, 32, v2")
        A("s_mul_i32 s10, s53, 12288")
        A("v_add_u32 v4, s10, v2")
        for k in range(1, 4): A(f"v_xor_b32 v{4+k}, {32*k}, v4")
        for k in range(4): A(f"v_add_u32 v{AH+k}, {52*KB}, v{4+k}")
        A("s_lshl_b32 s10, s59, 1\ns_add_u32 s10, s10, s52\ns_mul_i32 s10, s10, 86")
        A("s_add_u32 s11, s10, 84\ns_lshl_b32 s11, s11, 10")
        A(f"s_add_u32 s76, s11, {WS_H:#x}")
        A("s_mul_i32 s11, s53, 42\ns_add_u32 s10, s10, s11\ns_lshl_b32 s10, s10, 10")
        A(f"s_add_u32 s77, s10, {WS_H:#x}")
        A(f"v_and_b32 v{FRA}, 3, v0\nv_lshl_add_u32 v{FRA}, v{FRA}, 2, v9\nv_mov_b32 v{PB}, v11")
        A(f"s_lshl_b32 s10, s53, 2\ns_add_u32 s10, s10, {L_FLAG+F_PX}\nv_mov_b32 v11, s10")
        A("v_mov_b32 v8, s94\nv_mov_b32 v12, 8")
        self.rot(10)
        A(f"s_mul_i32 s10, s10, 6144\ns_add_u32 s10, s10, s77\ns_add_u32 s11, s77, {7*6144}")
        for g in range(7):
            A(f"s_mov_b32 s{78+2*g}, s10\ns_add_u32 s{79+2*g}, s10, 4096")
            if g < 6: A("s_add_u32 s10, s10, 6144\ns_cmp_eq_u32 s10, s11\ns_cselect_b32 s10, s77, s10")
        A("s_lshl_b32 s10, s60, 12")
        A(f"s_add_u32 s11, s10, {L_RED}\nv_add_u32 v{RW}, s11, v13")
        A(f"s_xor_b32 s11, s10, 8192\ns_add_u32 s11, s11, {L_RED}\nv_add_u32 v{RR}, s11, v13")
        A(f"s_lshl_b32 s11, s53, 13\ns_lshl_b32 s12, s52, 11\ns_add_u32 s11, s11, s12\ns_add_u32 s11, s11, {L_KF}\nv_add_u32 v{RE}, s11, v13")
        A(f"s_lshl_b32 s11, s52, 3\ns_add_u32 s11, s11, {L_OMG}\nv_lshl_add_u32 v{RO}, v1, 4, s11")
        A("s_mul_i32 s10, s60, 2560")
        A(f"s_add_u32 s10, s10, {L_OT}")
        A(f"v_mul_u32_u24 v2, 80, v1\nv_lshrrev_b32 v3, 4, v0\nv_lshl_add_u32 v2, v3, 3, v2\nv_add_u32 v{OW}, s10, v2")
        A(f"v_lshrrev_b32 v3, 2, v0\nv_mul_u32_u24 v2, 80, v3\nv_and_b32 v10, 3, v0\nv_lshl_add_u32 v2, v10, 4, v2\nv_add_u32 v{OR_}, s10, v2")
        A(f"v_lshlrev_b32 v3, 10, v3\nv_lshl_add_u32 v{OG}, v10, 4, v3")
        srd(A, 4, 46, 2048*1024)
        A("s_lshl_b32 s10, s59, 1\ns_add_u32 s10, s10, s52\ns_lshl_b32 s10, s10, 15")
        A("s_lshl_b32 s11, s55, 7\ns_add_u32 s10, s10, s11\ns_lshl_b32 s11, s53, 6\ns_add_u32 s96, s10, s11")
        A("s_add_u32 s97, s96, 16384")
        A("s_waitcnt vmcnt(0)")
        self.flag_set("s100")
        A("s_cmp_lg_u32 s57, 14\ns_cbranch_scc1 L_g2_f1\ns_sub_u32 s100, s100, 128\ns_mov_b32 s8, s62\ns_atomic_swap s8, s[50:51], s100\nL_g2_f1:")
        self.dstamp()
        if "g2only" not in self.opts: self.flag_wait(8, "s101", "L_g2_w", sleep=self.opt("hsl", 0))
        self.dstamp()
        hfl = "" if "hlp" in self.opts else ("nt" if "hnt" in self.opts else ("sc0 sc1" if "hsys" in self.opts else "sc1"))
        def hload(f):
            r = HB + 4*(f % NH)
            if f >= 42: return f"buffer_load_dwordx4 {v(r,4)}, v13, s[72:75], s76 offen offset:{(f-42)*1024} {hfl}"
            g, s_ = divmod(f, 6)
            return f"buffer_load_dwordx4 {v(r,4)}, v13, s[72:75], s{78+2*g+(s_>>2)} offen offset:{(s_&3)*1024} {hfl}"
        vm = Cnt(A, "vmcnt", 63); lg = Cnt(A, "lgkmcnt", 15)
        N0 = self.opt("hpre", 10)
        def slot_of(q): return 0 if q == 42 else 1 - (q & 1)
        def wreads(q):
            buf = WF[q & 3]; o = []
            for a_ in range(2):
                for h in range(2):
                    if q == 42: ar, off = MI+a_, L_MINI + h*2048
                    else:
                        b, s_ = divmod(q, 6); base = BLK[b % 5]; k = 2*slot_of(q) + a_
                        hi = base >= 52*KB
                        ar = (AH if hi else 4) + k; off = base - (52*KB if hi else 0) + (s_ >> 1)*4096 + h*2048
                    o.append(f"ds_read_b64_tr_b16 {v(buf+4*a_+2*h,2)}, v{ar} offset:{off}")
            return o
        progs = []
        def progcheck(b):
            Lp, Lr = A.lab("L_g2_pp"), A.lab("L_g2_pr")
            A(f"s_cbranch_vccnz {Lp}")
            A(f"{Lr}:")
            progs.append((Lp, Lr, 9+b))
        for f in range(4): vm.op(hload(f), f)
        self.lds_wait_ge(PB, 0, 9, 10, "L_g2_p0")
        for q in range(3):
            for r in wreads(q): lg.op(r, ("w", q))
        for f in range(4, N0): vm.op(hload(f), f)
        nxt = N0
        for q in range(43):
            g, s_ = divmod(q, 6)
            buf = WF[q & 3]; f0 = q & ~1; sl = slot_of(q)
            def mm(a_, ts):
                acc = v(AC2+16*sl+8*a_+4*ts, 4)
                A(f"v_mfma_f32_16x16x32_bf16 {acc}, {v(buf+4*a_,4)}, {v(HB+4*((f0+ts) % NH),4)}, {acc if q >= 2 else '0'}")
            if q & 1 == 0: vm.need(f0+1)
            if q == 0 or ("gfine" in self.opts and q % 6 == 0): self.dstamp()
            lg.need(("w", q))
            rs = wreads(q+3) if q+3 <= 42 else []
            mm(0, 0)
            if s_ == 5 and g < 4 and "g2only" not in self.opts:
                A("v_add_u32 v12, 1, v12\ns_mov_b64 exec, 1")
                lg.op("ds_write_b32 v8, v12")
                A("s_mov_b64 exec, -1")
            if s_ == 0 and g < 6: lg.op("ds_read_b32 v10, v11", "flag")
            if q == 38: lg.op(f"ds_read_b32 v{FRV}, v{FRA} offset:{F_FREE}", "free")
            if s_ == 2 and g < 6:
                lg.need("flag"); A(f"v_cmp_gt_u32 vcc, {10+g}, v10")
            if s_ == 3 and g < 6: progcheck(g+1)
            mm(0, 1)
            for r in rs[:2]: lg.op(r, ("w", q+3))
            mm(1, 0)
            for r in rs[2:]: lg.op(r, ("w", q+3))
            mm(1, 1)
            if nxt <= 43 and nxt - f0 < NH: vm.op(hload(nxt), nxt); nxt += 1
            if nxt <= 43 and nxt - f0 < NH and q < NH - N0: vm.op(hload(nxt), nxt); nxt += 1
            if q == 40:
                lg.need("free"); A(f"v_cmp_gt_u32 vcc, 12, v{FRV}")
            if q == 41:
                A("s_cbranch_vccz L_g2_red")
                self.lds_wait_ge(FRA, F_FREE, 12, FRV, "L_g2_fw")
                A("L_g2_red:")
                A("s_nop 2")
                for k in range(4): lg.op(f"ds_write_b128 v{RW}, {v(AC2+16+4*k,4)} offset:{k*1024}")
        assert nxt == 44
        self.dstamp()
        A("s_waitcnt lgkmcnt(0)")
        A("s_barrier")
        self.dstamp()
        A(f"ds_read_b64 v[10:11], v{RO}")
        for q in range(4):
            A(f"ds_read_b128 {v(48+4*q,4)}, v{RR} offset:{q*1024}")
            A(f"ds_read_b128 {v(64+4*q,4)}, v{RE} offset:{(q>>1)*4096+(q&1)*1024}")
        for q in range(4):
            A(f"s_waitcnt lgkmcnt({6-q})")
            for r in range(0, 4, 2):
                A(f"v_pk_add_f32 {v(AC2+4*q+r,2)}, {v(AC2+4*q+r,2)}, {v(48+4*q+r,2)}")
            for r in range(0, 4, 2):
                A(f"v_pk_fma_f32 {v(64+4*q+r,2)}, {v(AC2+4*q+r,2)}, v[10:11], {v(64+4*q+r,2)} op_sel:[0,{q&1},0] op_sel_hi:[1,{q&1},1]")
            A(f"v_cvt_pk_bf16_f32 v{80+2*q}, v{64+4*q}, v{64+4*q+1}")
            A(f"v_cvt_pk_bf16_f32 v{81+2*q}, v{64+4*q+2}, v{64+4*q+3}")
            A(f"ds_write_b64 v{OW}, {v(80+2*q,2)} offset:{32*(q>>1)+1280*(q&1)}")
        A(f"ds_read_b128 v[88:91], v{OR_}\nds_read_b128 v[92:95], v{OR_} offset:1280")
        ofl = "" if "oplain" in self.opts else "sc1"
        A("s_waitcnt lgkmcnt(1)")
        A(f"buffer_store_dwordx4 v[88:91], v{OG}, s[4:7], s96 offen {ofl}")
        A("s_waitcnt lgkmcnt(0)")
        A(f"buffer_store_dwordx4 v[92:95], v{OG}, s[4:7], s97 offen {ofl}")
        self.dstamp()
        if self.ts:
            A("s_waitcnt vmcnt(0)")
            self.dstamp()
        if "rt" in self.opts:
            A("s_waitcnt vmcnt(0)\ns_memrealtime s[64:65]\ns_lshl_b32 s8, s2, 2\ns_add_u32 s8, s8, s60\ns_lshl_b32 s8, s8, 3")
            A(f"s_add_u32 s8, s8, {WS_TS:#x}\nv_mov_b32 v4, s8\ns_waitcnt lgkmcnt(0)")
            A("v_mov_b32 v2, s68\nv_mov_b32 v3, s64\ns_mov_b64 exec, 1\nglobal_store_dwordx2 v4, v[2:3], s[50:51]")
        self.end()
        for Lp, Lr, n in progs:
            A(f"{Lp}:")
            self.lds_wait_ge(11, 0, n, 10, "L_g2_pw")
            A(f"s_branch {Lr}")

    def sbar(self, k):
        A = self.A
        A("s_waitcnt lgkmcnt(0)")
        A(f"s_mov_b64 exec, 1\nds_add_u32 v9, v8 offset:{F_SB}\ns_mov_b64 exec, -1")
        self.lds_wait_ge(9, F_SB, 4*k, 10, "L_sb")

    def ssm(self):
        A = self.A
        A(".p2align 8")
        A("L_ssm:")
        self.role = "s"
        self.entry()
        A("s_sub_u32 s60, s3, 8")
        A("s_and_b32 s52, s60, 1\ns_lshr_b32 s53, s60, 1")
        A("s_lshl_b32 s13, s2, 2")
        self.pf_setup()
        A("s_load_dword s14, s[30:31], s13\ns_load_dword s15, s[32:33], s13")
        A("s_barrier")
        self.pf([4])
        if "stop0" in self.opts or "g2only" in self.opts: A("s_endpgm")
        A("s_setprio %d" % self.opt("sprio", 1))
        self.map_tb()
        A(f"v_mov_b32 v9, {L_FLAG}\nv_mov_b32 v8, 1")
        srd(A, 72, 50, WS_END)
        A("v_and_b32 v123, 15, v0\nv_lshrrev_b32 v124, 4, v0\nv_lshlrev_b32 v13, 4, v0")
        A("s_lshl_b32 s10, s55, 7\ns_lshl_b32 s9, s60, 5\ns_add_u32 s10, s10, s9\nv_lshl_add_u32 v3, v124, 3, s10")
        A("global_load_dwordx2 v[98:99], v3, s[42:43]")
        A(f"s_mul_i32 s12, s52, 4608\ns_add_u32 s12, s12, {L_UL}\nv_lshl_add_u32 v12, v0, 3, s12\nv_mov_b64 v[2:3], 0")
        A("s_mov_b32 exec_hi, 0x0fffffff\nds_write_b64 v12, v[2:3]\ns_mov_b64 exec, -1")
        SEL = 158
        A("v_and_b32 v1, 31, v0\nv_lshrrev_b32 v2, 5, v0\nv_lshlrev_b32 v2, 4, v2\nv_sub_u32 v1, v1, v2")
        A("v_and_b32 v2, 1, v1\nv_lshlrev_b32 v2, 4, v2\nv_mov_b32 v3, 0x3f80\nv_lshlrev_b32 v2, v2, v3\nv_ashrrev_i32 v1, 1, v1")
        for j in range(8):
            A(f"v_cmp_eq_u32 vcc, {j}, v1\ns_nop 1\nv_cndmask_b32 v{SEL+j}, 0, v2, vcc")
        A(f"s_lshl_b32 s12, s52, 8\ns_lshl_b32 s13, s53, 7\ns_add_u32 s12, s12, s13\ns_add_u32 s12, s12, {L_PAR}")
        A("v_lshl_add_u32 v6, v0, 1, s12")
        A(f"s_mul_i32 s11, s52, 5632\ns_mul_i32 s12, s53, 2816\ns_add_u32 s57, s11, s12\ns_add_u32 s57, s57, {L_KP}\ns_add_u32 s56, s11, {L_KP}")
        A("v_lshlrev_b32 v3, 2, v124\nv_lshl_add_u32 v120, v123, 4, v3")
        A("v_lshl_add_u32 v3, v123, 3, v3\nv_lshlrev_b32 v2, 6, v124\nv_lshl_add_u32 v4, v123, 2, v2")
        A("v_cmp_gt_u32 vcc, 2, v124")
        A("v_lshl_add_u32 v122, v123, 1, v2\nv_add_u32 v122, 512, v122")
        A("v_cndmask_b32 v121, v4, v3, vcc\nv_add_u32 v121, 256, v121\nv_mov_b32 v125, s57")
        for r_ in (120, 121, 122): A(f"v_lshrrev_b32 v2, 5, v{r_}\nv_add_u32 v{r_}, v{r_}, v2\nv_lshl_add_u32 v{r_}, v{r_}, 2, s57")
        A(f"s_mul_i32 s11, s52, {KCH}\ns_add_u32 s11, s11, {L_KF}\ns_lshl_b32 s12, s53, 10\ns_add_u32 s12, s12, s11\ns_add_u32 s12, s12, 64")
        A("v_lshl_add_u32 v12, v0, 4, s12")
        A("v_mul_u32_u24 v3, 2240, v124\nv_lshl_add_u32 v3, v123, 2, v3\ns_mul_i32 s12, s53, 2112\ns_add_u32 s12, s12, s11\nv_add_u32 v3, s12, v3\nv_lshl_add_u32 v11, v0, 2, s11\nv_mov_b32 v2, 0")
        A("ds_write_b32 v3, v2\ns_mov_b64 exec, 0xffff\nds_write_b32 v11, v2 offset:9216\ns_mov_b64 exec, -1")
        A("v_mul_u32_u24 v119, 2240, v0\nv_add_u32 v119, s11, v119")
        A(f"s_mul_i32 s13, s52, 4608\ns_add_u32 s13, s13, {L_UL}")
        A("v_lshlrev_b32 v3, 4, v124\nv_lshl_add_u32 v3, v123, 5, v3\nv_add_u32 v14, s13, v3")
        A("v_sub_u32 v3, 15, v123\nv_and_b32 v15, 3, v3\nv_mul_u32_u24 v15, 2240, v15\nv_lshrrev_b32 v3, 2, v3\nv_lshl_add_u32 v3, v124, 1, v3\nv_lshl_add_u32 v15, v3, 3, v15\nv_add_u32 v15, s11, v15")
        A("v_lshlrev_b32 v3, 2, v124\nv_sub_u32 v3, v3, v123\nv_add_u32 v3, 2255, v3\nv_lshl_add_u32 v118, v3, 2, s11")
        A(f"v_and_b32 v3, 7, v0\nv_lshl_add_u32 v62, v3, 2, v9")
        A("v_lshlrev_b32 v3, 2, v3\nv_mov_b32 v63, %s\nv_lshrrev_b32 v63, v3, v63\nv_and_b32 v63, 15, v63" % (hex(0x11*self.opt("lpa", 0)) if EARLY else "0x66660088"))
        A(f"v_and_b32 v3, 1, v0\nv_mul_u32_u24 v96, {F_UD+4}, v3\nv_add_u32 v96, v96, v9\nv_lshlrev_b32 v3, 1, v3\nv_sub_u32 v97, 4, v3")
        GA = 100
        A("s_lshl_b32 s12, s53, 9\ns_sub_u32 s12, 1023, s12\nv_lshlrev_b32 v1, 3, v0\nv_sub_u32 v1, s12, v1\nv_cvt_f32_i32 v4, v1")
        for i in range(11):
            A(f"v_subrev_u32 v2, {i}, v1")
            A(f"v_subrev_f32 v3, {f2h(float(i)):#x}, v4")
            A("v_cvt_pk_bf16_f32 v3, v3, 0")
            A("v_min_i32 v2, 128, v2")
            A("v_subrev_u32 v3, 0x4280, v3")
            A("v_max_i32 v3, v3, v2")
            if i >= 8: A("v_min_u32 v3, 660, v3")
            A("v_lshrrev_b32 v2, 5, v3\nv_add_u32 v3, v3, v2")
            A(f"v_lshl_add_u32 v{GA+i}, v3, 2, s56")
        A(f"v_lshlrev_b32 v1, 1, v0\nv_sub_u32 v{GA+11}, 639, v1\nv_sub_u32 v{GA+12}, 640, v1")
        for r_ in (GA+11, GA+12): A(f"v_lshrrev_b32 v3, 5, v{r_}\nv_add_u32 v{r_}, v{r_}, v3\nv_lshl_add_u32 v{r_}, v{r_}, 2, s56")
        self.dstamp()
        A("s_mul_i32 s10, s2, 5504\ns_mul_i32 s11, s60, 1408\ns_min_u32 s11, s11, 4096\ns_add_u32 s10, s10, s11\ns_add_u32 s34, s40, s10\ns_addc_u32 s35, s41, 0")
        A("s_lshl_b32 s10, s55, 3\ns_lshr_b32 s11, s59, 1\ns_xor_b32 s11, s11, s59\ns_and_b32 s11, s11, 4\ns_add_u32 s10, s10, s11\ns_add_u32 s10, s10, s60\ns_lshl_b32 s10, s10, 7")
        A(f"s_add_u32 s100, s10, {WS_FA:#x}\ns_lshl_b32 s10, s59, 7\ns_add_u32 s101, s10, {WS_FG:#x}")
        self.lds_wait_ge(9, F_PAR, 1, 10, "L_s_par", sleep=self.opt("zs", 2))
        for i in range(6): A(f"ds_read_u16 v{16+i}, v6 offset:{PARO[i]}")
        A("s_lshl_b32 s11, s52, 4\ns_lshr_b32 s14, s14, s11\ns_lshl_b32 s14, s14, 16\ns_lshr_b32 s15, s15, s11\ns_lshl_b32 s15, s15, 16")
        A(f"v_mov_b32 v1, {LOG2E:#x}\nv_mul_f32 v2, s14, v1\nv_exp_f32 v2, v2")
        A("s_waitcnt lgkmcnt(0)")
        self.dstamp()
        for i in range(6): A(f"v_lshlrev_b32 v{16+i}, 16, v{16+i}")
        A("v_cvt_pk_bf16_f32 v2, v2, v2\nv_lshlrev_b32 v2, 16, v2")
        A("v_mul_f32 v16, v2, v16\nv_mul_f32 v17, v2, v17\nv_mul_f32 v18, v2, v18\nv_mul_f32 v19, v2, v19")
        A(f"v_mul_f32 v16, v1, v16\nv_mul_f32 v17, {INV2PI:#x}, v17")
        A("v_mul_f32 v20, 0x1f800000, v20\nv_mul_f32 v21, 0x1f800000, v21")
        E1, E16, E256, PA, PB, ONE, BS = 22, 24, 26, 28, 30, 4, [46, 48]
        PK, BF, TRE, TIM, KA = self.PK, 80, 126, 142, 50
        def ep(k): return E1 if k == 1 else (32 + k - 2 if k % 2 == 0 else PA)
        def tr(dre, hh):
            for d, p in ((dre, PK), (TIM, PK+8)):
                A(f"v_mfma_f32_32x32x16_bf16 {v(d,16)}, {v(p+4*hh,4)}, {v(SEL+4*hh,4)}, {v(d,16) if hh else '0'}")
        def repack(dre):
            for q in range(4):
                A(f"v_cvt_pk_bf16_f32 v{dre+4*q}, v{dre+4*q}, v{dre+4*q+1}\nv_cvt_pk_bf16_f32 v{dre+4*q+1}, v{dre+4*q+2}, v{dre+4*q+3}")
            for q in range(4):
                A(f"v_cvt_pk_bf16_f32 v{dre+4*q+2}, v{TIM+4*q}, v{TIM+4*q+1}\nv_cvt_pk_bf16_f32 v{dre+4*q+3}, v{TIM+4*q+2}, v{TIM+4*q+3}")
        def kmf(k):
            for q in range(4):
                A(f"v_mfma_f32_16x16x32_bf16 {v(KA+4*k,4)}, {v(TRE+4*q,4)}, {v(BF+4*q,4)}, {v(KA+4*k,4) if q else '0'}")
        self.direct(E16, 16)
        self.cmul(PA, 20, 18)
        cur, nxt = PA, PB
        for b in range(16):
            self.put(b, cur, neg=True)
            if b < 15:
                self.cmul(nxt, cur, E16); cur, nxt = nxt, cur
            if b == 7: tr(BF, 0)
        self.direct(E1, 1)
        tr(BF, 1)
        if "nowarm" not in self.opts: A("s_load_dword s17, s[50:51], s101 glc")
        A(f"v_mov_b32 v{ONE}, 1.0\nv_mov_b32 v{ONE+1}, 0")
        self.put(0, ONE); self.put(1, E1)
        for k in range(2, 16):
            self.cmul(ep(k), ep(k-1), E1); self.put(k, ep(k))
            if k == 7: repack(BF)
            if k == 8: tr(TRE, 0)
        self.direct(E256, 256)
        tr(TRE, 1)
        self.put(0, E256)
        for r in range(1, 8):
            self.cmul(PA if r & 1 else PB, E256, ep(2*r)); self.put(r, PA if r & 1 else PB)
        repack(TRE)
        self.cmul(BS[0], E256, E256)
        kmf(0)
        tr(TRE, 0)
        for a_ in range(2):
            self.put(8+4*a_, BS[a_])
            for r in range(1, 4):
                self.cmul(PA if r & 1 else PB, BS[a_], ep(4*r)); self.put(8+4*a_+r, PA if r & 1 else PB)
            self.cmul(BS[1-a_], BS[a_], E256)
        tr(TRE, 1)
        cur = 0
        for a_ in range(4):
            self.put(2*a_, BS[cur])
            self.cmul(PA, BS[cur], ep(8)); self.put(2*a_+1, PA)
            self.cmul(BS[1-cur], BS[cur], E256); cur = 1-cur
        repack(TRE)
        self.put(8, BS[cur]); self.put(9, BS[cur])
        kmf(1)
        tr(TRE, 0); tr(TRE, 1)
        self.get_tag(9, 2, 61, "L_s_tag")
        A("v_mov_b32 v1, v123\nv_mov_b32 v2, v124\nv_mov_b32 v24, v15\nv_mov_b32 v21, v118\ns_nop 1")
        repack(TRE)
        A("s_cmp_eq_u32 s53, 0\ns_cselect_b32 s15, s15, 0")
        kmf(2)
        A("v_mov_b32 v6, 0\nv_mov_b32 v7, 0")
        A("v_writelane_b32 v6, s15, 0")
        A(f"v_fmac_f32 v{KA}, 0x1f800000, v6")
        A("s_waitcnt vmcnt(0)\nv_mov_b32 v22, v98\nv_mov_b32 v23, v99")
        self.dstamp()
        A("v_lshlrev_b32 v3, 3, v2\nv_sub_u32 v3, v1, v3\nv_mov_b32 v16, 0x3f80\nv_mov_b32 v17, 0x3f800000")
        for bx, (c0, w_) in enumerate(((16-5, 7), (24-12, 9))):
            for d_ in range(4):
                A(f"v_add_u32 v18, {c0-2*d_}, v3\nv_add_u32 v19, {c0-2*d_-1}, v3\nv_cmp_gt_u32 vcc, {w_}, v18\nv_cmp_gt_u32 s[10:11], {w_}, v19\ns_nop 0")
                A(f"v_cndmask_b32 v18, 0, v16, vcc\nv_cndmask_b32 v19, 0, v17, s[10:11]\nv_or_b32 v{156+4*bx+d_}, v18, v19")
        A(f"s_lshl_b32 s10, s2, 13\ns_lshl_b32 s11, s52, 12\ns_add_u32 s10, s10, s11\ns_add_u32 s54, s10, {WS_A:#x}")
        A("v_and_b32 v3, 7, v0\nv_lshlrev_b32 v6, 4, v3\nv_lshl_add_u32 v6, v2, 7, v6\nv_bfe_u32 v4, v0, 3, 1\nv_lshl_add_u32 v6, v4, 9, v6")
        A(f"s_and_b32 s11, s62, 1\ns_sub_u32 s11, 0, s11\ns_xor_b32 s57, s11, {TM:#x}\ns_mov_b32 s56, 0xbfffbfff")
        A("v_lshrrev_b32 v3, v3, s57\nv_and_b32 v3, 1, v3\nv_mul_u32_u24 v3, 0x4000, v3\nv_lshl_or_b32 v15, v3, 16, v3")
        A(f"s_lshl_b32 s58, s60, 12\ns_add_u32 s58, s58, {L_KF}")
        KX = 32
        GV = 126
        A("s_setprio %d" % self.opt("slp", 3))
        self.lds_wait_ge(62, F_PX, "v63", 10, "L_s_lp", sleep=self.opt("zs", 2))
        self.dstamp()
        for k_ in range(2):
            A(f"ds_write2_b32 v{120+k_}, v{KA+4*k_}, v{KA+4*k_+1} offset0:0 offset1:1\nds_write2_b32 v{120+k_}, v{KA+4*k_+2}, v{KA+4*k_+3} offset0:2 offset1:3")
        A(f"s_mov_b32 exec_hi, 1\nds_write2_b32 v122, v{KA+8}, v{KA+9} offset0:0 offset1:1")
        A(f"s_mov_b32 exec_hi, 0\nds_write2_b32 v122, v{KA+10}, v{KA+11} offset0:33 offset1:34")
        A(f"s_mov_b64 exec, 1\nds_write_b32 v125, v7 offset:{680*4}\nds_add_u32 v9, v8 offset:{F_KS}")
        A("s_mov_b64 exec, -1")
        if "fine" in self.opts: self.dstamp()
        self.lds_wait_ge(9, F_KS, 4, 10, "L_s_ks")
        if "fine" in self.opts: self.dstamp()
        for i in range(13): A(f"ds_read2st64_b32 {v(GV+2*i,2)}, v{GA+i} offset0:0 offset1:11")
        for i in range(13):
            if i in (0, 4, 9): A(f"s_waitcnt lgkmcnt({(9, 4, 0)[(0, 4, 9).index(i)]})")
            A(f"v_add_f32 v{GV+2*i}, v{GV+2*i}, v{GV+2*i+1}")
        for c_ in range(4):
            for i in range(4): A(f"v_cvt_pk_bf16_f32 v{KX+4*c_+i}, v{GV+2*(c_+2*i)}, v{GV+2*(c_+2*i+1)}")
            A(f"ds_write_b128 v12, {v(KX+4*c_,4)} offset:{2240*c_}")
        A("s_cmp_eq_u32 s53, 0\ns_cbranch_scc1 L_s_g0")
        A(f"v_cvt_pk_bf16_f32 v48, v{GV+22}, v{GV+24}")
        A("ds_write_b32 v11, v48 offset:8960")
        A("s_branch L_s_gj")
        A("L_s_g0:")
        A(f"v_readfirstlane_b32 s10, v{KX}\nv_readfirstlane_b32 s11, v{KX+4}\ns_nop 0\ns_and_b32 s12, s10, 0xffff0000")
        for i in range(4): A(f"v_mov_b32 v{48+i}, s10")
        A("v_writelane_b32 v48, 0, 0\nv_writelane_b32 v48, 0, 1\nv_writelane_b32 v48, s12, 2\nv_writelane_b32 v49, s12, 0\nv_writelane_b32 v51, s11, 3")
        A("s_mov_b64 exec, 15\nds_write_b128 v119, v[48:51] offset:48\ns_mov_b64 exec, -1")
        A("L_s_gj:")
        if "fine" in self.opts: self.dstamp()
        A(f"s_mov_b64 exec, 1\nds_add_u32 v9, v8 offset:{F_SB}\ns_mov_b64 exec, -1")
        self.lds_wait_ge(96, F_SB, "v97", 10, "L_sb", sleep=(1 if EARLY else 0))
        if self.opt("cvg", 0): self.lds_wait_ge(9, F_PW, self.opt("cvg", 0), 10, "L_s_cg", sleep=1)
        A("s_setprio %d" % self.opt("scv", 2))
        self.dstamp()
        if "nocv" in self.opts: A("s_endpgm")
        def conv(hf):
            lg = Cnt(A, "lgkmcnt", 15)
            tiles = [0, 1, 2, 3, 4] if hf == 0 else [5, 6, 7]
            us = list(range(0, 5)) if hf == 0 else list(range(2, 8))
            acc = {0: 28, 1: 32, 2: 36, 3: 40, 4: 44} if hf == 0 else {5: 28, 6: 32, 7: 16}
            r0 = 48 if hf == 0 else 36
            sz = 16 + 4*len(us)
            kreg = lambda rho, sg: r0 + sz*(rho & 1) + 4*sg
            ureg = lambda rho, T: r0 + sz*(rho & 1) + 16 + 4*us.index(T)
            X = r0 + 2*sz
            taus = [0] if hf == 0 else [0, 1, 2, 3]
            nt = len(taus)
            T0, U0, T1, U9 = X, X+4, X+4+4*nt, X+8+4*nt
            assert U9 + 4*nt <= 156
            def kr(dst, s_): return [f"ds_read_b64 {v(dst+2*h,2)}, v24 offset:{64*(32-s_)+8*h}" for h in range(2)]
            def ur(dst, off): return [f"ds_read_b128 {v(dst,4)}, v14 offset:{off}"]
            prog = []; reads = []
            started = set()
            def M(d, a_, b_, needs, fresh=False):
                z = fresh or (d not in started); started.add(d)
                prog.append((f"v_mfma_f32_16x16x32_bf16 {v(d,4)}, {v(a_,4)}, {v(b_,4)}, {'0' if z else v(d,4)}", needs))
            pstart = {}
            for rho in range(8):
                pstart[rho] = len(prog)
                e = pstart[rho-1] if rho >= 1 else 0
                seen = set()
                for sg in range(4):
                    for T in tiles:
                        if T < sg: continue
                        for tag, tx in ((("k", rho, sg), kr(kreg(rho, sg), 8*sg+rho)), (("u", rho, T-sg), ur(ureg(rho, T-sg), 64*(7-rho)+512*(T-sg)))):
                            if tag not in seen:
                                seen.add(tag); reads.append((tag, tx, e))
                        M(acc[T], ureg(rho, T-sg), kreg(rho, sg), [("k", rho, sg), ("u", rho, T-sg)])
                if rho == 1:
                    reads.append(("k32", kr(T1, 32), 0))
                    for t in taus: reads.append((("x", t), ur(U0+4*t, 448+512*t) + ur(U9+4*t, 432+512*t), 0))
                    for T in tiles:
                        if T >= 4: M(acc[T], U0+4*(T-4), T1, ["k32", ("x", T-4)])
                    for t in taus:
                        M(T0+4*t, U0+4*t, 156, [("x", t)], True); M(T1+4*t, U9+4*t, 160, [], True)
                if rho == 2:
                    for t in taus:
                        prog.append(("\n".join(f"v_cvt_pk_bf16_f32 v{T0+4*t+r}, v{T0+4*t+r}, v{T1+4*t+r}" for r in range(4)), []))
                    cvt_end = len(prog)
                if rho == 4:
                    for dl in range(nt):
                        reads.append((("a", dl), [f"ds_read2_b32 {v(U9+4*dl+2*h,2)}, v21 offset0:{16*(3-dl)+2*h} offset1:{16*(3-dl)+2*h+1}" for h in range(2)], cvt_end))
                    for T in tiles:
                        for t in taus:
                            if T-4-t >= 0: M(acc[T], U9+4*(T-4-t), T0+4*t, [("a", T-4-t)])
            flat = [(tag if k == len(tx)-1 else None, t, e) for tag, tx, e in reads for k, t in enumerate(tx)]
            ri = 0
            def issue(i, n):
                nonlocal ri
                while n > 0 and ri < len(flat) and flat[ri][2] <= i and len(lg.q) < 15:
                    lg.op(flat[ri][1], flat[ri][0]); ri += 1; n -= 1
            issue(0, 15)
            for i, (text, needs) in enumerate(prog):
                for tg in needs:
                    while tg not in lg.issued:
                        if len(lg.q) >= 15:
                            A("s_waitcnt lgkmcnt(11)"); lg.q = lg.q[-11:]
                        assert flat[ri][2] <= i
                        issue(i, 1)
                if any(tg in lg.q for tg in needs):
                    cand = [tg for tg in needs if tg in lg.q]
                    if i > 0: cand += [tg for x in prog[i+1:i+3] for tg in x[1] if tg in lg.q and lg.q.index(tg) < 6]
                    lg.need(max(cand, key=lambda t: lg.q.index(t)))
                A(text)
                issue(i+1, 2)
            assert ri == len(flat)
            self.dstamp()
            A("s_nop 5")
            P = 48 if hf == 0 else 36
            for k, T in enumerate(tiles):
                for h in range(2): A(f"v_cvt_pk_bf16_f32 v{P+2*k+h}, v{acc[T]+2*h}, v{acc[T]+2*h+1}")
            npair = (len(tiles)+1)//2
            for p in range(npair):
                for i in range(2): A(f"v_mov_b32 v{P+12+2*p+i}, v{P+4*p+i}")
            for p in range(npair):
                single = 2*p+1 >= len(tiles)
                if not single:
                    for i in range(2): A(f"v_mov_b32_dpp v{P+4*p+i}, v{P+4*p+2+i} row_ror:8 row_mask:0xf bank_mask:0xc")
                for i in range(2): A(f"v_mov_b32_dpp v{P+4*p+2+i}, v{P+12+2*p+i} row_ror:8 row_mask:0xf bank_mask:0x3")
                for i in range(4): A(f"v_and_or_b32 v{P+4*p+i}, v{P+4*p+i}, s56, v15")
                if single: A("s_mov_b32 exec_lo, 0x00ff00ff\ns_mov_b32 exec_hi, exec_lo")
                if "noast" not in self.opts: A(f"buffer_store_dwordx4 {v(P+4*p,4)}, v6, s[72:75], s54 offen offset:{512*tiles[2*p]} sc1")
            A("s_mov_b64 exec, -1")
        A("s_cmp_eq_u32 s53, 0\ns_cbranch_scc1 L_s_x0")
        conv(1)
        A("s_branch L_s_xj")
        A("L_s_x0:")
        if self.amprole == "s": self.npt -= 1
        conv(0)
        A("L_s_xj:")
        A(f"s_mov_b64 exec, 1\nds_add_u32 v9, v8 offset:{F_SB}\ns_mov_b64 exec, -1")
        self.dstamp()
        if "noe" in self.opts: A("s_endpgm")
        A("s_setprio %d" % self.opt("sep", 2))
        A("s_lshl_b32 s10, s55, 18\ns_lshl_b32 s11, s60, 16\ns_add_u32 s10, s10, s11\ns_lshl_b32 s11, s59, 7\ns_add_u32 s10, s10, s11")
        A(f"s_add_u32 s10, s10, {WS_A:#x}")
        for i in range(1, 4): A(f"s_add_u32 s{10+i}, s10, {4096*i}")
        A("v_lshlrev_b32 v3, 14, v2\nv_lshl_add_u32 v4, v1, 3, v3")
        A("v_and_b32 v3, 1, v1\nv_lshrrev_b32 v1, 1, v1")
        A("v_lshrrev_b32 v6, v1, s57\nv_and_b32 v6, 1, v6\nv_mul_u32_u24 v6, 0x4000, v6\nv_lshl_or_b32 v15, v6, 16, v6")
        A("v_lshl_add_u32 v1, v3, 3, v1")
        A(f"s_lshl_b32 s14, s59, 8\ns_add_u32 s14, s14, {WS_G:#x}")
        A("v_lshlrev_b32 v5, 4, v1")
        A("v_lshl_add_u32 v3, v2, 8, v5\nv_add_u32 v11, s58, v3")
        A(f"v_add_u32 v12, {L_OMG}, v5")
        A(f"v_and_b32 v3, 3, v0\nv_lshl_add_u32 v3, v3, 2, v9")
        self.flag_wait(2, "s101", "L_s_gw", sleep=4)
        A("buffer_load_dwordx4 v[48:51], v5, s[72:75], s14 offen sc1")
        A("v_lshlrev_b32 v60, 16, v22\nv_and_b32 v61, 0xffff0000, v22\nv_lshlrev_b32 v62, 16, v23\nv_and_b32 v63, 0xffff0000, v23")
        A("s_waitcnt vmcnt(0)")
        self.dstamp()
        for r in range(4): A(f"v_sub_f32 v{80+r}, 1.0, v{48+r}\nv_mul_f32 v{48+r}, 0x5f800000, v{48+r}")
        for r in range(4):
            for i in range(4): A(f"v_mul_f32 v{64+4*r+i}, v{80+r}, v{60+i}")
        self.lds_wait_ge(3, F_FREE, self.opt("aat", 11), 10, "L_s_aw", sleep=self.opt("za", 4))
        self.dstamp()
        self.lds_wait_ge(9, F_SB, 8, 10, "L_s_kd")
        A("L_s_aget:")
        for i in range(4): A(f"buffer_load_dwordx2 {v(32+2*i,2)}, v4, s[72:75], s{10+i} offen sc1")
        A("s_waitcnt vmcnt(0)")
        for i in range(8): A(f"v_xor_b32 v{32+i}, v{32+i}, v15")
        A("v_or3_b32 v40, v32, v33, v34\nv_or3_b32 v41, v35, v36, v37\nv_or3_b32 v40, v40, v38, v39\nv_or_b32 v40, v40, v41\nv_and_b32 v40, 0x40004000, v40\nv_cmp_ne_u32 vcc, 0, v40")
        A("s_cbranch_vccz L_s_aok")
        if "noast" in self.opts: A("s_branch L_s_aok")
        self.guard()
        A("s_sleep %d\ns_branch L_s_aget" % self.opt("asl", 5))
        A("L_s_aok:")
        self.dstamp()
        for r in range(4):
            for i in range(4):
                src = 32 + 2*i + (r >> 1)
                A(f"v_lshlrev_b32 v{44+i}, 16, v{src}" if (r & 1) == 0 else f"v_and_b32 v{44+i}, 0xffff0000, v{src}")
            for i in range(4): A(f"v_fmac_f32 v{64+4*r+i}, v{48+r}, v{44+i}")
            A(f"ds_write_b128 v11, {v(64+4*r,4)} offset:{r*1024}")
        A("s_mov_b64 exec, 0xffff\nds_write_b128 v12, v[80:83]")
        A("s_waitcnt lgkmcnt(0)")
        self.dstamp()
        self.end()

    def build(self):
        self.prologue(); self.helper(); self.loader_x(); self.loader_w(); self.helper2(); self.loader_w2(); self.ssm(); self.consumer()
        self.A("L_end:\ns_endpgm\n.p2align 6\nL_tab:")
        self.A(".long " + ", ".join(str(i) for i in range(16)))
        self.A(f"L_codeend:\n.fill (33024-(L_codeend-{NAME}))/4, 4, 0xbf800000")
        if "pre" in self.opts or "post" in self.opts or "pft" in self.opts:
            P = Asm()
            if "pft" in self.opts:
                P("s_load_dwordx16 s[16:31], s[0:1], 0\ns_load_dwordx16 s[32:47], s[0:1], 64\ns_load_dwordx4 s[48:51], s[0:1], 128")
                P("s_cmpk_ge_u32 s2, 256\ns_cbranch_scc1 L_pend")
                P("s_getpc_b64 s[8:9]\nL_ppc:")
                P(f"s_add_u32 s8, s8, {NAME}-L_ppc\ns_addc_u32 s9, s9, -1")
                P("s_and_b32 s10, s2, 24\ns_lshl_b32 s10, s10, 10\nv_lshl_add_u32 v1, v0, 7, s10\nglobal_load_dword v8, v1, s[8:9]")
                P("s_lshl_b32 s10, s2, 13\nv_lshl_add_u32 v1, v0, 7, s10\nv_lshlrev_b32 v3, 7, v0\nv_min_u32 v2, 5376, v3\ns_mul_i32 s10, s2, 5504\nv_add_u32 v2, s10, v2\ns_lshl_b32 s10, s2, 9\nv_add_u32 v3, s10, v3\nv_lshlrev_b32 v4, 21, v0")
                P("s_waitcnt lgkmcnt(0)")
                P("global_load_dword v9, v1, s[16:17]\nglobal_load_dword v10, v2, s[36:37]\nglobal_load_dword v11, v2, s[40:41]\ns_mov_b64 exec, 15")
                for i in range(6): P(f"global_load_dword v{12+i}, v3, s[{18+2*i}:{19+2*i}]")
                P("global_load_dword v18, v4, s[50:51]")
                P("L_pend:")
            P("s_endpgm")
            ks = [(NAME, self.A.text(), 168, 102, 168, ""), ("aux_kernel", P.text(), 24, 64, 24, "")]
            main = (NAME, 256, 64*NWAVES, LDS_TOTAL); aux = ("aux_kernel", 256 if "pft" in self.opts else 1, 64, 0)
            return multi(ks, [main, aux] if "post" in self.opts else [aux, main])
        return single(self.A.text(), 256, 64*NWAVES, LDS_TOTAL, 168, 102, 168)

if __name__ == "__main__":
    args = sys.argv[2:]
    open(sys.argv[1], "w").write(G(ts="ts" in args, opts=args).build())
```
